```python
import torch

def _softmax(x, axis=-1):
    return torch.softmax(x, dim=axis)
def _gelu(x):
    return torch.nn.functional.gelu(x, approximate="tanh")
def _silu(x):
    return torch.nn.functional.silu(x)
def _sigmoid(x):
    return torch.sigmoid(x)
def _layernorm(x, axis=-1, eps=1e-5):
    m = x.mean(dim=axis, keepdim=True)
    v = x.var(dim=axis, keepdim=True, unbiased=False)
    return (x - m) / torch.sqrt(v + eps)
def _scatter_add(tgt, idx, src, axis=0):
    return tgt.clone().index_add_(axis, idx, src)
def _segment_sum(src, seg, n):
    out = torch.zeros((n,) + src.shape[1:], dtype=src.dtype)
    return out.index_add_(0, seg, src)
def _pad(x, pw):
    flat = tuple(v for pair in reversed(pw) for v in pair)
    return torch.nn.functional.pad(x, flat)

kernel_name = 'concat_heads__gqa_block_cached__mha_block_cached__near_ridge'

def setup_inputs():

    _w = (lambda a: (lambda t: t.to(torch.bfloat16) if t.is_floating_point() else t)(torch.as_tensor(a)))
    def _A_setup():
        B, Sq, D = 16, 64, 512
        Hq, Hkv, Sk, Dh = 32, 8, 512, 128
        assert Hq % Hkv == 0, (Hq, Hkv)
        return {
            "x": _w((lambda *s: torch.randn(*s, dtype=torch.bfloat16) * 0.8)(B, Sq, D)),
            "k_cache": _w((lambda *s: torch.randn(*s, dtype=torch.bfloat16) * 0.8)(B, Hkv, Sk, Dh)),
            "v_cache": _w((lambda *s: torch.randn(*s, dtype=torch.bfloat16) * 0.05)(B, Hkv, Sk, Dh)),
            "wq": _w((lambda *s: torch.randn(*s, dtype=torch.bfloat16) * 0.8)(D, Hq * Dh) * (D ** -0.5)),
            "wo": _w((lambda *s: torch.randn(*s, dtype=torch.bfloat16) * 0.05)(Hq * Dh, D) * ((Hq * Dh) ** -0.5)),
        }
    _A_in = _A_setup()

    def _B_setup():
        B, Sq, D = 16, 64, 512
        H, Sk, Dh = 32, 512, 128
        return {
            "x": _w((lambda *s: torch.randn(*s, dtype=torch.bfloat16) * 0.8)(B, Sq, D)),
            "k_cache": _w((lambda *s: torch.randn(*s, dtype=torch.bfloat16) * 0.8)(B, H, Sk, Dh)),
            "v_cache": _w((lambda *s: torch.randn(*s, dtype=torch.bfloat16) * 0.05)(B, H, Sk, Dh)),
            "wq": _w((lambda *s: torch.randn(*s, dtype=torch.bfloat16) * 0.8)(D, H * Dh) * (D ** -0.5)),
            "wo": _w((lambda *s: torch.randn(*s, dtype=torch.bfloat16) * 0.05)(H * Dh, D) * ((H * Dh) ** -0.5)),
        }
    _B_in = _B_setup()

    return {
        "A_x": _A_in["x"],
        "A_k_cache": _A_in["k_cache"],
        "A_v_cache": _A_in["v_cache"],
        "A_wq": _A_in["wq"],
        "A_wo": _A_in["wo"],
        "B_x": _B_in["x"],
        "B_k_cache": _B_in["k_cache"],
        "B_v_cache": _B_in["v_cache"],
        "B_wq": _B_in["wq"],
        "B_wo": _B_in["wo"],
    }

def reference(A_x, A_k_cache, A_v_cache, A_wq, A_wo, B_x, B_k_cache, B_v_cache, B_wq, B_wo):
    def _A_ref(x, k_cache, v_cache, wq, wo):
        B, Sq, D = x.shape
        Hq, Dh = 32, 128
        Hkv = k_cache.shape[1]
        rep = Hq // Hkv
        q = (lambda x, *d: x.permute(*d))((x @ wq).reshape(B, Sq, Hq, Dh), 0, 2, 1, 3)
        k = (lambda x, n, axis: torch.repeat_interleave(x, n, dim=axis))(k_cache, rep, axis=1)
        v = (lambda x, n, axis: torch.repeat_interleave(x, n, dim=axis))(v_cache, rep, axis=1)
        scores = torch.einsum("bhqd,bhkd->bhqk", q, k) * (Dh ** -0.5)
        p = _softmax(scores, axis=-1)
        o = torch.einsum("bhqk,bhkd->bhqd", p, v)
        return (lambda x, *d: x.permute(*d))(o, 0, 2, 1, 3).reshape(B, Sq, Hq * Dh) @ wo

    def _B_ref(x, k_cache, v_cache, wq, wo):
        B, Sq, D = x.shape
        H, Dh = 32, 128
        q = (lambda x, *d: x.permute(*d))((x @ wq).reshape(B, Sq, H, Dh), 0, 2, 1, 3)
        scores = torch.einsum("bhqd,bhkd->bhqk", q, k_cache) * (Dh ** -0.5)
        p = _softmax(scores, axis=-1)
        o = torch.einsum("bhqk,bhkd->bhqd", p, v_cache)
        return (lambda x, *d: x.permute(*d))(o, 0, 2, 1, 3).reshape(B, Sq, H * Dh) @ wo

    a = _A_ref(A_x, A_k_cache, A_v_cache, A_wq, A_wo)
    b = _B_ref(B_x, B_k_cache, B_v_cache, B_wq, B_wo)
    return torch.concatenate([a, b], axis=-1)
```

```python
import sys, math, struct

NAME = "concat_heads__gqa_block_cached__mha_block_cached__near_ridge"
HEADER = open("cdna_kernels/" + NAME + ".s.ref").read().split("; Override")[0]


def f32bits(x):
    return struct.unpack("<I", struct.pack("<f", x))[0]


class Asm:
    def __init__(self):
        self.L = []
        self.nlab = 0

    def __call__(self, s):
        for line in s.strip("\n").split("\n"):
            self.L.append("  " + line.strip() if not line.strip().endswith(":") else line.strip())

    def lab(self, base="L"):
        self.nlab += 1
        return f"{base}_{self.nlab}"

    def text(self):
        return "\n".join(self.L) + "\n"


class DS:
    def __init__(self, A, pending=0):
        self.A = A
        self.n = pending
        self.done = 0

    def issue(self, text):
        if self.n - self.done >= 15:
            self.need(self.n - 14 - 1)
        self.A(text)
        self.n += 1
        return self.n - 1

    def need(self, idx):
        if idx < self.done:
            return
        self.A(f"s_waitcnt lgkmcnt({self.n - 1 - idx})")
        self.done = idx + 1


def vr(a, n):
    return f"v[{a}:{a+n-1}]"


KV_BASE = 0
KV_SLOT = 32768
W_BASE = 3 * KV_SLOT
W_SLOT = 20480
X_OFF = 16384
LDS_BYTES = 163840
MBOX = [W_BASE + X_OFF, W_BASE + W_SLOT + X_OFF, W_BASE + 2 * W_SLOT + X_OFF, W_BASE + 3 * W_SLOT]

sW_ID = "s3"
sKV = "s[8:11]"
sWQ = 12
sWs = "s[16:19]"
sX = "s[20:23]"
sWO = 24
sP = "s[28:31]"
sN = "s32"
sWI = "s33"
sWU = "s34"
sKI = "s35"
sKU = "s36"
sWoff = "s37"
sWstep = "s38"
sXoff = "s39"
sKoff = "s40"
sC = "s41"
sInvC = "s42"
sT = "s43"
sT2 = "s44"
sI = "s45"
sHH = "s46"
sQH = "s47"
sHS = "s48"
sXI = "s49"
sWIend = "s50"
sKIend = "s51"
sKUend = "s52"
sT8 = "s53"
sTSb = "s[54:55]"
sTS = 56

vKVo = 4
vWo = 8
vXo = 12
vPK, vPV, vPW, vPX, vPO, vL16 = 13, 14, 15, 16, 17, 18
vA = 20
vM, vThr, vL0, vL1, vT0, vT1, vT2, vT3 = 32, 33, 34, 35, 36, 37, 38, 39
vS = 40
vPp = 56
vACC = 64
vF0 = 128
vF1 = 160
vQ = 192
vOP = 224
vWF = 32

OPT = dict(ts=False, kv_nt=True, w_nt=False, st=" sc1")


def stamp(A, idx):
    if not OPT["ts"]:
        return
    A(f"""
    s_memrealtime s[{sTS}:{sTS+1}]
    s_waitcnt lgkmcnt(0)
    v_mov_b32 v2, s{sTS}
    v_mov_b32 v3, 0
    global_store_dword v3, v2, {sTSb} offset:{idx*4}
    """)


def ring_adv(A, reg, step, end, span):
    A(f"""
    s_add_u32 {reg}, {reg}, {step}
    s_cmp_ge_u32 {reg}, {end}
    s_cselect_b32 {sT}, {span}, 0
    s_sub_u32 {reg}, {reg}, {sT}
    """)


def issue_kv(A):
    nt = " nt" if OPT["kv_nt"] else ""
    for half in range(2):
        if half == 0:
            A(f"s_mov_b32 m0, {sKI}")
            A(f"s_add_u32 {sT2}, {sKoff}, 4096")
            so = sKoff
        else:
            A(f"s_add_u32 m0, {sKI}, 4096")
            A(f"s_add_u32 {sKoff}, {sKoff}, 8192")
            so = sT2
        for p in range(4):
            off = f" offset:{p*1024}" if p else ""
            A(f"buffer_load_dwordx4 v{vKVo+p}, {sKV}, {so} offen{off}{nt} lds")
    ring_adv(A, sKI, KV_SLOT, sKIend, 3 * KV_SLOT)


def issue_w(A, with_x):
    nt = " nt" if OPT["w_nt"] else ""
    A(f"s_mov_b32 m0, {sWI}")
    A("s_nop 0")
    for p in range(4):
        off = f" offset:{p*1024}" if p else ""
        A(f"buffer_load_dwordx4 v{vWo+p}, {sWs}, {sWoff} offen{off}{nt} lds")
    A(f"s_add_u32 {sWoff}, {sWoff}, {sWstep}")
    if with_x:
        A(f"s_add_u32 m0, {sWI}, {sXI}")
        A("s_nop 0")
        A(f"buffer_load_dwordx4 v{vXo}, {sX}, {sXoff} offen lds")
        A(f"s_add_u32 {sXoff}, {sXoff}, 64")
    ring_adv(A, sWI, W_SLOT, sWIend, 3 * W_SLOT)


def skip_w(A):
    ring_adv(A, sWI, W_SLOT, sWIend, 3 * W_SLOT)


def skip_kv(A):
    ring_adv(A, sKI, KV_SLOT, sKIend, 3 * KV_SLOT)


def adv_wu(A):
    ring_adv(A, sWU, W_SLOT, W_BASE + 3 * W_SLOT, 3 * W_SLOT)


def adv_ku(A):
    ring_adv(A, sKU, KV_SLOT, sKUend, 3 * KV_SLOT)


def qslice(A):
    a = vA
    A(f"""
    v_add_u32 v{a}, {sWU}, v{vPW}
    v_add_u32 v{a+4}, {sWU}, v{vPX}
    v_xor_b32 v{a+1}, 64, v{a}
    v_xor_b32 v{a+2}, 0x80, v{a}
    v_xor_b32 v{a+3}, 0xc0, v{a}
    v_xor_b32 v{a+5}, 32, v{a+4}
    """)
    D = DS(A)
    ids = {}
    reads = []
    for ks in range(2):
        reads.append((("x", ks), f"ds_read_b128 {vr(vF1+4*ks,4)}, v{a+4+ks} offset:{X_OFF}"))
        for m in range(4):
            for u in range(2):
                reads.append(((ks, m, u), f"ds_read_b64_tr_b16 {vr(vF0+16*ks+4*m+2*u,2)}, v{a+m} offset:{(16*ks+4*u)*512}"))
    for k, t in reads[:14]:
        ids[k] = D.issue(t)
    rest = reads[14:]
    for ks in range(2):
        for m in range(4):
            D.need(ids[(ks, m, 1)])
            A(f"v_mfma_f32_32x32x16_bf16 {vr(vACC+16*m,16)}, {vr(vF0+16*ks+4*m,4)}, {vr(vF1+4*ks,4)}, {vr(vACC+16*m,16)}")
            for k, t in rest[:2]:
                ids[k] = D.issue(t)
            rest = rest[2:]


def zero_regs(A, base, n):
    for i in range(n):
        A(f"v_mov_b32 v{base+i}, 0")


def qfinal(A):
    A("s_nop 7\ns_nop 7")
    for i in range(32):
        A(f"v_cvt_pk_bf16_f32 v{vQ+i}, v{vACC+2*i}, v{vACC+2*i+1}")
    zero_regs(A, vACC, 64)
    A(f"""
    v_mov_b32 v{vM}, 0xf149f2ca
    v_mov_b32 v{vThr}, 0xf149f2ca
    v_mov_b32 v{vL0}, 0
    v_mov_b32 v{vL1}, 0
    """)


def attn(A, rare_blocks):
    a = vA
    lr, lb = A.lab("L_rare"), A.lab("L_back")
    A(f"v_add_u32 v{a}, {sKU}, v{vPK}")
    A(f"v_add_u32 v{a+8}, {sKU}, v{vPV}")
    for s in range(1, 8):
        A(f"v_xor_b32 v{a+s}, {32*s}, v{a}")
    D = DS(A)
    kid = [D.issue(f"ds_read_b128 {vr(vF0+4*s,4)}, v{a+s}") for s in range(8)]
    for m in range(1, 4):
        A(f"v_xor_b32 v{a+8+m}, {64*m}, v{a+8}")
    vreads = [((j, m, u), f"ds_read_b64_tr_b16 {vr(vF1+16*j+4*m+2*u,2)}, v{a+8+m} offset:{8192+4096*j+2048*u}")
              for j in range(2) for m in range(4) for u in range(2)]
    vid = {}
    for s in range(8):
        D.need(kid[s])
        c = "0" if s == 0 else vr(vS, 16)
        A(f"v_mfma_f32_32x32x16_bf16 {vr(vS,16)}, {vr(vF0+4*s,4)}, {vr(vQ+4*s,4)}, {c}")
        if s >= 6:
            for k, t in vreads[:2]:
                vid[k] = D.issue(t)
            vreads = vreads[2:]
    for k, t in vreads:
        vid[k] = D.issue(t)
    A("s_nop 1")
    A(f"v_max3_f32 v{vT0}, v{vS}, v{vS+1}, v{vS+2}")
    for i in range(3, 15, 2):
        A(f"v_max3_f32 v{vT0}, v{vT0}, v{vS+i}, v{vS+i+1}")
    A(f"v_max_f32 v{vT0}, v{vT0}, v{vS+15}")
    A(f"v_cmp_gt_f32 vcc, v{vT0}, v{vThr}")
    A(f"s_cbranch_vccnz {lr}")
    A(f"{lb}:")
    for i in range(16):
        A(f"v_fma_f32 v{vS+i}, v{vS+i}, {sC}, -v{vM}")
    for i in range(16):
        A(f"v_exp_f32 v{vS+i}, v{vS+i}")
    for i in range(8):
        A(f"v_add_f32 v{vL0}, v{vL0}, v{vS+2*i}")
        A(f"v_add_f32 v{vL1}, v{vL1}, v{vS+2*i+1}")
        A(f"v_cvt_pk_bf16_f32 v{vPp+i}, v{vS+2*i}, v{vS+2*i+1}")
    A("s_nop 1")
    for j in range(2):
        for m in range(4):
            D.need(vid[(j, m, 1)])
            A(f"v_mfma_f32_32x32x16_bf16 {vr(vACC+16*m,16)}, {vr(vF1+16*j+4*m,4)}, {vr(vPp+4*j,4)}, {vr(vACC+16*m,16)}")
    R = Asm()
    R(f"{lr}:")
    R(f"""
    v_mov_b32 v{vT1}, v{vT0}
    s_nop 1
    v_permlane32_swap_b32 v{vT0}, v{vT1}
    s_nop 1
    v_max_f32 v{vT0}, v{vT0}, v{vT1}
    v_mul_f32 v{vT0}, {sC}, v{vT0}
    v_max_f32 v{vT0}, v{vT0}, v{vM}
    v_sub_f32 v{vT1}, v{vM}, v{vT0}
    v_exp_f32 v{vT1}, v{vT1}
    v_mov_b32 v{vM}, v{vT0}
    v_add_f32 v{vT0}, {sT8}, v{vT0}
    v_mul_f32 v{vThr}, {sInvC}, v{vT0}
    v_mul_f32 v{vL0}, v{vL0}, v{vT1}
    v_mul_f32 v{vL1}, v{vL1}, v{vT1}
    """)
    for i in range(64):
        R(f"v_mul_f32 v{vACC+i}, v{vACC+i}, v{vT1}")
    R(f"s_branch {lb}")
    rare_blocks.append(R)


def onorm(A):
    A(f"""
    s_nop 7
    s_nop 7
    v_add_f32 v{vT0}, v{vL0}, v{vL1}
    v_mov_b32 v{vT1}, v{vT0}
    s_nop 1
    v_permlane32_swap_b32 v{vT0}, v{vT1}
    s_nop 1
    v_add_f32 v{vT0}, v{vT0}, v{vT1}
    v_rcp_f32 v{vT0}, v{vT0}
    s_nop 0
    """)
    for i in range(64):
        A(f"v_mul_f32 v{vACC+i}, v{vACC+i}, v{vT0}")
    for i in range(32):
        A(f"v_cvt_pk_bf16_f32 v{vQ+i}, v{vACC+2*i}, v{vACC+2*i+1}")


def oslice(A, s, first, pending=0):
    a = vA
    A(f"v_add_u32 v{a}, {sWU}, v{vPO}")
    for m in range(1, 4):
        A(f"v_xor_b32 v{a+m}, {64*m}, v{a}")
    D = DS(A, pending)
    reads = [((nb, u), f"ds_read_b64_tr_b16 {vr(vWF+4*nb+2*u,2)}, v{a+(nb&3)} offset:{(nb>>2)*256+u*4096}")
             for nb in range(8) for u in range(2)]
    ids = {}
    n0 = 10
    for k, t in reads[:n0]:
        ids[k] = D.issue(t)
    rest = reads[n0:]
    ob = vQ + 4 * s
    for nb in range(8):
        D.need(ids[(nb, 1)])
        c = "0" if first else vr(vACC + 16 * nb, 16)
        A(f"v_mfma_f32_32x32x16_bf16 {vr(vACC+16*nb,16)}, {vr(vWF+4*nb,4)}, {vr(ob,4)}, {c}")
        for k, t in rest[:2]:
            ids[k] = D.issue(t)
        rest = rest[2:]


def w_to_wo(A):
    A(f"""
    s_mov_b32 s16, s{sWO}
    s_mov_b32 s17, s{sWO+1}
    s_mov_b32 s18, s{sWO+2}
    s_lshl_b32 {sWoff}, {sI}, 12
    s_mov_b32 {sWstep}, 16384
    v_and_b32 v1, 63, v0
    v_lshrrev_b32 v2, 5, v1
    v_lshlrev_b32 v2, 17, v2
    """)
    for p in range(4):
        A(f"v_xor_b32 v3, {p<<2}, v1")
        A(f"v_lshl_add_u32 v{vWo+p}, v3, 4, v2")


def w_flip(A, soff_delta):
    for p in range(4):
        A(f"v_xor_b32 v{vWo+p}, 0x20000, v{vWo+p}")
    if soff_delta < 0:
        A(f"s_sub_u32 {sWoff}, {sWoff}, {-soff_delta}")
    elif soff_delta > 0:
        A(f"s_add_u32 {sWoff}, {sWoff}, {soff_delta}")


def endslot(A, vm):
    if vm is None:
        A("s_waitcnt lgkmcnt(0)")
    else:
        A(f"s_waitcnt vmcnt({vm}) lgkmcnt(0)")
    A("s_barrier")


def loop_end(A, lab, end):
    A(f"""
    s_add_u32 {sN}, {sN}, 1
    s_cmp_lt_u32 {sN}, {end}
    s_cbranch_scc1 {lab}
    """)


def setup(A):
    A(f"""
    s_cmp_ge_u32 s2, 256
    s_cbranch_scc1 L_exit
    s_load_dwordx8 s[60:67], s[0:1], 0
    s_load_dwordx2 s[68:69], s[0:1], 32
    s_load_dwordx8 s[72:79], s[0:1], 40
    s_load_dwordx2 s[80:81], s[0:1], 72
    s_load_dwordx2 s[82:83], s[0:1], 96
    v_lshrrev_b32 v1, 6, v0
    s_and_b32 s4, s2, 7
    v_readfirstlane_b32 {sW_ID}, v1
    s_bfe_u32 s5, s2, 0x10003
    s_lshr_b32 s6, s2, 4
    v_and_b32 v1, 63, v0
    s_and_b32 {sI}, {sW_ID}, 3
    s_bfe_u32 {sHH}, {sW_ID}, 0x10001
    s_and_b32 {sQH}, {sW_ID}, 1
    s_mov_b32 {sC}, {f32bits(math.log2(math.e) / math.sqrt(128.0)):#x}
    s_mov_b32 {sInvC}, {f32bits(math.sqrt(128.0) / math.log2(math.e)):#x}
    s_mov_b32 {sT8}, 0x41000000
    s_waitcnt lgkmcnt(0)
    s_cmp_eq_u32 s5, 0
    s_cselect_b32 s60, s60, s72
    s_cselect_b32 s61, s61, s73
    s_cselect_b32 s62, s62, s74
    s_cselect_b32 s63, s63, s75
    s_cselect_b32 s64, s64, s76
    s_cselect_b32 s65, s65, s77
    s_cselect_b32 s66, s66, s78
    s_cselect_b32 s67, s67, s79
    s_cselect_b32 s68, s68, s80
    s_cselect_b32 s69, s69, s81
    s_cselect_b32 {sHS}, 0, 0x20000
    s_cselect_b32 s7, 17, 19
    s_lshl_b32 s10, 1, s7
    """)
    A(f"""
    s_lshl_b32 {sT}, s6, 3
    s_add_u32 {sT}, {sT}, s4
    s_lshl_b32 {sT}, {sT}, s7
    s_bitcmp1_b32 {sW_ID}, 0
    s_cselect_b32 s8, s64, s62
    s_cselect_b32 s9, s65, s63
    s_add_u32 s8, s8, {sT}
    s_addc_u32 s9, s9, 0
    s_and_b32 s9, s9, 0xffff
    s_mov_b32 s11, 0x20000
    s_lshl_b32 {sT}, s4, 10
    s_add_u32 s12, s66, {sT}
    s_addc_u32 s13, s67, 0
    s_and_b32 s13, s13, 0xffff
    s_sub_u32 s14, 0x400000, {sT}
    s_mov_b32 s15, 0x20000
    s_mov_b32 s16, s12
    s_mov_b32 s17, s13
    s_mov_b32 s18, s14
    s_mov_b32 s19, 0x20000
    s_lshl_b32 {sT}, s6, 16
    s_add_u32 s20, s60, {sT}
    s_addc_u32 s21, s61, 0
    s_and_b32 s21, s21, 0xffff
    s_mov_b32 s22, 0x10000
    s_mov_b32 s23, 0x20000
    s_lshl_b32 {sT}, s4, 19
    s_add_u32 s24, s68, {sT}
    s_addc_u32 s25, s69, 0
    s_and_b32 s25, s25, 0xffff
    s_mov_b32 s26, 0x80000
    s_mov_b32 s27, 0x20000
    s_lshl_b32 {sT}, s5, 4
    s_add_u32 {sT}, {sT}, s6
    s_lshl_b32 {sT}, {sT}, 3
    s_add_u32 {sT}, {sT}, s4
    s_lshl_b32 {sT}, {sT}, 16
    s_add_u32 s28, s82, {sT}
    s_addc_u32 s29, s83, 0
    s_and_b32 s29, s29, 0xffff
    s_mov_b32 s30, 0x10000
    s_mov_b32 s31, 0x20000
    """)
    if OPT["ts"]:
        A(f"""
        s_lshl_b32 {sT}, s2, 3
        s_add_u32 {sT}, {sT}, {sW_ID}
        s_lshl_b32 {sT}, {sT}, 6
        s_add_u32 {sT}, {sT}, 0x8000000
        s_add_u32 s54, s82, {sT}
        s_addc_u32 s55, s83, 0
        """)
    A(f"""
    v_lshrrev_b32 v2, 4, v1
    v_and_b32 v3, 15, v1
    v_lshlrev_b32 v19, 2, v2
    s_bitcmp1_b32 {sW_ID}, 0
    s_cselect_b64 vcc, -1, 0
    """)
    for p in range(4):
        A(f"""
        v_add_u32 v20, {4*p}, v2
        v_cndmask_b32 v20, v20, v19, vcc
        v_xor_b32 v20, v20, v3
        v_lshlrev_b32 v20, 4, v20
        v_lshl_add_u32 v{vKVo+p}, v2, 8, v20
        """)
    A(f"""
    v_lshrrev_b32 v2, 5, v1
    v_and_b32 v3, 31, v1
    """)
    for p in range(4):
        A(f"""
        v_add_u32 v20, {(2*p)&3}, v2
        v_lshlrev_b32 v20, 2, v20
        v_xor_b32 v20, v20, v3
        v_lshlrev_b32 v20, 4, v20
        v_lshl_add_u32 v20, v2, 13, v20
        v_add_u32 v{vWo+p}, {2*p*8192 - p*1024}, v20
        """)
    A(f"""
    v_lshrrev_b32 v2, 2, v1
    v_lshrrev_b32 v3, 4, v1
    v_xor_b32 v3, v3, v1
    v_and_b32 v3, 3, v3
    v_lshlrev_b32 v3, 4, v3
    v_lshl_add_u32 v{vXo}, v2, 10, v3
    v_lshlrev_b32 v{vL16}, 4, v1
    """)
    A(f"""
    v_and_b32 v2, 31, v1
    v_lshrrev_b32 v3, 5, v1
    v_and_b32 v19, 15, v1
    v_xor_b32 v19, v19, v3
    v_lshlrev_b32 v19, 4, v19
    v_lshl_add_u32 v{vPK}, v2, 8, v19
    """)
    A(f"""
    v_bfe_u32 v19, v1, 2, 2
    v_xor_b32 v19, v19, v3
    v_lshlrev_b32 v19, 4, v19
    v_lshl_add_u32 v19, v2, 6, v19
    s_lshl_b32 {sT}, {sQH}, 11
    v_add_u32 v{vPX}, {sT}, v19
    """)
    A(f"""
    v_bfe_u32 v20, v1, 4, 1
    v_bfe_u32 v21, v1, 2, 2
    v_and_b32 v22, 1, v1
    v_bfe_u32 v23, v1, 1, 1
    v_lshlrev_b32 v24, 1, v22
    v_or_b32 v24, v24, v23
    v_lshl_add_u32 v24, v20, 2, v24
    v_lshlrev_b32 v24, 3, v24
    v_lshl_add_u32 v24, v21, 6, v24
    v_lshlrev_b32 v25, 2, v3
    v_add_u32 v25, v25, v21
    v_lshl_add_u32 v{vPV}, v25, 8, v24
    v_lshlrev_b32 v25, 3, v3
    v_add_u32 v25, v25, v21
    v_lshl_add_u32 v26, v25, 9, v24
    s_lshl_b32 {sT}, {sHH}, 8
    v_add_u32 v{vPW}, {sT}, v26
    v_lshlrev_b32 v24, 2, v22
    v_lshl_add_u32 v24, v20, 1, v24
    v_add_u32 v24, v24, v23
    v_lshlrev_b32 v24, 3, v24
    v_lshl_add_u32 v24, v21, 6, v24
    v_lshl_add_u32 v26, v25, 10, v24
    s_lshl_b32 {sT}, {sHH}, 9
    v_add_u32 v{vPO}, {sT}, v26
    """)
    A(f"""
    s_lshl_b32 {sT}, {sI}, 12
    s_add_u32 {sWI}, {sT}, {W_BASE}
    s_add_u32 {sWIend}, {sWI}, {3*W_SLOT}
    s_mul_i32 {sXI}, {sI}, {(1024 - 4096) & 0xffffffff:#x}
    s_add_u32 {sXI}, {sXI}, {X_OFF}
    s_mov_b32 {sWU}, {W_BASE}
    s_lshl_b32 {sKI}, {sI}, 13
    s_add_u32 {sKIend}, {sKI}, {3*KV_SLOT}
    s_lshl_b32 {sKU}, {sHH}, 14
    s_add_u32 {sKUend}, {sKU}, {3*KV_SLOT}
    s_lshl_b32 {sWoff}, {sI}, 16
    s_mov_b32 {sWstep}, {32*8192}
    s_lshl_b32 {sXoff}, {sI}, 14
    s_mul_i32 {sKoff}, {sHH}, {sHS}
    s_mov_b32 {sN}, 0
    """)


def prog_b(A):
    rare = []
    A(f"s_cmp_ge_u32 {sW_ID}, 4")
    A("s_cbranch_scc1 L_G1")
    stamp(A, 0)
    issue_kv(A)
    issue_kv(A)
    zero_regs(A, vACC, 64)
    A("s_barrier")
    stamp(A, 1)
    l = A.lab("L_g0p")
    A(f"{l}:")
    qslice(A)
    adv_wu(A)
    sk = A.lab("L_sk")
    A(f"s_cmp_eq_u32 {sN}, 15\ns_cbranch_scc0 {sk}\ns_waitcnt vmcnt(0)\n{sk}:")
    endslot(A, None)
    loop_end(A, l, 16)
    stamp(A, 2)
    qfinal(A)
    l = A.lab("L_g0r1")
    A(f"{l}:")
    attn(A, rare)
    adv_ku(A)
    endslot(A, None)
    loop_end(A, l, 32)
    stamp(A, 3)
    onorm(A)
    w_to_wo(A)
    A(f"""
    s_add_u32 {sWoff}, {sWoff}, {2*16384}
    s_lshl_b32 {sT}, {sI}, 12
    s_add_u32 {sWI}, {sT}, {W_BASE + (34 % 3) * W_SLOT}
    s_mov_b32 {sWU}, {W_BASE + (32 % 3) * W_SLOT}
    s_lshl_b32 {sKI}, {sI}, 13
    s_add_u32 {sKI}, {sKI}, {(18 % 3) * KV_SLOT}
    s_add_u32 {sT}, {sHH}, 2
    s_mul_i32 {sKoff}, {sT}, {sHS}
    s_add_u32 {sKoff}, {sKoff}, {2*8192}
    s_mul_i32 {sT}, {sI}, {W_SLOT}
    s_cmp_eq_u32 {sI}, 3
    s_cselect_b32 {sT2}, 0, {X_OFF}
    s_add_u32 {sT}, {sT}, {sT2}
    s_add_u32 {sT}, {sT}, {W_BASE}
    v_add_u32 v{vA+8}, {sT}, v{vL16}
    s_xor_b32 s58, {sI}, 2
    s_mul_i32 {sT}, s58, {W_SLOT}
    s_cmp_eq_u32 s58, 3
    s_cselect_b32 {sT2}, 0, {X_OFF}
    s_add_u32 {sT}, {sT}, {sT2}
    s_add_u32 {sT}, {sT}, {W_BASE}
    v_add_u32 v{vA+9}, {sT}, v{vL16}
    """)
    for n in range(32, 48):
        cnt = 0
        if n <= 45:
            issue_kv(A)
            cnt += 8
        if n + 2 == 40:
            w_flip(A, -131072)
        if n + 2 == 48:
            w_flip(A, 131072)
        issue_w(A, False)
        cnt += 4
        if n in (33, 35):
            base = vQ + (0 if n == 33 else 16)
            for i in range(4):
                A(f"ds_write_b128 v{vA+8}, {vr(base+4*i,4)} offset:{1024*i}")
        if n in (34, 36):
            base = vOP + (0 if n == 34 else 16)
            for i in range(4):
                A(f"ds_read_b128 {vr(base+4*i,4)}, v{vA+9} offset:{1024*i}")
        oslice(A, n - 32, n == 32, 4 if n in (33, 34, 35, 36) else 0)
        adv_wu(A)
        endslot(A, cnt)
    stamp(A, 4)
    A(f"""
    s_lshl_b32 {sT}, {sI}, 13
    v_add_u32 v{vA+8}, {sT}, v{vL16}
    v_xor_b32 v{vA+9}, 0x4000, v{vA+8}
    """)
    for i in range(8):
        A(f"ds_read_b128 {vr(vQ+4*i,4)}, v{vA+8} offset:{1024*i}")
    A("s_waitcnt lgkmcnt(4)")
    for i in range(8):
        A(f"ds_read_b128 {vr(vOP+4*i,4)}, v{vA+9} offset:{1024*i}")
    A("s_waitcnt lgkmcnt(0)")
    for n in range(48, 64):
        oslice(A, n - 48, False)
        adv_wu(A)
        if n < 63:
            endslot(A, 0 if n == 48 else None)
    stamp(A, 5)
    A(f"""
    s_nop 7
    s_nop 7
    s_lshl_b32 {sT}, {sI}, 14
    """)
    for nb in range(8):
        for half in range(2):
            d = vWF + 4 * ((2 * nb + half) & 7)
            for i in range(4):
                r = vACC + 16 * nb + 8 * half + 2 * i
                A(f"v_cvt_pk_bf16_f32 v{d+i}, v{r}, v{r+1}")
            k = 2 * nb + half
            if k in (4, 8, 12):
                A(f"s_add_u32 {sT}, {sT}, 4096")
            off = f" offset:{(k&3)*1024}" if k & 3 else ""
            A(f"buffer_store_dwordx4 {vr(d,4)}, v{vL16}, {sP}, {sT} offen{off}{OPT['st']}")
            if k == 7:
                A("s_waitcnt vmcnt(4)" if False else "s_nop 1")
    A("s_waitcnt vmcnt(0)")
    stamp(A, 6)
    A("s_endpgm")
    A("L_G1:")
    stamp(A, 0)
    issue_w(A, True)
    issue_w(A, True)
    zero_regs(A, vACC, 64)
    skip_kv(A)
    skip_kv(A)
    A(f"s_add_u32 {sKoff}, {sKoff}, {2*8192}")
    A("s_waitcnt vmcnt(5)")
    A("s_barrier")
    stamp(A, 1)
    l = A.lab("L_g1p")
    A(f"{l}:")
    sk = A.lab("L_sk")
    A(f"""
    s_cmp_eq_u32 {sN}, 14
    s_cbranch_scc0 {sk}
    s_lshl_b32 {sWoff}, {sI}, 16
    s_add_u32 {sWoff}, {sWoff}, 512
    s_lshl_b32 {sXoff}, {sI}, 14
    {sk}:
    """)
    issue_w(A, True)
    adv_wu(A)
    endslot(A, 5)
    loop_end(A, l, 16)
    stamp(A, 2)
    l = A.lab("L_g1r1")
    A(f"{l}:")
    sk = A.lab("L_sk")
    A(f"s_cmp_eq_u32 {sN}, 30\ns_cbranch_scc0 {sk}")
    w_to_wo(A)
    A(f"""
    s_mov_b32 {sXoff}, 0x100000
    s_add_u32 {sT}, {sHH}, 2
    s_mul_i32 {sKoff}, {sT}, {sHS}
    {sk}:
    """)
    issue_kv(A)
    issue_w(A, True)
    qslice(A)
    adv_wu(A)
    adv_ku(A)
    endslot(A, 13)
    loop_end(A, l, 32)
    stamp(A, 3)
    qfinal(A)
    l = A.lab("L_g1r2")
    A(f"{l}:")
    attn(A, rare)
    adv_ku(A)
    sk = A.lab("L_sk")
    A(f"s_cmp_eq_u32 {sN}, 47\ns_cbranch_scc0 {sk}")
    onorm(A)
    A(f"""
    s_lshl_b32 {sT}, {sI}, 13
    v_add_u32 v{vA+8}, {sT}, v{vL16}
    """)
    for i in range(8):
        A(f"ds_write_b128 v{vA+8}, {vr(vQ+4*i,4)} offset:{1024*i}")
    A(f"{sk}:")
    endslot(A, 0)
    loop_end(A, l, 48)
    stamp(A, 4)
    A(f"""
    s_lshl_b32 {sWoff}, {sI}, 12
    s_add_u32 {sWoff}, {sWoff}, {262144 + 2*16384}
    s_lshl_b32 {sT}, {sI}, 12
    s_add_u32 {sWI}, {sT}, {W_BASE + (50 % 3) * W_SLOT}
    """)
    l = A.lab("L_g1e")
    A(f"{l}:")
    sk = A.lab("L_sk")
    A(f"s_cmp_eq_u32 {sN}, 54\ns_cbranch_scc0 {sk}")
    w_flip(A, -131072)
    A(f"{sk}:")
    issue_w(A, False)
    endslot(A, 4)
    loop_end(A, l, 62)
    endslot(A, 0)
    stamp(A, 5)
    A("s_endpgm")
    for R in rare:
        A.L += R.L


def reduce_kernel(A):
    A(f"""
    s_cmp_ge_u32 s2, 512
    s_cbranch_scc1 L_exit2
    s_load_dwordx2 s[4:5], s[0:1], 96
    s_load_dwordx2 s[6:7], s[0:1], 80
    v_lshlrev_b32 v1, 4, v0
    s_lshr_b32 s16, s2, 4
    s_lshl_b32 s17, s16, 19
    s_and_b32 s18, s2, 15
    s_lshl_b32 s18, s18, 12
    s_add_u32 s17, s17, s18
    s_waitcnt lgkmcnt(0)
    s_mov_b32 s8, s4
    s_and_b32 s9, s5, 0xffff
    s_mov_b32 s10, 0x1000000
    s_mov_b32 s11, 0x20000
    s_mov_b32 s12, s6
    s_and_b32 s13, s7, 0xffff
    s_mov_b32 s14, 0x200000
    s_mov_b32 s15, 0x20000
    """)
    for j in range(8):
        A(f"buffer_load_dwordx4 {vr(8+4*j,4)}, v1, s[8:11], s17 offen")
        if j < 7:
            A("s_add_u32 s17, s17, 0x10000")
    A(f"""
    v_and_b32 v2, 31, v0
    v_bfe_u32 v3, v0, 5, 1
    v_bfe_u32 v4, v0, 6, 1
    v_bfe_u32 v5, v0, 7, 1
    v_lshlrev_b32 v2, 11, v2
    v_lshl_add_u32 v2, v3, 5, v2
    v_lshl_add_u32 v2, v4, 4, v2
    v_lshl_add_u32 v2, v5, 6, v2
    s_and_b32 s18, s16, 15
    s_lshl_b32 s18, s18, 17
    s_lshr_b32 s19, s16, 4
    s_lshl_b32 s19, s19, 10
    s_add_u32 s18, s18, s19
    s_bfe_u32 s19, s2, 0x10002
    s_lshl_b32 s19, s19, 16
    s_add_u32 s18, s18, s19
    s_bfe_u32 s19, s2, 0x10003
    s_lshl_b32 s19, s19, 9
    s_add_u32 s18, s18, s19
    s_and_b32 s19, s2, 3
    s_lshl_b32 s19, s19, 7
    s_add_u32 s18, s18, s19
    s_mov_b32 s20, 0xffff0000
    s_waitcnt vmcnt(7)
    """)
    for i in range(4):
        A(f"v_lshlrev_b32 v{40+2*i}, 16, v{8+i}")
        A(f"v_and_b32 v{41+2*i}, s20, v{8+i}")
    for j in range(1, 8):
        A(f"s_waitcnt vmcnt({7-j})")
        for i in range(4):
            A(f"v_lshlrev_b32 v48, 16, v{8+4*j+i}")
            A(f"v_and_b32 v49, s20, v{8+4*j+i}")
            A(f"v_add_f32 v{40+2*i}, v{40+2*i}, v48")
            A(f"v_add_f32 v{41+2*i}, v{41+2*i}, v49")
    for i in range(4):
        A(f"v_cvt_pk_bf16_f32 v{52+i}, v{40+2*i}, v{41+2*i}")
    A("buffer_store_dwordx4 v[52:55], v2, s[12:15], s18 offen")
    A("L_exit2:")
    A("s_endpgm")


def kd(name, vg, sg):
    return f""".amdhsa_kernel {name}
  .amdhsa_next_free_vgpr {vg}
  .amdhsa_next_free_sgpr {sg}
  .amdhsa_accum_offset {vg}
  .amdhsa_group_segment_fixed_size 0
  .amdhsa_kernarg_size 104
  .amdhsa_user_sgpr_count 2
  .amdhsa_user_sgpr_kernarg_segment_ptr 1
  .amdhsa_system_sgpr_workgroup_id_x 1
.end_amdhsa_kernel
"""


def build():
    out = HEADER
    out += f"; @launch kernel=attn_kernel grid=(256,1,1) block=(512,1,1) lds={LDS_BYTES}\n"
    out += "; @launch kernel=reduce_kernel grid=(512,1,1) block=(256,1,1) lds=0\n"
    out += '.amdgcn_target "amdgcn-amd-amdhsa--gfx950"\n.text\n'
    A = Asm()
    A.L.append(".globl attn_kernel\n.p2align 8\n.type attn_kernel,@function\nattn_kernel:")
    setup(A)
    prog_b(A)
    A("L_exit:")
    A("s_endpgm")
    A.L.append(".globl reduce_kernel\n.p2align 8\n.type reduce_kernel,@function\nreduce_kernel:")
    reduce_kernel(A)
    out += A.text()
    out += '.section .rodata,"a"\n.p2align 6\n' + kd("attn_kernel", 256, 96) + ".p2align 6\n" + kd("reduce_kernel", 56, 32)
    return out


if __name__ == "__main__":
    path = sys.argv[1]
    for kv in sys.argv[2:]:
        k, v = kv.split("=")
        OPT[k] = {"0": False, "1": True}.get(v, v.replace("_", " "))
    open(path, "w").write(build())
```

```python
import sys, math, struct

NAME = "concat_heads__gqa_block_cached__mha_block_cached__near_ridge"
HEADER = open("cdna_kernels/" + NAME + ".s.ref").read().split("; Override")[0]


def f32bits(x):
    return struct.unpack("<I", struct.pack("<f", x))[0]


class Asm:
    nlab = 0

    def __init__(self):
        self.L = []

    def __call__(self, s):
        for line in s.strip("\n").split("\n"):
            t = line.strip()
            if t:
                self.L.append(t if t.endswith(":") else "  " + t)

    def lab(self, base="L"):
        Asm.nlab += 1
        return f"{base}_{Asm.nlab}"

    def text(self):
        return "\n".join(self.L) + "\n"


class DS:
    def __init__(self, A, pending=0):
        self.A = A
        self.n = pending
        self.done = 0

    def issue(self, text):
        if self.n - self.done >= 15:
            self.need(self.n - 15)
        self.A(text)
        self.n += 1
        return self.n - 1

    def need(self, idx):
        if idx < self.done:
            return
        self.A(f"s_waitcnt lgkmcnt({self.n - 1 - idx})")
        self.done = idx + 1


def vr(a, n):
    return f"v[{a}:{a+n-1}]"


BLK = 16384
LDS_BYTES = 163840

sW_ID = "s3"
sKV = "s[8:11]"
sWQ = "s[12:15]"
sX = "s[20:23]"
sWO = "s[24:27]"
sP = "s[28:31]"
sN = "s32"
sI4k = "s33"
sI8k = "s34"
sI64k = "s35"
sKU = "s36"
sKhd = "s37"
sKI = "s38"
sKoff = "s40"
sC = "s41"
sInvC = "s42"
sT = "s43"
sT2 = "s44"
sI = "s45"
sHH = "s46"
sQH = "s47"
sKIend = "s51"
sKUend = "s52"
sT8 = "s53"
sTSb = "s[54:55]"
sTS = 56

vKVo = 4
vWo = 8
vPK, vPV, vPW, vPX, vPO, vL16 = 13, 14, 15, 16, 17, 18
vA = 20
vM, vThr, vL0, vL1, vT0, vT1, vT2, vT3 = 32, 33, 34, 35, 36, 37, 38, 39
vS = 40
vPp = 56
vACC = 64
vF0 = 128
vF1 = 160
vQ = 192
vOP = 224
vWF = 32
vXF = 128

OPT = dict(ts=False, kv_nt=True, w_nt=False, st=" sc1", look=8, maxiss=3)


def stamp(A, idx, cyc=False):
    if not OPT["ts"]:
        return
    A(f"""
    {'s_memtime' if cyc else 's_memrealtime'} s[{sTS}:{sTS+1}]
    s_waitcnt lgkmcnt(0)
    s_mov_b32 s{84+idx}, s{sTS}
    """)


def cstamp(A, idx, n):
    if not OPT["ts"]:
        return
    l = A.lab("L_st")
    A(f"s_cmp_eq_u32 {sN}, {n}\ns_cbranch_scc0 {l}")
    stamp(A, idx, True)
    A(f"{l}:")


def stamps_out(A):
    if not OPT["ts"]:
        return
    A("v_mov_b32 v3, 0")
    for i in range(16):
        A(f"v_mov_b32 v2, s{84+i}")
        A(f"global_store_dword v3, v2, {sTSb} offset:{i*4}")
    A("s_waitcnt vmcnt(0)")


def ring_adv(A, reg, step, end, span):
    A(f"""
    s_add_u32 {reg}, {reg}, {step}
    s_cmp_ge_u32 {reg}, {end}
    s_cselect_b32 {sT}, {span}, 0
    s_sub_u32 {reg}, {reg}, {sT}
    """)


class Stream:
    def __init__(self):
        self.A = Asm()
        self.out = []
        self.wmode = "q"
        self.rare = []

    def rec(self, n, deadline):
        self.out.append((n, deadline))

    def vm_for(self, slot):
        last = -1
        for i, (n, d) in enumerate(self.out):
            if d <= slot:
                last = i
        if last < 0:
            return None
        rest = self.out[last + 1:]
        self.out = rest
        return sum(n for n, _ in rest)

    def endslot(self, slot, barrier=True):
        vm = self.vm_for(slot + 1)
        if vm is None:
            self.A("s_waitcnt lgkmcnt(0)")
        else:
            assert vm <= 63
            self.A(f"s_waitcnt vmcnt({vm}) lgkmcnt(0)")
        if barrier:
            self.A("s_barrier")

    def drained(self):
        self.out = []

    def dma_x(self):
        A = self.A
        A(f"""
        s_lshl_b32 {sT}, {sW_ID}, 13
        s_and_b32 {sT2}, {sW_ID}, 1
        s_lshl_b32 {sT2}, {sT2}, 7
        v_xor_b32 v{vA+8}, {sT2}, v{vL16}
        """)
        for j in range(1, 8):
            A(f"v_xor_b32 v{vA+j}, {j*16}, v{vA+8}")
        for half in range(2):
            A(f"s_mov_b32 m0, {sT}")
            A("s_nop 0")
            for p in range(4):
                j = 4 * half + p
                off = f" offset:{p*1024}" if p else ""
                A(f"buffer_load_dwordx4 v{vA+(j if j else 8)}, {sX}, {sT} offen{off} lds")
            if half == 0:
                A(f"s_add_u32 {sT}, {sT}, 4096")
        self.rec(8, -1)

    def set_wmode(self, mode):
        A = self.A
        if self.wmode == mode:
            return
        if self.wmode == "q":
            A(f"""
            v_lshrrev_b32 v2, 9, v{vL16}
            v_lshlrev_b32 v2, 17, v2
            """)
            for p in range(4):
                A(f"v_xor_b32 v3, {p<<6}, v{vL16}")
                A(f"v_add_u32 v{vWo+p}, v3, v2")
            self.wmode = 0
        if self.wmode != mode:
            for p in range(4):
                A(f"v_xor_b32 v{vWo+p}, 0x20000, v{vWo+p}")
            self.wmode = mode

    def dma_w(self, stage, blk, deadline):
        A = self.A
        nt = " nt" if OPT["w_nt"] else ""
        if stage < 32:
            assert self.wmode == "q"
            G, i = stage >> 4, stage & 15
            A(f"s_add_u32 m0, {sI4k}, {blk*BLK}")
            A(f"s_add_u32 {sT}, {sI64k}, {i*262144 + G*512}")
            srd = sWQ
        else:
            ps, s = (stage - 32) >> 4, stage & 15
            self.set_wmode(s >> 3)
            A(f"s_add_u32 m0, {sI4k}, {blk*BLK}")
            A(f"s_add_u32 {sT}, {sI4k}, {(s&7)*16384 + ps*262144}")
            srd = sWO
        for p in range(4):
            off = f" offset:{p*1024}" if p else ""
            A(f"buffer_load_dwordx4 v{vWo+p}, {srd}, {sT} offen{off}{nt} lds")
        self.rec(4, deadline)

    def dma_kv_b(self, tile, half, deadline):
        A = self.A
        nt = " nt" if OPT["kv_nt"] else ""
        buf = tile % 3
        A(f"s_add_u32 m0, {sI8k}, {buf*2*BLK + half*4096}")
        A(f"s_add_u32 {sT}, {sKhd}, {(tile>>4)*2*131072 + (tile&15)*8192 + half*4096}")
        for p in range(4):
            off = f" offset:{p*1024}" if p else ""
            A(f"buffer_load_dwordx4 v{vKVo+p}, {sKV}, {sT} offen{off}{nt} lds")
        self.rec(4, deadline)

    def dma_kv_a(self, deadline=None):
        A = self.A
        nt = " nt" if OPT["kv_nt"] else ""
        A(f"s_mov_b32 m0, {sKI}")
        A("s_nop 0")
        A(f"buffer_load_dwordx4 v{vKVo}, {sKV}, {sKoff} offen{nt} lds")
        A(f"buffer_load_dwordx4 v{vKVo+1}, {sKV}, {sKoff} offen offset:1024{nt} lds")
        A(f"s_add_u32 {sKoff}, {sKoff}, 8192")
        ring_adv(A, sKI, BLK, sKIend, 4 * BLK)
        if deadline is not None:
            self.rec(2, deadline)

    def read_x(self):
        A = self.A
        a = vA
        for s in range(1, 8):
            A(f"v_xor_b32 v{a+s}, {32*s}, v{vPX}")
        D = DS(A)
        for s in range(32):
            ad = vPX if (s & 7) == 0 else a + (s & 7)
            D.issue(f"ds_read_b128 {vr(vXF+4*s,4)}, v{ad} offset:{(s>>3)*256}")

    def qslice(self, i, blk):
        A = self.A
        a = vA
        A(f"v_add_u32 v{a}, {blk*BLK}, v{vPW}")
        for m in range(1, 4):
            A(f"v_xor_b32 v{a+m}, {64*m}, v{a}")
        D = DS(A)
        reads = [((ks, m, u), f"ds_read_b64_tr_b16 {vr(vWF+16*ks+4*m+2*u,2)}, v{a+m} offset:{(16*ks+4*u)*512}")
                 for ks in range(2) for m in range(4) for u in range(2)]
        ids = {}
        for k, t in reads[:12]:
            ids[k] = D.issue(t)
        rest = reads[12:]
        for ks in range(2):
            for m in range(4):
                D.need(ids[(ks, m, 1)])
                c = "0" if (i == 0 and ks == 0) else vr(vACC + 16 * m, 16)
                A(f"v_mfma_f32_32x32x16_bf16 {vr(vACC+16*m,16)}, {vr(vWF+16*ks+4*m,4)}, {vr(vXF+4*(2*i+ks),4)}, {c}")
                for k, t in rest[:2]:
                    ids[k] = D.issue(t)
                rest = rest[2:]

    def qfinal(self):
        A = self.A
        A("s_nop 7\ns_nop 7")
        for i in range(32):
            A(f"v_cvt_pk_bf16_f32 v{vQ+i}, v{vACC+2*i}, v{vACC+2*i+1}")
        for i in range(64):
            A(f"v_mov_b32 v{vACC+i}, 0")
        A(f"""
        v_mov_b32 v{vM}, 0xf149f2ca
        v_mov_b32 v{vThr}, 0xf149f2ca
        v_mov_b32 v{vL0}, 0
        v_mov_b32 v{vL1}, 0
        """)

    def attn(self):
        A = self.A
        a = vA
        lr, lb = A.lab("L_rare"), A.lab("L_back")
        A(f"v_add_u32 v{a}, {sKU}, v{vPK}")
        A(f"v_add_u32 v{a+8}, {sKU}, v{vPV}")
        for s in range(1, 8):
            A(f"v_xor_b32 v{a+s}, {32*s}, v{a}")
        D = DS(A)
        kid = [D.issue(f"ds_read_b128 {vr(vF0+4*s,4)}, v{a+s}") for s in range(8)]
        for m in range(1, 4):
            A(f"v_xor_b32 v{a+8+m}, {64*m}, v{a+8}")
        vreads = [((j, m, u), f"ds_read_b64_tr_b16 {vr(vF1+16*j+4*m+2*u,2)}, v{a+8+m} offset:{8192+4096*j+2048*u}")
                  for j in range(2) for m in range(4) for u in range(2)]
        vid = {}
        for s in range(8):
            D.need(kid[s])
            c = "0" if s == 0 else vr(vS, 16)
            A(f"v_mfma_f32_32x32x16_bf16 {vr(vS,16)}, {vr(vF0+4*s,4)}, {vr(vQ+4*s,4)}, {c}")
            if s >= 6:
                for k, t in vreads[:2]:
                    vid[k] = D.issue(t)
                vreads = vreads[2:]
        for k, t in vreads:
            vid[k] = D.issue(t)
        A("s_nop 1")
        A(f"v_max3_f32 v{vT0}, v{vS}, v{vS+1}, v{vS+2}")
        for i in range(3, 15, 2):
            A(f"v_max3_f32 v{vT0}, v{vT0}, v{vS+i}, v{vS+i+1}")
        A(f"v_max_f32 v{vT0}, v{vT0}, v{vS+15}")
        A(f"v_cmp_gt_f32 vcc, v{vT0}, v{vThr}")
        A(f"s_cbranch_vccnz {lr}")
        A(f"{lb}:")
        for i in range(16):
            A(f"v_fma_f32 v{vS+i}, v{vS+i}, {sC}, -v{vM}")
        for i in range(16):
            A(f"v_exp_f32 v{vS+i}, v{vS+i}")
        for i in range(8):
            A(f"v_add_f32 v{vL0}, v{vL0}, v{vS+2*i}")
            A(f"v_add_f32 v{vL1}, v{vL1}, v{vS+2*i+1}")
            A(f"v_cvt_pk_bf16_f32 v{vPp+i}, v{vS+2*i}, v{vS+2*i+1}")
        A("s_nop 1")
        for j in range(2):
            for m in range(4):
                D.need(vid[(j, m, 1)])
                A(f"v_mfma_f32_32x32x16_bf16 {vr(vACC+16*m,16)}, {vr(vF1+16*j+4*m,4)}, {vr(vPp+4*j,4)}, {vr(vACC+16*m,16)}")
        R = Asm()
        R(f"{lr}:")
        R(f"""
        v_mov_b32 v{vT1}, v{vT0}
        s_nop 1
        v_permlane32_swap_b32 v{vT0}, v{vT1}
        s_nop 1
        v_max_f32 v{vT0}, v{vT0}, v{vT1}
        v_mul_f32 v{vT0}, {sC}, v{vT0}
        v_max_f32 v{vT0}, v{vT0}, v{vM}
        v_sub_f32 v{vT1}, v{vM}, v{vT0}
        v_exp_f32 v{vT1}, v{vT1}
        v_mov_b32 v{vM}, v{vT0}
        v_add_f32 v{vT0}, {sT8}, v{vT0}
        v_mul_f32 v{vThr}, {sInvC}, v{vT0}
        v_mul_f32 v{vL0}, v{vL0}, v{vT1}
        v_mul_f32 v{vL1}, v{vL1}, v{vT1}
        """)
        for i in range(64):
            R(f"v_mul_f32 v{vACC+i}, v{vACC+i}, v{vT1}")
        R(f"s_branch {lb}")
        self.rare.append(R)

    def onorm(self):
        A = self.A
        A(f"""
        s_nop 7
        s_nop 7
        v_add_f32 v{vT0}, v{vL0}, v{vL1}
        v_mov_b32 v{vT1}, v{vT0}
        s_nop 1
        v_permlane32_swap_b32 v{vT0}, v{vT1}
        s_nop 1
        v_add_f32 v{vT0}, v{vT0}, v{vT1}
        v_rcp_f32 v{vT0}, v{vT0}
        s_nop 0
        """)
        for i in range(64):
            A(f"v_mul_f32 v{vACC+i}, v{vACC+i}, v{vT0}")
        for i in range(32):
            A(f"v_cvt_pk_bf16_f32 v{vQ+i}, v{vACC+2*i}, v{vACC+2*i+1}")

    def oslice(self, s, blk, first, pending=0):
        A = self.A
        a = vA
        A(f"v_add_u32 v{a}, {blk*BLK}, v{vPO}")
        for m in range(1, 4):
            A(f"v_xor_b32 v{a+m}, {64*m}, v{a}")
        D = DS(A, pending)
        reads = [((nb, u), f"ds_read_b64_tr_b16 {vr(vWF+4*nb+2*u,2)}, v{a+(nb&3)} offset:{(nb>>2)*256+u*4096}")
                 for nb in range(8) for u in range(2)]
        ids = {}
        for k, t in reads[:10]:
            ids[k] = D.issue(t)
        rest = reads[10:]
        ob = vQ + 4 * s
        for nb in range(8):
            D.need(ids[(nb, 1)])
            c = "0" if first else vr(vACC + 16 * nb, 16)
            A(f"v_mfma_f32_32x32x16_bf16 {vr(vACC+16*nb,16)}, {vr(vWF+4*nb,4)}, {vr(ob,4)}, {c}")
            for k, t in rest[:2]:
                ids[k] = D.issue(t)
            rest = rest[2:]

    def write_o(self, base):
        A = self.A
        A(f"s_add_u32 {sT}, {sI8k}, {base}")
        A(f"v_add_u32 v{vA+8}, {sT}, v{vL16}")
        for i in range(8):
            A(f"ds_write_b128 v{vA+8}, {vr(vQ+4*i,4)} offset:{1024*i}")

    def read_o(self, base, own, partner):
        A = self.A
        A(f"s_add_u32 {sT}, {sI8k}, {base}")
        A(f"v_add_u32 v{vA+8}, {sT}, v{vL16}")
        A(f"v_xor_b32 v{vA+9}, 0x4000, v{vA+8}")
        D = DS(A)
        if own:
            for i in range(8):
                D.issue(f"ds_read_b128 {vr(vQ+4*i,4)}, v{vA+8} offset:{1024*i}")
        if partner:
            for i in range(8):
                D.issue(f"ds_read_b128 {vr(vOP+4*i,4)}, v{vA+9} offset:{1024*i}")
        A("s_waitcnt lgkmcnt(0)")

    def store_partial(self):
        A = self.A
        A(f"""
        s_nop 7
        s_nop 7
        s_lshl_b32 {sT}, {sI}, 14
        """)
        for nb in range(8):
            for half in range(2):
                k = 2 * nb + half
                d = vWF + 4 * (k & 7)
                for i in range(4):
                    r = vACC + 16 * nb + 8 * half + 2 * i
                    A(f"v_cvt_pk_bf16_f32 v{d+i}, v{r}, v{r+1}")
                if k in (4, 8, 12):
                    A(f"s_add_u32 {sT}, {sT}, 4096")
                off = f" offset:{(k&3)*1024}" if k & 3 else ""
                A(f"buffer_store_dwordx4 {vr(d,4)}, v{vL16}, {sP}, {sT} offen{off}{OPT['st']}")
        A("s_waitcnt vmcnt(0)")

    def loop_end(self, lab, end):
        self.A(f"""
        s_add_u32 {sN}, {sN}, 1
        s_cmp_lt_u32 {sN}, {end}
        s_cbranch_scc1 {lab}
        """)


def schedule_w(order, use, reserved, can_issue, first_slot=-1):
    look, maxiss = int(OPT["look"]), int(OPT["maxiss"])
    res = {b: list(reserved.get(b, [])) for b in range(10)}
    blk, iss = {}, {}
    cnt = {}
    cur = first_slot
    for st in order:
        s = max(cur, use[st] - look)
        while True:
            ok = None
            if can_issue(s, st) and (s == first_slot or cnt.get(s, 0) < maxiss):
                for b in range(9, -1, -1):
                    if all(use[st] < a or s > e for a, e in res[b]):
                        ok = b
                        break
            if ok is not None:
                break
            s += 1
            assert s < use[st], (st, s)
        res[ok].append((s, use[st]))
        blk[st], iss[st] = ok, s
        cnt[s] = cnt.get(s, 0) + 1
        cur = s
    return blk, iss


def setup(A):
    A(f"""
    s_cmp_ge_u32 s2, 256
    s_cbranch_scc1 L_exit
    s_load_dwordx8 s[60:67], s[0:1], 0
    s_load_dwordx2 s[68:69], s[0:1], 32
    s_load_dwordx8 s[72:79], s[0:1], 40
    s_load_dwordx2 s[80:81], s[0:1], 72
    s_load_dwordx2 s[82:83], s[0:1], 96
    v_lshrrev_b32 v1, 6, v0
    s_and_b32 s4, s2, 7
    v_readfirstlane_b32 {sW_ID}, v1
    s_bfe_u32 s5, s2, 0x10003
    s_lshr_b32 s6, s2, 4
    v_and_b32 v1, 63, v0
    v_lshlrev_b32 v{vL16}, 4, v1
    s_and_b32 {sI}, {sW_ID}, 3
    s_bfe_u32 {sHH}, {sW_ID}, 0x10001
    s_and_b32 {sQH}, {sW_ID}, 1
    s_lshl_b32 {sI4k}, {sI}, 12
    s_lshl_b32 {sI8k}, {sI}, 13
    s_lshl_b32 {sI64k}, {sI}, 16
    s_lshl_b32 {sKhd}, {sHH}, 17
    s_mov_b32 {sC}, {f32bits(math.log2(math.e) / math.sqrt(128.0)):#x}
    s_mov_b32 {sInvC}, {f32bits(math.sqrt(128.0) / math.log2(math.e)):#x}
    s_mov_b32 {sT8}, 0x41000000
    s_waitcnt lgkmcnt(0)
    s_cmp_eq_u32 s5, 0
    s_cselect_b32 s60, s60, s72
    s_cselect_b32 s61, s61, s73
    s_cselect_b32 s62, s62, s74
    s_cselect_b32 s63, s63, s75
    s_cselect_b32 s64, s64, s76
    s_cselect_b32 s65, s65, s77
    s_cselect_b32 s66, s66, s78
    s_cselect_b32 s67, s67, s79
    s_cselect_b32 s68, s68, s80
    s_cselect_b32 s69, s69, s81
    s_cselect_b32 s7, 17, 19
    s_lshl_b32 s10, 1, s7
    s_lshl_b32 {sT}, s6, 16
    s_add_u32 s20, s60, {sT}
    s_addc_u32 s21, s61, 0
    s_and_b32 s21, s21, 0xffff
    s_mov_b32 s22, 0x10000
    s_mov_b32 s23, 0x20000
    s_lshl_b32 {sT}, s4, 10
    s_add_u32 s12, s66, {sT}
    s_addc_u32 s13, s67, 0
    s_and_b32 s13, s13, 0xffff
    s_sub_u32 s14, 0x400000, {sT}
    s_mov_b32 s15, 0x20000
    s_lshl_b32 {sT}, s6, 3
    s_add_u32 {sT}, {sT}, s4
    s_lshl_b32 {sT}, {sT}, s7
    s_bitcmp1_b32 {sW_ID}, 0
    s_cselect_b32 s8, s64, s62
    s_cselect_b32 s9, s65, s63
    s_add_u32 s8, s8, {sT}
    s_addc_u32 s9, s9, 0
    s_and_b32 s9, s9, 0xffff
    s_mov_b32 s11, 0x20000
    s_lshl_b32 {sT}, s4, 19
    s_add_u32 s24, s68, {sT}
    s_addc_u32 s25, s69, 0
    s_and_b32 s25, s25, 0xffff
    s_mov_b32 s26, 0x80000
    s_mov_b32 s27, 0x20000
    s_lshl_b32 {sT}, s5, 4
    s_add_u32 {sT}, {sT}, s6
    s_lshl_b32 {sT}, {sT}, 3
    s_add_u32 {sT}, {sT}, s4
    s_lshl_b32 {sT}, {sT}, 16
    s_add_u32 s28, s82, {sT}
    s_addc_u32 s29, s83, 0
    s_and_b32 s29, s29, 0xffff
    s_mov_b32 s30, 0x10000
    s_mov_b32 s31, 0x20000
    """)
    if OPT["ts"]:
        A(f"""
        s_lshl_b32 {sT}, s2, 3
        s_add_u32 {sT}, {sT}, {sW_ID}
        s_lshl_b32 {sT}, {sT}, 6
        s_add_u32 {sT}, {sT}, 0x8000000
        s_add_u32 s54, s82, {sT}
        s_addc_u32 s55, s83, 0
        """)
        for i in range(16):
            A(f"s_mov_b32 s{84+i}, 0")


def patterns(A):
    A(f"""
    v_lshrrev_b32 v2, 5, v1
    v_and_b32 v3, 31, v1
    """)
    for p in range(4):
        A(f"""
        v_add_u32 v30, {(2*p)&3}, v2
        v_lshlrev_b32 v30, 2, v30
        v_xor_b32 v30, v30, v3
        v_lshlrev_b32 v30, 4, v30
        v_lshl_add_u32 v30, v2, 13, v30
        v_add_u32 v{vWo+p}, {2*p*8192 - p*1024}, v30
        """)


def patterns2(A):
    A(f"""
    v_lshrrev_b32 v2, 4, v1
    v_and_b32 v3, 15, v1
    v_lshlrev_b32 v19, 2, v2
    s_bitcmp1_b32 {sW_ID}, 0
    s_cselect_b64 vcc, -1, 0
    """)
    for p in range(4):
        A(f"""
        v_add_u32 v30, {4*p}, v2
        v_cndmask_b32 v30, v30, v19, vcc
        v_xor_b32 v30, v30, v3
        v_lshlrev_b32 v30, 4, v30
        v_lshl_add_u32 v{vKVo+p}, v2, 8, v30
        """)
    A(f"""
    v_and_b32 v2, 31, v1
    v_lshrrev_b32 v3, 5, v1
    v_and_b32 v19, 15, v1
    v_xor_b32 v19, v19, v3
    v_lshlrev_b32 v19, 4, v19
    v_lshl_add_u32 v{vPK}, v2, 8, v19
    v_lshl_add_u32 v19, v2, 10, v19
    s_lshl_b32 {sT}, {sQH}, 15
    v_add_u32 v{vPX}, {sT}, v19
    """)
    A(f"""
    v_bfe_u32 v32, v1, 4, 1
    v_bfe_u32 v33, v1, 2, 2
    v_and_b32 v34, 1, v1
    v_bfe_u32 v35, v1, 1, 1
    v_lshlrev_b32 v36, 1, v34
    v_or_b32 v36, v36, v35
    v_lshl_add_u32 v36, v32, 2, v36
    v_lshlrev_b32 v36, 3, v36
    v_lshl_add_u32 v36, v33, 6, v36
    v_lshlrev_b32 v37, 2, v3
    v_add_u32 v37, v37, v33
    v_lshl_add_u32 v{vPV}, v37, 8, v36
    v_lshlrev_b32 v37, 3, v3
    v_add_u32 v37, v37, v33
    v_lshl_add_u32 v38, v37, 9, v36
    s_lshl_b32 {sT}, {sHH}, 8
    v_add_u32 v{vPW}, {sT}, v38
    v_lshlrev_b32 v36, 2, v34
    v_lshl_add_u32 v36, v32, 1, v36
    v_add_u32 v36, v36, v35
    v_lshlrev_b32 v36, 3, v36
    v_lshl_add_u32 v36, v33, 6, v36
    v_lshl_add_u32 v38, v37, 10, v36
    s_lshl_b32 {sT}, {sHH}, 9
    v_add_u32 v{vPO}, {sT}, v38
    """)


def pre_x(S, issue_pre):
    A = S.A
    stamp(A, 0)
    S.dma_x()
    patterns(A)
    issue_pre()
    patterns2(A)
    vm = S.vm_for(-1)
    A(f"s_waitcnt vmcnt({vm})")
    A("s_barrier")
    S.read_x()
    S.endslot(-1)
    stamp(A, 1)


def prog_b():
    use = {st: st for st in range(64)}
    reserved = {0: [(-1, 48)], 1: [(-1, 48)], 2: [(-1, 47)], 3: [(-1, 47)], 4: [(14, 45)], 5: [(14, 45)], 9: [(33, 36)]}
    blk, iss = schedule_w(list(range(64)), use, reserved, lambda s, st: True)
    by_slot = {}
    for st in range(64):
        by_slot.setdefault(iss[st], []).append(st)
    if OPT.get("verbose"):
        print("B sched", [(st, iss[st], blk[st]) for st in range(64)], file=sys.stderr)
    MB = 9 * BLK

    def issue_w(S, n):
        for st in by_slot.get(n, []):
            S.dma_w(st, blk[st], use[st])

    S = G0 = Stream()
    A = S.A
    pre_x(S, lambda: None)
    A(f"s_lshl_b32 {sKU}, {sHH}, 14")
    A(f"s_add_u32 {sKUend}, {sKU}, {6*BLK}")
    for n in range(16):
        if n < 4:
            S.dma_kv_b(n >> 1, n & 1, 16 + (n >> 1))
        if n >= 14:
            S.dma_kv_b(2, n - 14, 18)
        if n == 8: stamp(A, 10, True)
        if n == 9: stamp(A, 15, True)
        S.qslice(n, blk[n])
        if n == 8: stamp(A, 11, True)
        S.endslot(n)
    stamp(A, 2)
    S.qfinal()
    A(f"s_mov_b32 {sN}, 16")
    l = A.lab("L_bg0r1")
    A(f"{l}:")
    cstamp(A, 8, 24)
    cstamp(A, 12, 25)
    cstamp(A, 13, 16)
    cstamp(A, 14, 31)
    S.attn()
    ring_adv(A, sKU, 2 * BLK, sKUend, 6 * BLK)
    cstamp(A, 9, 24)
    A("s_waitcnt vmcnt(0) lgkmcnt(0)\ns_barrier")
    S.drained()
    S.loop_end(l, 32)
    stamp(A, 3)
    for n in range(32, 48):
        if n <= 45:
            S.dma_kv_b(n - 14, 0, n + 2)
            S.dma_kv_b(n - 14, 1, n + 2)
        issue_w(S, n)
        if n == 32:
            S.onorm()
            A(f"""
            s_add_u32 {sT}, {sI4k}, {MB}
            v_add_u32 v{vA+8}, {sT}, v{vL16}
            v_xor_b32 v{vA+9}, 0x2000, v{vA+8}
            """)
        if n in (33, 35):
            base = vQ + (0 if n == 33 else 16)
            for i in range(4):
                A(f"ds_write_b128 v{vA+8}, {vr(base+4*i,4)} offset:{1024*i}")
        if n in (34, 36):
            base = vOP + (0 if n == 34 else 16)
            for i in range(4):
                A(f"ds_read_b128 {vr(base+4*i,4)}, v{vA+9} offset:{1024*i}")
        S.oslice(n - 32, blk[n], n == 32, 4 if n in (33, 34, 35, 36) else 0)
        S.endslot(n)
    stamp(A, 4)
    S.read_o(0, True, True)
    for n in range(48, 64):
        S.oslice(n - 48, blk[n], False)
        if n < 63:
            S.endslot(n)
    stamp(A, 5)
    S.store_partial()
    stamp(A, 6)
    stamps_out(A)
    A("s_endpgm")
    S = G1 = Stream()
    A = S.A
    pre_x(S, lambda: issue_w(S, -1))
    for n in range(16):
        issue_w(S, n)
        S.endslot(n)
    stamp(A, 2)
    for n in range(16, 32):
        if n == 24: stamp(A, 8, True)
        if n == 25: stamp(A, 12, True)
        if n >= 17:
            S.dma_kv_b(n - 14, 0, n + 2)
            S.dma_kv_b(n - 14, 1, n + 2)
        issue_w(S, n)
        if n == 24: stamp(A, 9, True)
        S.qslice(n - 16, blk[n])
        if n == 24: stamp(A, 10, True)
        S.endslot(n, n != 24)
        if n == 24:
            stamp(A, 11, True)
            A("s_barrier")
    stamp(A, 3)
    S.qfinal()
    A(f"""
    s_lshl_b32 {sKU}, {sHH}, 14
    s_add_u32 {sKUend}, {sKU}, {6*BLK}
    s_add_u32 {sKU}, {sKU}, {(16 % 3) * 2 * BLK}
    s_mov_b32 {sN}, 32
    """)
    l = A.lab("L_bg1r2")
    A(f"{l}:")
    S.attn()
    ring_adv(A, sKU, 2 * BLK, sKUend, 6 * BLK)
    sk = A.lab("L_sk")
    A(f"s_cmp_eq_u32 {sN}, 47\ns_cbranch_scc0 {sk}")
    S.onorm()
    S.write_o(0)
    A(f"{sk}:")
    A("s_waitcnt vmcnt(0) lgkmcnt(0)\ns_barrier")
    S.drained()
    S.loop_end(l, 48)
    stamp(A, 4)
    for n in range(48, 63):
        issue_w(S, n)
        S.endslot(n)
    stamp(A, 5)
    stamps_out(A)
    A("s_endpgm")
    return G0, G1


def prog_a():
    use = {}
    for st in range(32):
        use[st] = st & 15
    for st in range(32, 64):
        use[st] = st + 1
    order = [x for i in range(16) for x in (i, 16 + i)] + list(range(32, 64))
    reserved = {0: [(-1, 33)], 1: [(-1, 33)], 2: [(-1, 49)], 3: [(-1, 49)]}
    save = OPT["look"], OPT["maxiss"]
    OPT["look"], OPT["maxiss"] = 30, 6
    blk, iss = schedule_w(order, use, reserved, lambda s, st: not (16 < s < 32))
    OPT["look"], OPT["maxiss"] = save
    if OPT.get("verbose"):
        print("A sched", [(st, iss[st], blk[st]) for st in order], file=sys.stderr)
    by_slot = {}
    for st in order:
        by_slot.setdefault(iss[st], []).append(st)

    res = []
    for G in range(2):
        S = Stream()
        A = S.A

        def issue_w(n):
            for st in by_slot.get(n, []):
                owner = (st >> 4) if st < 32 else 1
                if owner == G:
                    S.dma_w(st, blk[st], use[st])

        pre_x(S, lambda: issue_w(-1))
        A(f"""
        s_bitcmp1_b32 {sW_ID}, 1
        s_cselect_b64 vcc, -1, 0
        v_cndmask_b32 v{vKVo}, v{vKVo}, v{vKVo+2}, vcc
        v_cndmask_b32 v{vKVo+1}, v{vKVo+1}, v{vKVo+3}, vcc
        s_lshr_b32 {sKoff}, {sW_ID}, 1
        s_lshl_b32 {sKoff}, {sKoff}, 11
        s_lshl_b32 {sKI}, {sQH}, 13
        s_add_u32 {sKI}, {sKI}, {sKoff}
        s_add_u32 {sKIend}, {sKI}, {4*BLK}
        s_mov_b32 {sKU}, 0
        s_mov_b32 {sKUend}, {4*BLK}
        """)
        for n in range(16):
            issue_w(n)
            if n < 4:
                S.dma_kv_a(16 + n)
            S.qslice(n, blk[16 * G + n])
            S.endslot(n)
        stamp(A, 2)
        issue_w(16)
        S.qfinal()
        A(f"s_mov_b32 {sN}, 0")
        l = A.lab("L_ar")
        A(f"{l}:")
        cstamp(A, 8, 8)
        cstamp(A, 12, 9)
        sk = A.lab("L_sk")
        A(f"""
        s_sub_u32 {sT}, {sN}, 1
        s_cmp_lt_u32 {sT}, 12
        s_cbranch_scc0 {sk}
        """)
        S.dma_kv_a()
        A(f"{sk}:")
        S.attn()
        ring_adv(A, sKU, BLK, sKUend, 4 * BLK)
        cstamp(A, 9, 8)
        sk, sk2 = A.lab("L_sk"), A.lab("L_sk")
        A(f"""
        s_cmp_lt_u32 {sN}, 13
        s_cbranch_scc1 {sk}
        s_waitcnt vmcnt(0)
        {sk}:
        s_waitcnt vmcnt(4) lgkmcnt(0)
        s_barrier
        """)
        S.drained()
        S.loop_end(l, 16)
        stamp(A, 3)
        issue_w(32)
        S.onorm()
        S.write_o(G * 2 * BLK)
        S.endslot(32)
        if G == 0:
            for n in range(33, 65):
                if n == 33:
                    S.read_o(0, False, True)
                if n == 49:
                    stamp(A, 4)
                    S.read_o(2 * BLK, True, True)
                S.oslice((n - 33) & 15, blk[n - 1], n == 33)
                if n < 64:
                    S.endslot(n)
            stamp(A, 5)
            S.store_partial()
            stamp(A, 6)
        else:
            for n in range(33, 64):
                issue_w(n)
                S.endslot(n)
            stamp(A, 5)
        stamps_out(A)
        A("s_endpgm")
        res.append(S)
    return res


def reduce_kernel(A):
    A(f"""
    s_cmp_ge_u32 s2, 512
    s_cbranch_scc1 L_exit2
    s_load_dwordx2 s[4:5], s[0:1], 96
    s_load_dwordx2 s[6:7], s[0:1], 80
    v_lshlrev_b32 v1, 4, v0
    s_lshr_b32 s16, s2, 4
    s_lshl_b32 s17, s16, 19
    s_and_b32 s18, s2, 15
    s_lshl_b32 s18, s18, 12
    s_add_u32 s17, s17, s18
    s_waitcnt lgkmcnt(0)
    s_mov_b32 s8, s4
    s_and_b32 s9, s5, 0xffff
    s_mov_b32 s10, 0x1000000
    s_mov_b32 s11, 0x20000
    s_mov_b32 s12, s6
    s_and_b32 s13, s7, 0xffff
    s_mov_b32 s14, 0x200000
    s_mov_b32 s15, 0x20000
    """)
    for j in range(8):
        A(f"buffer_load_dwordx4 {vr(8+4*j,4)}, v1, s[8:11], s17 offen")
        if j < 7:
            A("s_add_u32 s17, s17, 0x10000")
    A(f"""
    v_and_b32 v2, 31, v0
    v_bfe_u32 v3, v0, 5, 1
    v_bfe_u32 v4, v0, 6, 1
    v_bfe_u32 v5, v0, 7, 1
    v_lshlrev_b32 v2, 11, v2
    v_lshl_add_u32 v2, v3, 5, v2
    v_lshl_add_u32 v2, v4, 4, v2
    v_lshl_add_u32 v2, v5, 6, v2
    s_and_b32 s18, s16, 15
    s_lshl_b32 s18, s18, 17
    s_lshr_b32 s19, s16, 4
    s_lshl_b32 s19, s19, 10
    s_add_u32 s18, s18, s19
    s_bfe_u32 s19, s2, 0x10002
    s_lshl_b32 s19, s19, 16
    s_add_u32 s18, s18, s19
    s_bfe_u32 s19, s2, 0x10003
    s_lshl_b32 s19, s19, 9
    s_add_u32 s18, s18, s19
    s_and_b32 s19, s2, 3
    s_lshl_b32 s19, s19, 7
    s_add_u32 s18, s18, s19
    s_mov_b32 s20, 0xffff0000
    s_waitcnt vmcnt(7)
    """)
    for i in range(4):
        A(f"v_lshlrev_b32 v{40+2*i}, 16, v{8+i}")
        A(f"v_and_b32 v{41+2*i}, s20, v{8+i}")
    for j in range(1, 8):
        A(f"s_waitcnt vmcnt({7-j})")
        for i in range(4):
            A(f"v_lshlrev_b32 v48, 16, v{8+4*j+i}")
            A(f"v_and_b32 v49, s20, v{8+4*j+i}")
            A(f"v_add_f32 v{40+2*i}, v{40+2*i}, v48")
            A(f"v_add_f32 v{41+2*i}, v{41+2*i}, v49")
    for i in range(4):
        A(f"v_cvt_pk_bf16_f32 v{52+i}, v{40+2*i}, v{41+2*i}")
    A("buffer_store_dwordx4 v[52:55], v2, s[12:15], s18 offen")
    A("L_exit2:")
    A("s_endpgm")


def kd(name, vg, sg):
    return f""".amdhsa_kernel {name}
  .amdhsa_next_free_vgpr {vg}
  .amdhsa_next_free_sgpr {sg}
  .amdhsa_accum_offset {vg}
  .amdhsa_group_segment_fixed_size 0
  .amdhsa_kernarg_size 104
  .amdhsa_user_sgpr_count 2
  .amdhsa_user_sgpr_kernarg_segment_ptr 1
  .amdhsa_system_sgpr_workgroup_id_x 1
.end_amdhsa_kernel
"""


def build():
    out = HEADER
    out += f"; @launch kernel=attn_kernel grid=(256,1,1) block=(512,1,1) lds={LDS_BYTES}\n"
    out += "; @launch kernel=reduce_kernel grid=(512,1,1) block=(256,1,1) lds=0\n"
    out += '.amdgcn_target "amdgcn-amd-amdhsa--gfx950"\n.text\n'
    A = Asm()
    A.L.append(".globl attn_kernel\n.p2align 8\n.type attn_kernel,@function\nattn_kernel:")
    setup(A)
    A(f"""
    s_lshr_b32 {sT}, {sW_ID}, 2
    s_lshl_b32 {sT2}, s5, 1
    s_or_b32 {sT}, {sT}, {sT2}
    s_cmp_eq_u32 {sT}, 1
    s_cbranch_scc1 L_AG1
    s_cmp_eq_u32 {sT}, 2
    s_cbranch_scc1 L_BG0
    s_cmp_eq_u32 {sT}, 3
    s_cbranch_scc1 L_BG1
    """)
    a0, a1 = prog_a()
    b0, b1 = prog_b()
    for lab, S in (("L_AG0", a0), ("L_AG1", a1), ("L_BG0", b0), ("L_BG1", b1)):
        A(f"{lab}:")
        A.L += S.A.L
        for R in S.rare:
            A.L += R.L
    A("L_exit:")
    A("s_endpgm")
    A.L.append(".globl reduce_kernel\n.p2align 8\n.type reduce_kernel,@function\nreduce_kernel:")
    reduce_kernel(A)
    out += A.text()
    out += '.section .rodata,"a"\n.p2align 6\n' + kd("attn_kernel", 256, 102) + ".p2align 6\n" + kd("reduce_kernel", 56, 32)
    return out


if __name__ == "__main__":
    path = sys.argv[1]
    for kv in sys.argv[2:]:
        k, v = kv.split("=")
        if k in ("ts", "kv_nt", "w_nt", "verbose"):
            OPT[k] = v == "1"
        else:
            OPT[k] = v.replace("_", " ")
    open(path, "w").write(build())
```

```python
import sys, math, struct

NAME = "concat_heads__gqa_block_cached__mha_block_cached__near_ridge"
HEADER = open("cdna_kernels/" + NAME + ".s.ref").read().split("; Override")[0]


def f32bits(x):
    return struct.unpack("<I", struct.pack("<f", x))[0]


class Asm:
    nlab = 0

    def __init__(self):
        self.L = []

    def __call__(self, s):
        for line in s.strip("\n").split("\n"):
            t = line.strip()
            if t:
                self.L.append(t if t.endswith(":") else "  " + t)
                if t == "s_barrier" and OPT.get("trace"):
                    n = Asm.nlab = Asm.nlab + 1
                    self.L += ["  s_memrealtime s[56:57]", "  s_mov_b32 m0, s66", "  s_waitcnt lgkmcnt(0)", "  s_cmp_lt_u32 s66, 64",
                               f"  s_cbranch_scc0 L_tr{n}", "  v_writelane_b32 v30, s56, m0", f"  s_branch L_tr{n}b", f"L_tr{n}:",
                               "  v_writelane_b32 v31, s56, m0", f"L_tr{n}b:", "  s_add_u32 s66, s66, 1"]

    def lab(self, base="L"):
        Asm.nlab += 1
        return f"{base}_{Asm.nlab}"

    def text(self):
        return "\n".join(self.L) + "\n"


class DS:
    def __init__(self, A, pending=0):
        self.A = A
        self.n = pending
        self.done = 0

    def issue(self, text):
        if self.n - self.done >= 15:
            self.need(self.n - 15)
        self.A(text)
        self.n += 1
        return self.n - 1

    def need(self, idx):
        if idx < self.done:
            return
        self.A(f"s_waitcnt lgkmcnt({self.n - 1 - idx})")
        self.done = idx + 1


def vr(a, n):
    return f"v[{a}:{a+n-1}]"


BLK = 16384
LDS_BYTES = 163840

sW_ID = "s3"
sKV = "s[8:11]"
sWQ = "s[12:15]"
sX = "s[20:23]"
sWO = "s[24:27]"
sP = "s[28:31]"
sN = "s32"
sI4k = "s33"
sI8k = "s34"
sI64k = "s35"
sKU = "s36"
sKhd = "s37"
sKI = "s38"
sKoff = "s40"
sC = "s41"
sInvC = "s42"
sT = "s43"
sT2 = "s44"
sI = "s45"
sHH = "s46"
sQH = "s47"
sRotI = "s48"
sRot = "s49"
sKVl = "s39"
sKmax = "s50"
sKcur = "s36"
sPF = "s[60:63]"
sPFoff = "s64"
sKIend = "s51"
sKUend = "s52"
sT8 = "s53"
sTSb = "s[54:55]"
sTS = 56

vKVo = 4
vWo = 8
vPK, vPV, vPW, vPX, vPO, vL16 = 13, 14, 15, 16, 17, 18
vA = 20
vM, vThr, vL0, vL1, vT0, vT1, vT2, vT3 = 32, 33, 34, 35, 36, 37, 38, 39
vS = 40
vPp = 56
vACC = 64
vF0 = 128
vF1 = 160
vQ = 192
vOP = 224
vWF = 32
vXF = 128
vX = 224
vAK = 240
vAV = 248
vTch = 19
vLA = 252
vNM = 160
vOne = 176

OPT = dict(ts=False, kv_nt=True, w_nt=False, st=" sc1", sta=" sc1", look=8, maxiss=3, lead=12, kvstart=10, kv2=14, w1=16, w2=35, wper=2, estart=46, m1a=0, m1b=0, awo=31, adist=4, uq=False, fuse=True, uo=0, afirst=4, wopfit=1, akvstart=13, wopf=True, bshift=True, ashift=True, first=2, pf0=3, pfP=2, pfR=0, pfO=2, pfmax=32, codepf=True)


def stamp(A, idx, cyc=False):
    if not OPT["ts"]:
        return
    if OPT.get("clk"):
        if cyc:
            return
        A(f"s_memtime s[{sTS}:{sTS+1}]\ns_waitcnt lgkmcnt(0)\ns_mov_b32 s{84+8+idx}, s{sTS}")
    A(f"""
    {'s_memtime' if cyc else 's_memrealtime'} s[{sTS}:{sTS+1}]
    s_waitcnt lgkmcnt(0)
    s_mov_b32 s{84+idx}, s{sTS}
    """)


def cstamp(A, idx, n):
    if not OPT["ts"]:
        return
    l = A.lab("L_st")
    A(f"s_cmp_eq_u32 {sN}, {n}\ns_cbranch_scc0 {l}")
    stamp(A, idx, True)
    A(f"{l}:")


def stamps_out(A):
    if not OPT["ts"]:
        return
    if OPT.get("trace"):
        A(f"""
        s_lshl_b32 {sT}, s2, 3
        s_add_u32 {sT}, {sT}, {sW_ID}
        s_lshl_b32 {sT}, {sT}, 9
        s_add_u32 {sT}, {sT}, 0x8200000
        v_lshlrev_b32 v3, 2, v1
        v_add_u32 v3, {sT}, v3
        global_store_dword v3, v30, s[82:83]
        global_store_dword v3, v31, s[82:83] offset:256
        """)
    A("v_mov_b32 v3, 0")
    for i in range(16):
        A(f"v_mov_b32 v2, s{84+i}")
        A(f"global_store_dword v3, v2, {sTSb} offset:{i*4}")
    A("s_waitcnt vmcnt(0)")


def ring_adv(A, reg, step, end, span):
    A(f"""
    s_add_u32 {reg}, {reg}, {step}
    s_cmp_ge_u32 {reg}, {end}
    s_cselect_b32 {sT}, {span}, 0
    s_sub_u32 {reg}, {reg}, {sT}
    """)


class Stream:
    def __init__(self):
        self.A = Asm()
        self.out = []
        self.wmode = "q"
        self.rare = []
        self.par = 0
        self.D = DS(self.A)
        self.fid = {}

    def rec(self, n, deadline):
        self.out.append((n, deadline))

    def vm_for(self, slot):
        last = -1
        for i, (n, d) in enumerate(self.out):
            if d <= slot:
                last = i
        if last < 0:
            return None
        rest = self.out[last + 1:]
        self.out = rest
        return sum(n for n, _ in rest)

    def endslot(self, slot, barrier=True, drain=True):
        vm = self.vm_for(slot + 1)
        w = []
        if vm is not None:
            assert vm <= 63
            w.append(f"vmcnt({vm})")
        if drain:
            w.append("lgkmcnt(0)")
            self.D.done = self.D.n
        if w:
            self.A("s_waitcnt " + " ".join(w))
        if barrier:
            self.A("s_barrier")

    def drained(self):
        self.out = []

    def dma_x(self):
        A = self.A
        A(f"""
        s_lshl_b32 {sT}, {sW_ID}, 13
        s_and_b32 {sT2}, {sW_ID}, 1
        s_lshl_b32 {sT2}, {sT2}, 7
        v_xor_b32 v{vA+8}, {sT2}, v{vL16}
        s_lshl_b32 {sT2}, {sRot}, 6
        """)
        for j in range(8):
            A(f"v_xor_b32 v{vA+j}, {j*16}, v{vA+8}")
            A(f"v_add_u32 v{vA+j}, {sT2}, v{vA+j}")
            A(f"v_and_b32 v{vA+j}, 0x3ff, v{vA+j}")
        A(f"s_lshr_b32 {sT2}, {sW_ID}, 2\ns_lshl_b32 {sT2}, {sT2}, 14")
        for half in range(2):
            A(f"s_add_u32 m0, {sT}, {sT2}")
            A("s_nop 0")
            for p in range(4):
                j = 4 * half + p
                off = f" offset:{p*1024}" if p else ""
                A(f"buffer_load_dwordx4 v{vA+j}, {sX}, {sT} offen{off} lds")
            if half == 0:
                A(f"s_add_u32 {sT}, {sT}, 4096")
        self.rec(8, -1)

    def set_wmode(self, mode):
        A = self.A
        if self.wmode == mode:
            return
        if self.wmode == "q":
            A(f"""
            v_lshrrev_b32 v2, 9, v{vL16}
            v_lshlrev_b32 v2, 17, v2
            """)
            for p in range(4):
                A(f"v_xor_b32 v3, {p<<6}, v{vL16}")
                A(f"v_add_u32 v{vWo+p}, v3, v2")
            self.wmode = 0
        if self.wmode != mode:
            for p in range(4):
                A(f"v_xor_b32 v{vWo+p}, 0x20000, v{vWo+p}")
            self.wmode = mode

    def dma_w(self, stage, blk, deadline):
        nt = " nt" if OPT["w_nt"] else ""
        if stage < 32:
            assert self.wmode == "q"
            G, i = stage >> 4, stage & 15
            pre = (f"s_add_u32 {sT}, {sRotI}, {i*262144 + G*512}\n"
                   f"s_add_u32 m0, {sI4k}, {blk*BLK}\n"
                   f"s_and_b32 {sT}, {sT}, 0x3fffff\n")
            srd = sWQ
        else:
            ps, s = (stage - 32) >> 4, stage & 15
            keep, self.A = self.A, Asm()
            self.set_wmode(s >> 3)
            pre = "\n".join(self.A.L) + "\n"
            self.A = keep
            pre += (f"s_add_u32 m0, {sI4k}, {blk*BLK}\n"
                    f"s_add_u32 {sT}, {sI4k}, {(s&7)*16384 + ps*262144}\n")
            srd = sWO
        at = []
        for p in range(4):
            off = f" offset:{p*1024}" if p else ""
            at.append((pre if p == 0 else "") + f"buffer_load_dwordx4 v{vWo+p}, {srd}, {sT} offen{off}{nt} lds")
        self.rec(4, deadline)
        return at

    def dma_kv_b(self, beta, half, deadline):
        nt = " nt" if OPT["kv_nt"] else ""
        buf = (beta + 1) % 3

        def goff(tile):
            return (tile >> 4) * 2 * 131072 + (tile & 15) * 8192 + half * 4096
        m0 = f"s_add_u32 m0, {sKVl}, {buf*BLK + half*4096}\n"
        post = ""
        if beta == -1:
            pre = (f"s_cmp_eq_u32 {sQH}, 0\n"
                   f"s_cselect_b32 {sT}, {(goff(0) - 8192) & 0xffffffff:#x}, 0\n"
                   f"s_cselect_b64 exec, -1, 1\n"
                   f"s_add_u32 {sT}, {sT}, {sKhd}\n")
            post = "\ns_mov_b64 exec, -1"
        elif beta == 31:
            pre = (f"s_cmp_eq_u32 {sQH}, 0\n"
                   f"s_cselect_b32 {sT}, 0, {goff(31)}\n"
                   f"s_cselect_b64 exec, 1, -1\n"
                   f"s_add_u32 {sT}, {sT}, {sKhd}\n")
            post = "\ns_mov_b64 exec, -1"
        elif goff(beta + 1) - goff(beta) == 8192:
            pre = f"s_add_u32 {sT}, {sKhd}, {goff(beta)}\n"
        else:
            pre = (f"s_cmp_eq_u32 {sQH}, 0\n"
                   f"s_mov_b32 {sT}, {goff(beta)}\n"
                   f"s_cselect_b32 {sT}, {goff(beta + 1) - 8192}, {sT}\n"
                   f"s_add_u32 {sT}, {sT}, {sKhd}\n")
        at = []
        for p in range(4):
            off = f" offset:{p*1024}" if p else ""
            at.append((m0 + pre if p == 0 else "") + f"buffer_load_dwordx4 v{vKVo+p}, {sKV}, {sT} offen{off}{nt} lds")
        if post:
            at = ["\n".join(at) + post]
        self.rec(4, deadline)
        return at

    def dma_kv_a_part(self, part, first=False):
        A = self.A
        nt = " nt" if OPT["kv_nt"] else ""
        if part == 0:
            A(f"s_mov_b32 m0, {sKI}")
            if first:
                A(f"s_cmp_eq_u32 {sQH}, 0\ns_cselect_b64 exec, -1, 1\ns_cselect_b32 {sT2}, 8192, 0")
            A(f"s_min_u32 {sKcur}, {sKoff}, {sKmax}")
        off = f" offset:{part*1024}" if part else ""
        A(f"buffer_load_dwordx4 v{vKVo+part}, {sKV}, {sKcur} offen{off}{nt} lds")
        if part == 3:
            if first:
                A(f"s_mov_b64 exec, -1\ns_add_u32 {sKoff}, {sKoff}, {sT2}")
            else:
                A(f"s_add_u32 {sKoff}, {sKoff}, 8192")
            ring_adv(A, sKI, BLK, sKIend, 6 * BLK)

    def dma_kv_a(self, deadline, first=False):
        for p in range(4):
            self.dma_kv_a_part(p, first)
        self.rec(4, deadline)

    def pf_round(self, rec=True):
        A = self.A
        A(f"buffer_load_dword v12, v{vTch}, {sPF}, {sPFoff} offen")
        A(f"s_add_u32 {sPFoff}, {sPFoff}, 4096")
        if rec:
            self.rec(1, 1000)

    def emit(self, atoms):
        for a in atoms:
            self.A(a)

    def read_x(self):
        A = self.A
        a = vA
        for s in range(1, 8):
            A(f"v_xor_b32 v{a+s}, {32*s}, v{vPX}")
        D = self.D
        for s in range(32):
            ad = vPX if (s & 7) == 0 else a + (s & 7)
            D.issue(f"ds_read_b128 {vr(vXF+4*s,4)}, v{ad} offset:{(s>>3)*256}")

    def wslice(self, kind, i, blk, nxt, first, dma=()):
        A = self.A
        a = vA
        pat = vPW if kind == "q" else vPO

        def addr(base, b):
            A(f"v_add_u32 v{base}, {b*BLK}, v{pat}")
            for m in range(1, 4):
                A(f"v_xor_b32 v{base+m}, {64*m}, v{base}")

        def rd(base, h, m, u):
            off = (16 * h + 4 * u) * 512 if kind == "q" else h * 256 + u * 4096
            return f"ds_read_b64_tr_b16 {vr(vWF+16*h+4*m+2*u,2)}, v{base+m} offset:{off}"

        def mf(h, m):
            if kind == "q":
                acc, b = vACC + 16 * m, vXF + 4 * (2 * i + h)
                c0 = first and h == 0
            else:
                acc, b = vACC + 16 * (4 * h + m), vQ + 4 * i
                c0 = first
            c = "0" if c0 else vr(acc, 16)
            return f"v_mfma_f32_32x32x16_bf16 {vr(acc,16)}, {vr(vWF+16*h+4*m,4)}, {vr(b,4)}, {c}"

        dma = list(dma)
        per = (len(dma) + 7) // 8
        D = self.D
        if nxt is not None:
            addr(a, nxt)
        for h in range(2):
            for m in range(4):
                if blk is not None:
                    D.need(self.fid[(h, m)])
                    A(mf(h, m))
                if nxt is not None:
                    D.issue(rd(a, h, m, 0))
                    self.fid[(h, m)] = D.issue(rd(a, h, m, 1))
                self.emit(dma[:per]); dma = dma[per:]
        self.emit(dma)

    def qfinal(self):
        A = self.A
        A("s_nop 7\ns_nop 7")
        for i in range(32):
            A(f"v_mul_f32 v{vACC+2*i}, {sC}, v{vACC+2*i}")
            A(f"v_mul_f32 v{vACC+2*i+1}, {sC}, v{vACC+2*i+1}")
            A(f"v_cvt_pk_bf16_f32 v{vQ+i}, v{vACC+2*i}, v{vACC+2*i+1}")

    def max_atoms(self):
        at = [f"v_max3_f32 v{vT0}, v{vS}, v{vS+1}, v{vS+2}", f"v_max3_f32 v{vT1}, v{vS+3}, v{vS+4}, v{vS+5}"]
        for k, i in enumerate(range(6, 14, 2)):
            t = vT0 if k % 2 == 0 else vT1
            at.append(f"v_max3_f32 v{t}, v{t}, v{vS+i}, v{vS+i+1}")
        at += [f"v_max3_f32 v{vT0}, v{vT0}, v{vS+14}, v{vS+15}", f"v_max_f32 v{vT0}, v{vT0}, v{vT1}"]
        return at

    def qk_mfma(self, s, c0):
        c = c0 if s == 0 else vr(vS, 16)
        return f"v_mfma_f32_32x32x16_bf16 {vr(vS,16)}, {vr(vF0+4*s,4)}, {vr(vQ+4*s,4)}, {c}"

    def pv_mfma(self, k):
        j, m = k >> 2, k & 3
        return f"v_mfma_f32_32x32x16_bf16 {vr(vACC+16*m,16)}, {vr(vF0+4*k,4)}, {vr(vPp+4*j,4)}, {vr(vACC+16*m,16)}"

    def attn_pro(self, buf, base, shifted=False):
        A = self.A
        A(f"v_add_u32 v{vAK}, {base}, v{vPK}")
        A(f"v_add_u32 v{vAV}, {base}, v{vPV}")
        for s in range(1, 8):
            A(f"v_xor_b32 v{vAK+s}, {32*s}, v{vAK}")
        D = self.D
        kid = [D.issue(f"ds_read_b128 {vr(vF0+4*s,4)}, v{vAK+s} offset:{buf*BLK}") for s in range(8)]
        for m in range(1, 4):
            A(f"v_xor_b32 v{vAV+m}, {64*m}, v{vAV}")
        fill = [f"v_mov_b32 v{vACC+i}, 0" for i in range(64)] + [f"v_mov_b32 v{vLA+i}, 0" for i in range(4)]
        fill += [f"v_lshrrev_b32 v{vT0}, 2, v1", f"v_lshrrev_b32 v{vT1}, 4, v1", f"v_xor_b32 v{vT0}, v{vT0}, v{vT1}",
                 f"v_and_b32 v{vT0}, 1, v{vT0}", f"v_and_b32 v{vT1}, 3, v1", f"v_or_b32 v{vT0}, v{vT0}, v{vT1}",
                 f"v_cmp_eq_u32 vcc, 0, v{vT0}", f"v_mov_b32 v{vT1}, 0x3f803f80", "s_nop 0"]
        fill += [f"v_cndmask_b32 v{vOne+i}, 0, v{vT1}, vcc" for i in range(4)]
        for s in range(8):
            D.need(kid[s])
            A(self.qk_mfma(s, "0"))
            self.emit(fill[:8]); fill = fill[8:]
        self.emit(fill)
        self.emit(self.max_atoms())
        A(f"""
        v_mov_b32 v{vT1}, v{vT0}
        s_nop 1
        v_permlane32_swap_b32 v{vT0}, v{vT1}
        s_nop 1
        v_max_f32 v{vT0}, v{vT0}, v{vT1}
        """)
        if shifted:
            for i in range(16):
                A(f"v_sub_f32 v{vS+i}, v{vS+i}, v{vT0}")
                A(f"v_sub_f32 v{vNM+i}, 0, v{vT0}")
            for i in range(8):
                A(f"v_mov_b32 v{vPp+i}, 0")
            return
        for i in range(16):
            A(f"v_sub_f32 v{vX+i}, v{vS+i}, v{vT0}")
            A(f"v_sub_f32 v{vNM+i}, 0, v{vT0}")
        for i in range(16):
            A(f"v_exp_f32 v{vX+i}, v{vX+i}")

    def attn_step(self, buf, last=False, extra={}):
        A = self.A
        D = self.D
        o = buf * BLK

        def vrd(k):
            j, m = k >> 2, k & 3
            D.issue(f"ds_read_b64_tr_b16 {vr(vF0+4*k,2)}, v{vAV+m} offset:{o+8192+4096*j}")
            return D.issue(f"ds_read_b64_tr_b16 {vr(vF0+4*k+2,2)}, v{vAV+m} offset:{o+8192+4096*j+2048}")
        cvt = [f"v_cvt_pk_bf16_f32 v{vPp+i}, v{vX+2*i}, v{vX+2*i+1}" for i in range(8)]
        lsum = [f"v_mfma_f32_16x16x32_bf16 {vr(vLA,4)}, {vr(vOne,4)}, {vr(vPp+4*j,4)}, {vr(vLA,4)}" for j in range(2)]
        vid = {}
        if last:
            for k in range(8):
                vid[k] = vrd(k)
            self.emit(cvt)
            A("s_nop 1")
            self.emit(lsum)
            for k in range(8):
                D.need(vid[k])
                A(self.pv_mfma(k))
            return
        kid = [D.issue(f"ds_read_b128 {vr(vF0+4*s,4)}, v{vAK+s} offset:{o}") for s in range(8)]
        self.emit(cvt)
        for s in range(8):
            D.need(kid[s])
            A(self.qk_mfma(s, vr(vNM, 16)))
            mark = len(A.L)
            vid[s] = vrd(s)
            if s in extra: extra[s]()
        self.emit(lsum)
        lr, lb = A.lab("L_rare"), A.lab("L_back")
        mx = self.max_atoms()
        ex = [f"v_exp_f32 v{vX+i}, v{vS+i}" for i in range(16)]
        fill = [[], [], mx[:5], mx[5:] + [f"v_cmp_lt_f32 vcc, {sT8}, v{vT0}", f"s_cbranch_vccnz {lr}"] + ex[:1],
                ex[1:4], ex[4:7], ex[7:10], ex[10:16]]
        for k in range(8):
            D.need(vid[k])
            A(self.pv_mfma(k))
            if k == 2:
                dist = len(A.L) - mark
                if dist < 12:
                    A(f"s_nop {12 - dist - 1}")
            self.emit(fill[k])
        A(f"{lb}:")
        R = Asm()
        R(f"{lr}:")
        R("s_waitcnt lgkmcnt(0)")
        for k in range(4, 8):
            R(self.pv_mfma(k))
        R(f"""
        v_mov_b32 v{vT1}, v{vT0}
        s_nop 1
        v_permlane32_swap_b32 v{vT0}, v{vT1}
        s_nop 1
        v_max3_f32 v{vT0}, v{vT0}, v{vT1}, 0
        v_sub_f32 v{vT1}, 0, v{vT0}
        v_exp_f32 v{vT1}, v{vT1}
        """)
        for i in range(16):
            R(f"v_sub_f32 v{vX+i}, v{vS+i}, v{vT0}")
            R(f"v_sub_f32 v{vNM+i}, v{vNM+i}, v{vT0}")
        for i in range(16):
            R(f"v_exp_f32 v{vX+i}, v{vX+i}")
        R(f"v_mul_f32 v{vLA}, v{vLA}, v{vT1}")
        for i in range(64):
            R(f"v_mul_f32 v{vACC+i}, v{vACC+i}, v{vT1}")
        R(f"s_branch {lb}")
        self.rare.append(R)

    def attn_step2(self, buf, last=False, extra={}):
        A = self.A
        D = self.D
        o = buf * BLK

        def vrd(k):
            j, m = k >> 2, k & 3
            D.issue(f"ds_read_b64_tr_b16 {vr(vF0+4*k,2)}, v{vAV+m} offset:{o+8192+4096*j}")
            return D.issue(f"ds_read_b64_tr_b16 {vr(vF0+4*k+2,2)}, v{vAV+m} offset:{o+8192+4096*j+2048}")

        def krd(k, DD=None):
            t = f"ds_read_b128 {vr(vF0+4*k,4)}, v{vAK+k} offset:{o}"
            return D.issue(t)
        cvt = [f"v_cvt_pk_bf16_f32 v{vPp+i}, v{vX+2*i}, v{vX+2*i+1}" for i in range(8)]
        lsum = [f"v_mfma_f32_16x16x32_bf16 {vr(vLA,4)}, {vr(vOne,4)}, {vr(vPp+4*j,4)}, {vr(vLA,4)}" for j in range(2)]
        lr, lb = A.lab("L_rare"), A.lab("L_back")
        mx = self.max_atoms()
        ex = [f"v_exp_f32 v{vX+i}, v{vS+i}" for i in range(16)]
        fill = [mx[:4], mx[4:] + [f"v_cmp_lt_f32 vcc, {sT8}, v{vT0}", f"s_cbranch_vccnz {lr}"],
                ex[0:2], ex[2:5], ex[5:7], ex[7:10], ex[10:12], ex[12:14]]
        ex_rest = ex[14:]
        nid = {}
        R = Asm()
        R(f"{lr}:")
        R("s_waitcnt lgkmcnt(0)")
        A("s_nop 5")
        for k in range(8):
            A(self.pv_mfma(k))
            mark = len(A.L)
            nid[k] = vrd(k) if last else krd(k)
            if k >= 2:
                R(self.pv_mfma(k))
                R.L += [l for l in A.L[mark:] if "ds_read" in l]
            self.emit(fill[k])
        self.emit(ex_rest)
        A(f"{lb}:")
        R(f"""
        v_mov_b32 v{vT1}, v{vT0}
        s_nop 1
        v_permlane32_swap_b32 v{vT0}, v{vT1}
        s_nop 1
        v_max3_f32 v{vT0}, v{vT0}, v{vT1}, 0
        v_sub_f32 v{vT1}, 0, v{vT0}
        v_exp_f32 v{vT1}, v{vT1}
        """)
        for i in range(16):
            R(f"v_sub_f32 v{vX+i}, v{vS+i}, v{vT0}")
            R(f"v_sub_f32 v{vNM+i}, v{vNM+i}, v{vT0}")
        for i in range(16):
            R(f"v_exp_f32 v{vX+i}, v{vX+i}")
        R(f"v_mul_f32 v{vLA}, v{vLA}, v{vT1}")
        for i in range(64):
            R(f"v_mul_f32 v{vACC+i}, v{vACC+i}, v{vT1}")
        R("s_waitcnt lgkmcnt(0)")
        R(f"s_branch {lb}")
        self.rare.append(R)
        if last:
            self.emit(cvt)
            A("s_nop 1")
            self.emit(lsum)
            for k in range(8):
                D.need(nid[k])
                A(self.pv_mfma(k))
            return
        fill2 = [cvt[0:3], cvt[3:6], cvt[6:8], [], lsum[:1], [], lsum[1:], []]
        for s_ in range(8):
            D.need(nid[s_])
            A(self.qk_mfma(s_, vr(vNM, 16)))
            vrd(s_)
            self.emit(fill2[s_])
            if s_ in extra: extra[s_]()

    def onorm(self):
        A = self.A
        A(f"""
        s_nop 7
        v_rcp_f32 v{vT0}, v{vLA}
        s_nop 7
        """)
        for i in range(32):
            A(f"v_mul_f32 v{vACC+2*i}, v{vACC+2*i}, v{vT0}")
            A(f"v_mul_f32 v{vACC+2*i+1}, v{vACC+2*i+1}, v{vT0}")
            A(f"v_cvt_pk_bf16_f32 v{vQ+i}, v{vACC+2*i}, v{vACC+2*i+1}")

    def write_o(self, bb):
        A = self.A
        A(f"v_add_u32 v{vA+8}, {sKVl}, v{vL16}")
        for i in range(8):
            last = self.D.issue(f"ds_write_b128 v{vA+8}, {vr(vQ+4*i,4)} offset:{bb*BLK+1024*i}")
        return last

    def read_o(self, bb, own, partner):
        A = self.A
        A(f"""
        v_add_u32 v{vA+8}, {sKVl}, v{vL16}
        s_cmp_eq_u32 {sHH}, 0
        s_cselect_b32 {sT}, {3*BLK}, 0
        s_lshl_b32 {sT2}, {sQH}, 13
        s_add_u32 {sT}, {sT}, {sT2}
        v_add_u32 v{vA+9}, {sT}, v{vL16}
        """)
        D = self.D
        ids = []
        if own:
            for i in range(8):
                ids.append(D.issue(f"ds_read_b128 {vr(vQ+4*i,4)}, v{vA+8} offset:{bb*BLK+1024*i}"))
        if partner:
            for i in range(8):
                ids.append(D.issue(f"ds_read_b128 {vr(vOP+4*i,4)}, v{vA+9} offset:{bb*BLK+1024*i}"))
        return ids

    def store_partial(self, pol):
        A = self.A
        A(f"""
        s_nop 7
        s_nop 7
        s_lshl_b32 {sT}, {sI}, 14
        """)
        for nb in range(8):
            for half in range(2):
                k = 2 * nb + half
                d = vWF + 4 * (k & 7)
                for i in range(4):
                    r = vACC + 16 * nb + 8 * half + 2 * i
                    A(f"v_cvt_pk_bf16_f32 v{d+i}, v{r}, v{r+1}")
                if k in (4, 8, 12):
                    A(f"s_add_u32 {sT}, {sT}, 4096")
                off = f" offset:{(k&3)*1024}" if k & 3 else ""
                A(f"buffer_store_dwordx4 {vr(d,4)}, v{vL16}, {sP}, {sT} offen{off}{pol}")
        if not OPT["fuse"] or OPT["ts"]:
            A("s_waitcnt vmcnt(0)")

    def loop_end(self, lab, end):
        self.A(f"""
        s_add_u32 {sN}, {sN}, 1
        s_cmp_lt_u32 {sN}, {end}
        s_cbranch_scc1 {lab}
        """)


def schedule_w(order, rd, rel, earliest, reserved, can_issue, cap):
    res = {b: list(reserved.get(b, [])) for b in range(10)}
    blk, iss = {}, {}
    cnt = {}
    cur = -2
    for st in order:
        s = max(cur, earliest[st])
        while True:
            assert s < rd[st], (st, s, rd[st])
            ok = None
            if can_issue(s, st) and cnt.get(s, 0) < cap(s):
                for b in range(9, -1, -1):
                    if all(rel[st] < a or s > e for a, e in res[b]):
                        ok = b
                        break
            if ok is not None:
                break
            s += 1
        res[ok].append((s, rel[st]))
        blk[st], iss[st] = ok, s
        cnt[s] = cnt.get(s, 0) + 1
        cur = s
    return blk, iss


def setup(A):
    A(f"""
    s_cmp_ge_u32 s2, 256
    s_cbranch_scc1 L_exit
    s_load_dwordx8 s[60:67], s[0:1], 0
    s_load_dwordx2 s[68:69], s[0:1], 32
    s_load_dwordx8 s[72:79], s[0:1], 40
    s_load_dwordx2 s[80:81], s[0:1], 72
    s_load_dwordx2 s[82:83], s[0:1], 96
    v_lshrrev_b32 v1, 6, v0
    s_and_b32 s4, s2, 7
    v_readfirstlane_b32 {sW_ID}, v1
    s_bfe_u32 s5, s2, 0x10003
    s_lshr_b32 s6, s2, 4
    v_and_b32 v1, 63, v0
    v_lshlrev_b32 v{vL16}, 4, v1
    s_and_b32 {sI}, {sW_ID}, 3
    s_bfe_u32 {sHH}, {sW_ID}, 0x10001
    s_and_b32 {sQH}, {sW_ID}, 1
    s_lshl_b32 {sI4k}, {sI}, 12
    s_lshl_b32 {sI8k}, {sI}, 13
    s_lshl_b32 {sI64k}, {sI}, 16
    s_lshl_b32 {sKhd}, {sHH}, 17
    s_xor_b32 {sT}, {sQH}, 1
    s_lshl_b32 {sT}, {sT}, 13
    s_add_u32 {sKhd}, {sKhd}, {sT}
    s_mov_b32 {sRot}, s6
    s_mul_i32 {sKVl}, {sHH}, {3*BLK}
    s_lshl_b32 {sT}, {sQH}, 13
    s_add_u32 {sKVl}, {sKVl}, {sT}
    s_lshl_b32 {sRotI}, s6, 18
    s_add_u32 {sRotI}, {sRotI}, {sI64k}
    s_mov_b32 {sC}, {f32bits(math.log2(math.e) / math.sqrt(128.0)):#x}
    s_mov_b32 {sInvC}, {f32bits(math.sqrt(128.0) / math.log2(math.e)):#x}
    s_mov_b32 {sT8}, 0x41000000
    s_waitcnt lgkmcnt(0)
    s_cmp_eq_u32 s5, 0
    s_cselect_b32 s60, s60, s72
    s_cselect_b32 s61, s61, s73
    s_cselect_b32 s62, s62, s74
    s_cselect_b32 s63, s63, s75
    s_cselect_b32 s64, s64, s76
    s_cselect_b32 s65, s65, s77
    s_cselect_b32 s66, s66, s78
    s_cselect_b32 s67, s67, s79
    s_cselect_b32 s68, s68, s80
    s_cselect_b32 s69, s69, s81
    s_cselect_b32 s7, 17, 19
    s_lshl_b32 s10, 1, s7
    s_lshl_b32 {sT}, s6, 16
    s_add_u32 s20, s60, {sT}
    s_addc_u32 s21, s61, 0
    s_and_b32 s21, s21, 0xffff
    s_mov_b32 s22, 0x10000
    s_mov_b32 s23, 0x20000
    s_lshl_b32 {sT}, s4, 10
    s_add_u32 s12, s66, {sT}
    s_addc_u32 s13, s67, 0
    s_and_b32 s13, s13, 0xffff
    s_sub_u32 s14, 0x400000, {sT}
    s_mov_b32 s15, 0x20000
    s_lshl_b32 {sT}, s6, 3
    s_add_u32 {sT}, {sT}, s4
    s_lshl_b32 {sT}, {sT}, s7
    s_bitcmp1_b32 {sW_ID}, 0
    s_cselect_b32 s8, s64, s62
    s_cselect_b32 s9, s65, s63
    s_add_u32 s8, s8, {sT}
    s_addc_u32 s9, s9, 0
    s_and_b32 s9, s9, 0xffff
    s_mov_b32 s11, 0x20000
    s_lshl_b32 {sT}, s4, 19
    s_add_u32 s24, s68, {sT}
    s_addc_u32 s25, s69, 0
    s_and_b32 s25, s25, 0xffff
    s_mov_b32 s26, 0x80000
    s_mov_b32 s27, 0x20000
    s_lshl_b32 {sT}, s5, 4
    s_add_u32 {sT}, {sT}, s6
    s_lshl_b32 {sT}, {sT}, 3
    s_add_u32 {sT}, {sT}, s4
    s_lshl_b32 {sT}, {sT}, 16
    s_add_u32 s28, s82, {sT}
    s_addc_u32 s29, s83, 0
    s_and_b32 s29, s29, 0xffff
    s_mov_b32 s30, 0x10000
    s_mov_b32 s31, 0x20000
    """)
    if OPT["ts"]:
        A(f"""
        s_lshl_b32 {sT}, s2, 3
        s_add_u32 {sT}, {sT}, {sW_ID}
        s_lshl_b32 {sT}, {sT}, 6
        s_add_u32 {sT}, {sT}, 0x8000000
        s_add_u32 s54, s82, {sT}
        s_addc_u32 s55, s83, 0
        """)
        for i in range(16):
            A(f"s_mov_b32 s{84+i}, 0")
        A("s_mov_b32 s66, 0\nv_mov_b32 v30, 0\nv_mov_b32 v31, 0")


def patterns(A):
    A(f"""
    v_lshrrev_b32 v2, 5, v1
    v_and_b32 v3, 31, v1
    """)
    for p in range(4):
        A(f"""
        v_add_u32 v29, {(2*p)&3}, v2
        v_lshlrev_b32 v29, 2, v29
        v_xor_b32 v29, v29, v3
        v_lshlrev_b32 v29, 4, v29
        v_lshl_add_u32 v29, v2, 13, v29
        v_add_u32 v{vWo+p}, {2*p*8192 - p*1024}, v29
        """)


def patterns2(A):
    A(f"""
    v_lshrrev_b32 v2, 4, v1
    v_and_b32 v3, 15, v1
    v_lshlrev_b32 v19, 2, v2
    s_bitcmp1_b32 {sW_ID}, 0
    s_cselect_b64 vcc, -1, 0
    """)
    for p in range(4):
        A(f"""
        v_add_u32 v29, {4*p}, v2
        v_cndmask_b32 v29, v29, v19, vcc
        v_xor_b32 v29, v29, v3
        v_lshlrev_b32 v29, 4, v29
        v_lshl_add_u32 v{vKVo+p}, v2, 8, v29
        """)
    A(f"""
    v_and_b32 v2, 31, v1
    v_lshrrev_b32 v3, 5, v1
    v_and_b32 v19, 15, v1
    v_xor_b32 v19, v19, v3
    v_lshlrev_b32 v19, 4, v19
    v_lshl_add_u32 v{vPK}, v2, 8, v19
    v_lshl_add_u32 v19, v2, 10, v19
    s_mul_i32 {sT}, {sQH}, {3*BLK}
    v_add_u32 v{vPX}, {sT}, v19
    """)
    A(f"""
    v_bfe_u32 v32, v1, 4, 1
    v_bfe_u32 v33, v1, 2, 2
    v_and_b32 v34, 1, v1
    v_bfe_u32 v35, v1, 1, 1
    v_lshlrev_b32 v36, 1, v34
    v_or_b32 v36, v36, v35
    v_lshl_add_u32 v36, v32, 2, v36
    v_lshlrev_b32 v36, 3, v36
    v_lshl_add_u32 v36, v33, 6, v36
    v_lshlrev_b32 v37, 2, v3
    v_add_u32 v37, v37, v33
    v_lshl_add_u32 v{vPV}, v37, 8, v36
    v_lshlrev_b32 v37, 3, v3
    v_add_u32 v37, v37, v33
    v_lshl_add_u32 v38, v37, 9, v36
    s_lshl_b32 {sT}, {sHH}, 8
    v_add_u32 v{vPW}, {sT}, v38
    v_lshlrev_b32 v36, 2, v34
    v_lshl_add_u32 v36, v32, 1, v36
    v_add_u32 v36, v36, v35
    v_lshlrev_b32 v36, 3, v36
    v_lshl_add_u32 v36, v33, 6, v36
    v_lshl_add_u32 v38, v37, 10, v36
    s_lshl_b32 {sT}, {sHH}, 9
    v_add_u32 v{vPO}, {sT}, v38
    """)


def pre_x(S, issue_pre, preread, fine=False):
    A = S.A
    stamp(A, 0)
    if fine: stamp(A, 10, True)
    S.dma_x()
    patterns(A)
    issue_pre(-2)
    patterns2(A)
    if fine: stamp(A, 11, True)
    S.endslot(-2, barrier=False)
    if fine: stamp(A, 15, True)
    A("s_barrier")
    stamp(A, 7)
    issue_pre(-1)
    S.read_x()
    if preread is not None:
        S.wslice("q", 0, None, preread, False)
    S.endslot(-1)
    stamp(A, 1)


def attn_loop(S, first_buf, n0, body_pre=None, tail=None, st=None, shifted=False):
    A = S.A
    A(f"s_mov_b32 {sN}, 0")
    l = A.lab("L_attn")
    A(f"{l}:")
    for k in range(3):
        if st and k == 0:
            cstamp(A, 8, 2); cstamp(A, 13, 0); cstamp(A, 14, 4)
        if st and k == 1:
            cstamp(A, 12, 2)
        (S.attn_step2 if shifted else S.attn_step)((first_buf + k) % 3, extra=body_pre(k) if body_pre else {})
        if st and k == 0:
            cstamp(A, 9, 2)
        tail(k)
        S.D.done = S.D.n
    S.drained()
    S.loop_end(l, 5)


def prog_b():
    w1, w2 = int(OPT["w1"]), int(OPT["w2"])
    per = int(OPT["wper"])
    look = int(OPT["look"])
    uq, uo = OPT["uq"], int(OPT["uo"])
    use, rd, rel, early = {}, {}, {}, {}
    for st in range(64):
        k = st & 15
        if st < 16:
            use[st] = st
        elif st < 32:
            use[st] = k if uq else w1 + k // per
        elif st < 48 - uo:
            use[st] = w2 + k // per
        else:
            use[st] = 49 + st - (48 - uo)
    E0 = 49 + uo
    NS = 65 + uo
    for st in range(64):
        k = st & 15
        win = (16 <= st < 32 and not uq) or (32 <= st < 48 - uo)
        rd[st] = use[st] - 1 if (k == 0 or not win) else use[st - 1]
        rel[st] = rd[st] if win else use[st]
        early[st] = rd[st] - (2 if win else look)
        if st >= 48 - uo:
            early[st] = max(early[st], int(OPT["estart"]))
    assert use[31] <= 31 and w2 >= 34
    order = ([x for i in range(16) for x in (i, 16 + i)] if uq else list(range(32))) + list(range(32, 64))
    kv2 = int(OPT["kv2"])
    kvs = int(OPT["kvstart"])
    reserved = {0: [(-2, -1), (kvs, E0)], 3: [(-2, -1), (kvs, E0)], 1: [(-2, -1), (kvs + 2, 47)], 4: [(-2, -1), (kvs + 2, 47)],
                2: [(kv2, 48)], 5: [(kv2, 48)], 8: [(32, 33)], 9: [(32, 33)]}
    blk, iss = schedule_w(order, rd, rel, early, reserved, lambda s, st: True,
                          lambda s: int(OPT["first"]) * (2 if uq else 1) if s < 0 else int(OPT["maxiss"]) + (1 if uq else 0))
    by_slot, at_slot = {}, {}
    for st in order:
        by_slot.setdefault(iss[st], []).append(st)
        at_slot.setdefault(use[st], []).append(st)
    if OPT.get("verbose"):
        print("B sched", [(st, iss[st], rd[st], blk[st]) for st in range(64)], file=sys.stderr)
    MB = 8 * BLK

    def w_atoms(S, n, G=None):
        at = []
        for st in by_slot.get(n, []):
            if uq and st < 32 and (st >> 4) != G:
                continue
            at += S.dma_w(st, blk[st], rd[st])
        return at

    def kv_atoms(S, n):
        beta = n - 15
        if beta < 2 or beta > 31:
            return []
        return S.dma_kv_b(beta, 0, 17 + beta) + S.dma_kv_b(beta, 1, 17 + beta)

    def slices(S, n, lo, hi, kind, at):
        sts = [st for st in at_slot.get(n, []) if lo <= st < hi]
        pre = [st for st in range(lo, hi) if rd[st] == n and not (st > lo and use[st - 1] == n)]
        if not sts and not pre:
            S.emit(at)
            return
        nparts = len(sts) + len(pre)
        chunk = (len(at) + nparts - 1) // nparts
        for st in sts:
            nxt = st + 1 if (st + 1 < hi and rd[st + 1] == n and ((st + 1) & 15 or True) and st + 1 not in pre) else None
            S.wslice(kind, st & 15, blk[st], blk[nxt] if nxt is not None else None, st in (0, 16, 32), at[:chunk])
            at = at[chunk:]
        for st in pre:
            S.wslice(kind, 0, None, blk[st], False, at[:chunk])
            at = at[chunk:]

    S = G0 = Stream()
    A = S.A
    tail = lambda k: S.A("s_waitcnt vmcnt(0) lgkmcnt(0)\ns_barrier")
    pre_x(S, lambda n: S.emit(w_atoms(S, n, 0)) if uq else None, blk[0])
    A(f"s_mul_i32 {sKU}, {sHH}, {3*BLK}")
    for n in range(16):
        at = w_atoms(S, n, 0) if uq else []
        if kvs <= n < kvs + 4:
            k = n - kvs
            at = at + S.dma_kv_b((k >> 1) - 1, k & 1, 16 + (k >> 1))
        if kv2 <= n < kv2 + 2:
            at = at + S.dma_kv_b(1, n - kv2, 18)
        if n == 8: stamp(A, 10, True)
        if n == 12: stamp(A, 11, True)
        slices(S, n, 0, 16, "q", at)
        S.endslot(n, drain=False)
    stamp(A, 2)
    S.qfinal()
    bs = OPT["bshift"]
    S.attn_pro(0, sKU, bs)
    S.endslot(16)
    attn_loop(S, 1, 17, tail=tail, st=True, shifted=bs)
    (S.attn_step2 if bs else S.attn_step)(1, last=True)
    S.onorm()
    A(f"""
    s_add_u32 {sT}, {sI8k}, {MB}
    v_add_u32 v{vA+8}, {sT}, v{vL16}
    v_xor_b32 v{vA+9}, 0x4000, v{vA+8}
    """)
    for i in range(8):
        S.D.issue(f"ds_write_b128 v{vA+8}, {vr(vQ+4*i,4)} offset:{1024*i}")
    S.endslot(32)
    stamp(A, 3)
    for n in range(33, NS):
        at = []
        must = None
        if n <= 48:
            at = w_atoms(S, n) + kv_atoms(S, n)
        if n == 33:
            for i in range(8):
                S.D.issue(f"ds_read_b128 {vr(vOP+4*i,4)}, v{vA+9} offset:{1024*i}")
        if n == 41: stamp(A, 15, True)
        if n == 49:
            stamp(A, 4)
        if n == E0:
            ids = S.read_o(0, True, True)
            S.D.need(ids[0])
            must = ids[-1]
        slices(S, n, 32, 64, "o", at)
        if must is not None:
            S.D.need(must)
        if n < NS - 1:
            S.endslot(n, drain=(n < 48))
    stamp(A, 5)
    S.store_partial(OPT['st'])
    stamp(A, 6)
    finish(A)
    S = G1 = Stream()
    A = S.A
    pre_x(S, lambda n: S.emit(w_atoms(S, n, 1)), blk[16] if uq else None)
    for n in range(32):
        if n == 16: stamp(A, 2)
        if n == 20: stamp(A, 8, True)
        if n == 21: stamp(A, 9, True)
        if n == 25: stamp(A, 10, True)
        if n == 28: stamp(A, 11, True)
        if n == 29: stamp(A, 12, True)
        at = w_atoms(S, n, 1) + kv_atoms(S, n)
        slices(S, n, 16, 32, "q", at)
        if n == use[31] + 1:
            S.qfinal()
        S.endslot(n, drain=not (uq and n < 16))
    S.emit(w_atoms(S, 32) + kv_atoms(S, 32))
    if use[31] == 31:
        S.qfinal()
    A(f"s_mul_i32 {sKU}, {sHH}, {3*BLK}")
    S.attn_pro(1, sKU, bs)
    S.endslot(32)
    stamp(A, 3)
    attn_loop(S, 2, 33, tail=tail, shifted=bs)
    (S.attn_step2 if bs else S.attn_step)(2, last=True)
    S.onorm()
    S.write_o(0)
    S.endslot(48)
    stamp(A, 4)
    for n in range(49, NS - 1):
        S.emit(w_atoms(S, n))
        S.endslot(n)
    stamp(A, 5)
    finish(A)
    return G0, G1


def prog_a():
    use = {st: (st & 15 if st < 32 else st + 1) for st in range(64)}
    rd = {st: use[st] - 1 for st in range(64)}
    order = [x for i in range(16) for x in (i, 16 + i)] + list(range(32, 64))
    ks = int(OPT['akvstart'])
    AD = int(OPT["adist"])
    pre_slots = [min(16, ks + j) for j in range(AD + 1)]
    def first_use(b):
        return pre_slots[b] if b <= AD else 17 + (b - 1 - AD)
    lastb = {(b + 1) % 6: 17 + b for b in range(-1, 16)}
    reserved = {b: [(first_use(b), lastb[b])] for b in range(6)}
    for b in (0, 1, 3, 4):
        reserved[b].append((-2, -1))
    reserved[0].append((33, 34)); reserved[3].append((33, 34)); reserved[1].append((33, 49)); reserved[4].append((33, 49))
    early = {st: -2 if st < 32 else int(OPT['awo']) for st in range(64)}
    blk, iss = schedule_w(order, rd, use, early, reserved, lambda s, st: not (16 < s < 31),
                          lambda s: int(OPT['afirst']) if s == -2 else 4)
    if OPT.get("verbose"):
        print("A sched", [(st, iss[st], blk[st]) for st in order], file=sys.stderr)
    by_slot = {}
    for st in order:
        by_slot.setdefault(iss[st], []).append(st)

    res = []
    for G in range(2):
        S = Stream()
        A = S.A

        def w_atoms(n):
            at = []
            for st in by_slot.get(n, []):
                owner = (st >> 4) if (st < 32 and not (n == -2 and m1tiles)) else 1
                if owner == G:
                    at += S.dma_w(st, blk[st], rd[st])
            return at

        def m1(n):
            S.emit(w_atoms(n))
            if n != -2 or G == 1:
                return
            A(f"""
            s_lshl_b32 {sT}, s6, 3
            s_add_u32 {sT}, {sT}, s4
            s_lshl_b32 {sT}, {sT}, 19
            s_bitcmp1_b32 {sW_ID}, 0
            s_cselect_b32 s60, s76, s74
            s_cselect_b32 s61, s77, s75
            s_add_u32 s60, s60, {sT}
            s_addc_u32 s61, s61, 0
            s_and_b32 s61, s61, 0xffff
            s_mov_b32 s62, 0x80000
            s_mov_b32 s63, 0x20000
            s_lshl_b32 {sPFoff}, {sHH}, 17
            v_lshlrev_b32 v29, 3, v{vL16}
            """)
            for t in m1tiles:
                A(f"s_add_u32 {sT}, {sPFoff}, {(t >> 4) * 262144 + (t & 15) * 8192}")
                A(f"buffer_load_dword v12, v29, {sPF}, {sT} offen")
                S.rec(1, 1000)
            A(f"s_add_u32 {sPFoff}, {sPFoff}, {(rt0 >> 4) * 262144 + (rt0 & 15) * 8192}")

        m1tiles = list(range(0, int(OPT["m1a"]))) + list(range(16, 16 + int(OPT["m1b"])))
        rt0 = 16 + int(OPT["m1b"])
        pre_x(S, m1, blk[16 * G], True)
        A(f"""
        s_lshl_b32 {sKoff}, {sHH}, 12
        s_add_u32 {sKmax}, {sKoff}, {15*8192}
        s_lshl_b32 {sKI}, {sQH}, 13
        s_add_u32 {sKI}, {sKI}, {sKoff}
        s_add_u32 {sKIend}, {sKI}, {6*BLK}
        v_and_b32 v2, 31, v1
        v_lshrrev_b32 v3, 5, v1
        v_lshlrev_b32 v3, 2, v3
        v_lshl_add_u32 v{vTch}, v2, 7, v3
        """)
        for n in range(16):
            at = w_atoms(n)
            S.wslice("q", n, blk[16 * G + n], blk[16 * G + n + 1] if n < 15 else None, n == 0, at)
            if G == 1:
                for j in range(AD + 1):
                    if pre_slots[j] == n:
                        S.dma_kv_a(16 + j, first=(j == 0))
            S.endslot(n, drain=False)
        stamp(A, 2)
        S.emit(w_atoms(16))
        assert not by_slot.get(16)
        if G == 1:
            for j in range(AD + 1):
                if pre_slots[j] == 16:
                    S.dma_kv_a(16 + j, first=(j == 0))
        if OPT["wopf"] and G == 0:
            A(f"""
            s_lshl_b32 {sT}, s4, 19
            s_add_u32 s16, s80, {sT}
            s_addc_u32 s17, s81, 0
            s_and_b32 s17, s17, 0xffff
            s_mov_b32 s18, 0x80000
            s_mov_b32 s19, 0x20000
            s_lshl_b32 s65, {sRot}, 15
            s_add_u32 s65, s65, {sI8k}
            v_lshlrev_b32 v3, 3, v{vL16}
            """)
        S.qfinal()
        sh = OPT['ashift']
        S.attn_pro(0, 0, sh)
        S.endslot(16)
        pfr = int(OPT["pfR"])
        assert rt0 * 2 + 15 * pfr <= 64

        def lim(k):
            return (15 - AD - k) // 3 + 1

        def body_pre(k):
            def part(p):
                def f():
                    if lim(k) < 5:
                        sk, sk2 = A.lab("L_sk"), A.lab("L_sk")
                        A(f"s_cmp_lt_u32 {sN}, {lim(k)}\ns_cbranch_scc0 {sk}")
                        S.dma_kv_a_part(p)
                        A(f"{sk}:")
                    else:
                        S.dma_kv_a_part(p)
                    if p == 3 and k == 2:
                        sk = A.lab("L_sk")
                        A(f"s_cmp_eq_u32 {sN}, 4\ns_cbranch_scc0 {sk}")
                        S.emit(w_atoms(31))
                        A(f"{sk}:")
                return f
            if G == 1:
                return {0: part(0), 2: part(1), 4: part(2), 6: part(3)}
            e = {}
            if pfr >= 1: e[7] = lambda: S.pf_round(False)
            if pfr >= 2: e[3] = lambda: S.pf_round(False)
            if OPT["wopf"] and k < 2:
                def wo_touch():
                    sk = A.lab("L_sk")
                    A(f"s_cmp_eq_u32 {sN}, {OPT['wopfit']}\ns_cbranch_scc0 {sk}")
                    A(f"buffer_load_dword v12, v3, {sWO if k else 's[16:19]'}, s65 offen")
                    A(f"{sk}:")
                e[5] = wo_touch
            return e

        def tail(k):
            if k == 1:
                for r in range(12):
                    A(f"v_xor_b32 v{vAK+r}, 0xc000, v{vAK+r}")
            if G == 0:
                A("s_waitcnt lgkmcnt(0)\ns_barrier")
                return
            if lim(k) < 5:
                sk = A.lab("L_sk")
                A(f"s_cmp_lt_u32 {sN}, {lim(k)}\ns_cbranch_scc1 {sk}\ns_waitcnt vmcnt(0)\n{sk}:")
            A(f"s_waitcnt vmcnt({4 * (AD - 1)}) lgkmcnt(0)\ns_barrier")
        attn_loop(S, 1, 17, body_pre, tail, st=True, shifted=sh)
        S.emit(w_atoms(32))
        (S.attn_step2 if sh else S.attn_step)(1, last=True)
        S.onorm()
        if G == 0:
            S.wslice("o", 0, None, blk[32], False)
        S.endslot(32, drain=(G == 1))
        stamp(A, 3)
        must = S.write_o(G)
        if G == 0:
            for n in range(33, 65):
                st = n - 1
                if n == 34:
                    must = S.read_o(0, False, True)[-1]
                if n == 49:
                    stamp(A, 4)
                    ids = S.read_o(1, True, True)
                    S.D.need(ids[0])
                    must = ids[-1]
                S.wslice("o", st & 15, blk[st], blk[st + 1] if st < 63 else None, n == 33)
                if must is not None:
                    S.D.need(must)
                    must = None
                if n < 64:
                    S.endslot(n, drain=False)
            stamp(A, 5)
            S.store_partial(OPT['sta'])
            stamp(A, 6)
        else:
            for n in range(33, 64):
                S.emit(w_atoms(n))
                S.endslot(n)
            stamp(A, 5)
        finish(A)
        res.append(S)
    return res


def final_reduce(A):
    A(f"""
    L_final:
    s_load_dwordx4 s[68:71], s[0:1], 80
    s_lshr_b32 s72, s2, 3
    s_lshl_b32 {sT}, s5, 4
    s_add_u32 {sT}, {sT}, s6
    s_lshl_b32 {sT}, {sT}, 19
    s_add_u32 s16, s82, {sT}
    s_addc_u32 s17, s83, 0
    s_and_b32 s17, s17, 0xffff
    s_mov_b32 s18, 0x80000
    s_mov_b32 s19, 0x20000
    s_lshl_b32 s73, s4, 3
    s_add_u32 s73, s73, {sW_ID}
    s_lshl_b32 s73, s73, 10
    v_and_b32 v2, 31, v1
    v_lshrrev_b32 v3, 5, v1
    v_lshlrev_b32 v2, 11, v2
    v_lshl_add_u32 v2, v3, 5, v2
    s_lshl_b32 s74, s6, 17
    s_lshl_b32 {sT}, s5, 10
    s_add_u32 s74, s74, {sT}
    s_bfe_u32 {sT}, s4, 0x10001
    s_lshl_b32 {sT}, {sT}, 16
    s_add_u32 s74, s74, {sT}
    s_lshr_b32 {sT}, s4, 2
    s_lshl_b32 {sT}, {sT}, 9
    s_add_u32 s74, s74, {sT}
    s_and_b32 {sT}, s4, 1
    s_lshl_b32 {sT}, {sT}, 8
    s_add_u32 s74, s74, {sT}
    s_lshr_b32 {sT}, {sW_ID}, 1
    s_lshl_b32 {sT}, {sT}, 6
    s_add_u32 s74, s74, {sT}
    s_lshl_b32 {sT}, {sQH}, 4
    s_add_u32 s74, s74, {sT}
    s_mov_b32 s75, 0xffff0000
    s_lshl_b32 s76, s72, 11
    s_add_u32 s76, s76, 0x2000000
    v_lshlrev_b32 v7, 8, v1
    v_add_u32 v7, s76, v7
    s_lshl_b32 s76, s2, 8
    s_add_u32 s76, s76, 0x2000000
    v_mov_b32 v8, s76
    v_mov_b32 v9, 0
    s_lshl_b32 s72, s72, 2
    v_mov_b32 v4, s72
    v_mov_b32 v5, 1
    s_cmp_eq_u32 {sW_ID}, 4
    s_cbranch_scc0 L_fin_noclr
    s_mov_b64 exec, 1
    global_store_dword v8, v9, s[82:83] sc1
    s_mov_b64 exec, -1
    L_fin_noclr:
    s_waitcnt vmcnt(0) lgkmcnt(0)
    s_mov_b32 s20, s68
    s_and_b32 s21, s69, 0xffff
    s_mov_b32 s22, 0x200000
    s_mov_b32 s23, 0x20000
    s_barrier
    s_cmp_eq_u32 {sW_ID}, 0
    s_cbranch_scc0 L_fin_wait
    s_mov_b64 exec, 1
    global_atomic_add v6, v4, v5, s[70:71] sc0
    s_mov_b32 s76, 0
    s_waitcnt vmcnt(0)
    v_readfirstlane_b32 s77, v6
    s_and_b32 s77, s77, 7
    s_cmp_eq_u32 s77, 7
    s_cbranch_scc0 L_fin_poll
    s_mov_b64 exec, 0xff
    global_store_dword v7, v5, s[82:83] sc1
    s_branch L_fin_go
    L_fin_poll:
    global_load_dword v6, v8, s[82:83] sc1
    s_add_u32 s76, s76, 1
    s_waitcnt vmcnt(0)
    v_readfirstlane_b32 s77, v6
    s_cmp_gt_u32 s76, 0x40000
    s_cbranch_scc1 L_fin_go
    s_cmp_eq_u32 s77, 1
    s_cbranch_scc0 L_fin_poll
    L_fin_go:
    s_mov_b64 exec, -1
    L_fin_wait:
    s_barrier
    """)
    for j in range(8):
        A(f"buffer_load_dwordx4 {vr(32+4*j,4)}, v{vL16}, s[16:19], s73 offen sc1")
        if j < 7:
            A("s_add_u32 s73, s73, 0x10000")
    A("s_waitcnt vmcnt(7)")
    for i in range(4):
        A(f"v_lshlrev_b32 v{64+2*i}, 16, v{32+i}")
        A(f"v_and_b32 v{65+2*i}, s75, v{32+i}")
    for j in range(1, 8):
        A(f"s_waitcnt vmcnt({7-j})")
        for i in range(4):
            A(f"v_lshlrev_b32 v72, 16, v{32+4*j+i}")
            A(f"v_and_b32 v73, s75, v{32+4*j+i}")
            A(f"v_add_f32 v{64+2*i}, v{64+2*i}, v72")
            A(f"v_add_f32 v{65+2*i}, v{65+2*i}, v73")
    for i in range(4):
        A(f"v_cvt_pk_bf16_f32 v{76+i}, v{64+2*i}, v{65+2*i}")
    A("buffer_store_dwordx4 v[76:79], v2, s[20:23], s74 offen")
    if OPT["ts"]:
        A("s_waitcnt vmcnt(0)")
        stamp(A, 1)
    stamps_out(A)
    A("s_endpgm")


def finish(A):
    if OPT["fuse"]:
        A("s_branch L_final")
    else:
        stamps_out(A)
        A("s_endpgm")


def reduce_kernel(A):
    A(f"""
    s_cmp_ge_u32 s2, 512
    s_cbranch_scc1 L_exit2
    {"s_memrealtime s[24:25]" if OPT["ts"] else ""}
    s_load_dwordx2 s[4:5], s[0:1], 96
    s_load_dwordx2 s[6:7], s[0:1], 80
    v_lshlrev_b32 v1, 4, v0
    s_lshr_b32 s16, s2, 4
    s_lshl_b32 s17, s16, 19
    s_and_b32 s18, s2, 15
    s_lshl_b32 s18, s18, 12
    s_add_u32 s17, s17, s18
    s_waitcnt lgkmcnt(0)
    s_mov_b32 s8, s4
    s_and_b32 s9, s5, 0xffff
    s_mov_b32 s10, 0x1000000
    s_mov_b32 s11, 0x20000
    s_mov_b32 s12, s6
    s_and_b32 s13, s7, 0xffff
    s_mov_b32 s14, 0x200000
    s_mov_b32 s15, 0x20000
    """)
    for j in range(8):
        A(f"buffer_load_dwordx4 {vr(8+4*j,4)}, v1, s[8:11], s17 offen")
        if j < 7:
            A("s_add_u32 s17, s17, 0x10000")
    A(f"""
    v_and_b32 v2, 31, v0
    v_bfe_u32 v3, v0, 5, 1
    v_bfe_u32 v4, v0, 6, 1
    v_bfe_u32 v5, v0, 7, 1
    v_lshlrev_b32 v2, 11, v2
    v_lshl_add_u32 v2, v3, 5, v2
    v_lshl_add_u32 v2, v4, 4, v2
    v_lshl_add_u32 v2, v5, 6, v2
    s_and_b32 s18, s16, 15
    s_lshl_b32 s18, s18, 17
    s_lshr_b32 s19, s16, 4
    s_lshl_b32 s19, s19, 10
    s_add_u32 s18, s18, s19
    s_bfe_u32 s19, s2, 0x10002
    s_lshl_b32 s19, s19, 16
    s_add_u32 s18, s18, s19
    s_bfe_u32 s19, s2, 0x10003
    s_lshl_b32 s19, s19, 9
    s_add_u32 s18, s18, s19
    s_and_b32 s19, s2, 3
    s_lshl_b32 s19, s19, 7
    s_add_u32 s18, s18, s19
    s_mov_b32 s20, 0xffff0000
    s_waitcnt vmcnt(7)
    """)
    for i in range(4):
        A(f"v_lshlrev_b32 v{40+2*i}, 16, v{8+i}")
        A(f"v_and_b32 v{41+2*i}, s20, v{8+i}")
    for j in range(1, 8):
        A(f"s_waitcnt vmcnt({7-j})")
        for i in range(4):
            A(f"v_lshlrev_b32 v48, 16, v{8+4*j+i}")
            A(f"v_and_b32 v49, s20, v{8+4*j+i}")
            A(f"v_add_f32 v{40+2*i}, v{40+2*i}, v48")
            A(f"v_add_f32 v{41+2*i}, v{41+2*i}, v49")
    for i in range(4):
        A(f"v_cvt_pk_bf16_f32 v{52+i}, v{40+2*i}, v{41+2*i}")
    A("buffer_store_dwordx4 v[52:55], v2, s[12:15], s18 offen")
    if OPT["ts"]:
        A("""
        s_waitcnt vmcnt(0)
        s_memrealtime s[26:27]
        s_lshl_b32 s18, s2, 3
        s_add_u32 s18, s18, 0x8100000
        v_mov_b32 v2, s18
        s_waitcnt lgkmcnt(0)
        v_mov_b32 v4, s24
        v_mov_b32 v5, s26
        global_store_dwordx2 v2, v[4:5], s[4:5]
        """)
    A("L_exit2:")
    A("s_endpgm")


def kd(name, vg, sg):
    return f""".amdhsa_kernel {name}
  .amdhsa_next_free_vgpr {vg}
  .amdhsa_next_free_sgpr {sg}
  .amdhsa_accum_offset {vg}
  .amdhsa_group_segment_fixed_size 0
  .amdhsa_kernarg_size 104
  .amdhsa_user_sgpr_count 2
  .amdhsa_user_sgpr_kernarg_segment_ptr 1
  .amdhsa_system_sgpr_workgroup_id_x 1
.end_amdhsa_kernel
"""


def build(code_slice=1024):
    Asm.nlab = 0
    out = HEADER
    kn = NAME + "_kernel" if OPT["fuse"] else "attn_kernel"
    if OPT["fuse"]:
        out += f"; @launch grid=(256,1,1) block=(512,1,1) lds={LDS_BYTES}\n"
    else:
        out += f"; @launch kernel=attn_kernel grid=(256,1,1) block=(512,1,1) lds={LDS_BYTES}\n"
        out += "; @launch kernel=reduce_kernel grid=(512,1,1) block=(256,1,1) lds=0\n"
    out += '.amdgcn_target "amdgcn-amd-amdhsa--gfx950"\n.text\n'
    A = Asm()
    A.L.append(f".globl {kn}\n.p2align 8\n.type {kn},@function\n{kn}:")
    setup(A)
    if OPT["codepf"]:
        A(f"""
        s_cmp_eq_u32 {sW_ID}, 0
        s_cbranch_scc0 L_nopf
        s_getpc_b64 s[58:59]
        s_lshr_b32 {sT}, s2, 3
        s_mul_i32 {sT}, {sT}, {code_slice}
        v_lshlrev_b32 v3, 3, v{vL16}
        v_add_u32 v3, {sT}, v3
        v_cmp_gt_u32 vcc, {code_slice//128}, v1
        s_and_saveexec_b64 s[70:71], vcc
        global_load_dword v12, v3, s[58:59]
        s_mov_b64 exec, -1
        L_nopf:
        """)
    A(f"""
    s_lshr_b32 {sT}, {sW_ID}, 2
    s_lshl_b32 {sT2}, s5, 1
    s_or_b32 {sT}, {sT}, {sT2}
    s_cmp_eq_u32 {sT}, 1
    s_cbranch_scc1 L_AG1
    s_cmp_eq_u32 {sT}, 2
    s_cbranch_scc1 L_BG0
    s_cmp_eq_u32 {sT}, 3
    s_cbranch_scc1 L_BG1
    """)
    a0, a1 = prog_a()
    b0, b1 = prog_b()
    for lab, S in (("L_AG0", a0), ("L_AG1", a1), ("L_BG0", b0), ("L_BG1", b1)):
        A(f"{lab}:")
        A.L += S.A.L
        for R in S.rare:
            A.L += R.L
    if OPT["fuse"]:
        final_reduce(A)
    A("L_exit:")
    A("s_endpgm")
    if not OPT["fuse"]:
        A.L.append(".globl reduce_kernel\n.p2align 8\n.type reduce_kernel,@function\nreduce_kernel:")
        reduce_kernel(A)
    out += A.text()
    out += '.section .rodata,"a"\n.p2align 6\n' + kd(kn, 256, 102)
    if not OPT["fuse"]:
        out += ".p2align 6\n" + kd("reduce_kernel", 56, 32)
    return out


if __name__ == "__main__":
    path = sys.argv[1]
    for kv in sys.argv[2:]:
        k, v = kv.split("=")
        if k in ("ts", "kv_nt", "w_nt", "verbose", "wopf", "codepf", "bshift", "ashift", "clk", "uq", "trace", "fuse"):
            OPT[k] = v == "1"
        else:
            OPT[k] = v.replace("_", " ")
    import subprocess, tempfile, os
    txt = build()
    with tempfile.TemporaryDirectory() as d:
        open(d + "/a.s", "w").write(txt)
        subprocess.check_call(["clang", "-x", "assembler", "-target", "amdgcn-amd-amdhsa", "-mcpu=gfx950", "-c", d + "/a.s", "-o", d + "/a.o"])
        nm = subprocess.check_output(["llvm-objdump", "-t", d + "/a.o"], text=True)
    sym = {l.split()[-1]: int(l.split()[0], 16) for l in nm.splitlines() if ".text" in l and len(l.split()) >= 4}
    size = sym["L_exit"] - sym["L_AG0"]
    OPT["verbose"] = False
    open(path, "w").write(build(size // 32 // 128 * 128))
```

```python
import sys, math, struct

NAME = "concat_heads__gqa_block_cached__mha_block_cached__near_ridge"
HEADER = open("cdna_kernels/" + NAME + ".s.ref").read().split("; Override")[0]


def f32bits(x):
    return struct.unpack("<I", struct.pack("<f", x))[0]


class Asm:
    nlab = 0

    def __init__(self):
        self.L = []

    def __call__(self, s):
        for line in s.strip("\n").split("\n"):
            t = line.strip()
            if t:
                self.L.append(t if t.endswith(":") else "  " + t)
                if t == "s_barrier" and OPT.get("trace"):
                    n = Asm.nlab = Asm.nlab + 1
                    self.L += ["  s_memrealtime s[56:57]", "  s_mov_b32 m0, s66", "  s_waitcnt lgkmcnt(0)", "  s_cmp_lt_u32 s66, 64",
                               f"  s_cbranch_scc0 L_tr{n}", "  v_writelane_b32 v30, s56, m0", f"  s_branch L_tr{n}b", f"L_tr{n}:",
                               "  v_writelane_b32 v31, s56, m0", f"L_tr{n}b:", "  s_add_u32 s66, s66, 1"]

    def lab(self, base="L"):
        Asm.nlab += 1
        return f"{base}_{Asm.nlab}"

    def text(self):
        return "\n".join(self.L) + "\n"


class DS:
    def __init__(self, A, pending=0):
        self.A = A
        self.n = pending
        self.done = 0

    def issue(self, text):
        if self.n - self.done >= 15:
            self.need(self.n - 15)
        self.A(text)
        self.n += 1
        return self.n - 1

    def need(self, idx):
        if idx < self.done:
            return
        self.A(f"s_waitcnt lgkmcnt({self.n - 1 - idx})")
        self.done = idx + 1


def vr(a, n):
    return f"v[{a}:{a+n-1}]"


BLK = 16384
LDS_BYTES = 163840

sW_ID = "s3"
sKV = "s[8:11]"
sWQ = "s[12:15]"
sX = "s[20:23]"
sWO = "s[24:27]"
sP = "s[28:31]"
sN = "s32"
sI4k = "s33"
sI8k = "s34"
sI64k = "s35"
sKU = "s36"
sKhd = "s37"
sKI = "s38"
sKoff = "s40"
sC = "s41"
sInvC = "s42"
sT = "s43"
sT2 = "s44"
sI = "s45"
sHH = "s46"
sQH = "s47"
sRotI = "s48"
sRot = "s49"
sKVl = "s39"
sKmax = "s50"
sKhd1 = "s52"
sKrot = "s42"
sKcur = "s36"
sPF = "s[60:63]"
sPFoff = "s64"
sKIend = "s51"
sKUend = "s52"
sT8 = "s53"
sTSb = "s[54:55]"
sTS = 56

vKVo = 4
vWo = 8
vPK, vPV, vPW, vPX, vPO, vL16 = 13, 14, 15, 16, 17, 18
vA = 20
vM, vThr, vL0, vL1, vT0, vT1, vT2, vT3 = 32, 33, 34, 35, 36, 37, 38, 39
vS = 40
vPp = 56
vACC = 64
vF0 = 128
vF1 = 160
vQ = 192
vOP = 224
vWF = 32
vXF = 128
vX = 224
vAK = 240
vAV = 248
vTch = 19
vLA = 252
vNM = 160
vOne = 176

OPT = dict(ts=False, kv_nt=True, w_nt=False, st=" sc1", sta=" sc1", look=10, maxiss=3, lead=12, kvstart=8, kv2=12, w1=16, w2=35, wper=2, estart=46, m1a=0, m1b=0, awo=31, adist=4, uq=False, fuse=True, lbd=1, rotg=0, rotb=0, lt0=32, uo=0, afirst=4, wopfit=1, akvstart=12, wopf=True, bshift=True, ashift=True, first=2, pf0=3, pfP=2, pfR=0, pfO=2, pfmax=32, codepf=True)


def stamp(A, idx, cyc=False):
    if not OPT["ts"]:
        return
    if OPT.get("clk"):
        if cyc:
            return
        A(f"s_memtime s[{sTS}:{sTS+1}]\ns_waitcnt lgkmcnt(0)\ns_mov_b32 s{84+8+idx}, s{sTS}")
    A(f"""
    {'s_memtime' if cyc else 's_memrealtime'} s[{sTS}:{sTS+1}]
    s_waitcnt lgkmcnt(0)
    s_mov_b32 s{84+idx}, s{sTS}
    """)


def cstamp(A, idx, n):
    if not OPT["ts"]:
        return
    l = A.lab("L_st")
    A(f"s_cmp_eq_u32 {sN}, {n}\ns_cbranch_scc0 {l}")
    stamp(A, idx, True)
    A(f"{l}:")


def stamps_out(A):
    if not OPT["ts"]:
        return
    if OPT.get("trace"):
        A(f"""
        s_lshl_b32 {sT}, s2, 3
        s_add_u32 {sT}, {sT}, {sW_ID}
        s_lshl_b32 {sT}, {sT}, 9
        s_add_u32 {sT}, {sT}, 0x8200000
        v_lshlrev_b32 v3, 2, v1
        v_add_u32 v3, {sT}, v3
        global_store_dword v3, v30, s[82:83]
        global_store_dword v3, v31, s[82:83] offset:256
        """)
    A("v_mov_b32 v3, 0")
    for i in range(16):
        A(f"v_mov_b32 v2, s{84+i}")
        A(f"global_store_dword v3, v2, {sTSb} offset:{i*4}")
    A("s_waitcnt vmcnt(0)")


def ring_adv(A, reg, step, end, span):
    A(f"""
    s_add_u32 {reg}, {reg}, {step}
    s_cmp_ge_u32 {reg}, {end}
    s_cselect_b32 {sT}, {span}, 0
    s_sub_u32 {reg}, {reg}, {sT}
    """)


class Stream:
    def __init__(self):
        self.A = Asm()
        self.out = []
        self.wmode = "q"
        self.rare = []
        self.par = 0
        self.D = DS(self.A)
        self.fid = {}

    def rec(self, n, deadline):
        self.out.append((n, deadline))

    def vm_for(self, slot):
        last = -1
        for i, (n, d) in enumerate(self.out):
            if d <= slot:
                last = i
        if last < 0:
            return None
        rest = self.out[last + 1:]
        self.out = rest
        return sum(n for n, _ in rest)

    def endslot(self, slot, barrier=True, drain=True):
        vm = self.vm_for(slot + 1)
        w = []
        if vm is not None:
            assert vm <= 63
            w.append(f"vmcnt({vm})")
        if drain:
            w.append("lgkmcnt(0)")
            self.D.done = self.D.n
        if w:
            self.A("s_waitcnt " + " ".join(w))
        if barrier:
            self.A("s_barrier")

    def drained(self):
        self.out = []

    def dma_x(self):
        A = self.A
        A(f"""
        s_lshl_b32 {sT}, {sW_ID}, 13
        s_and_b32 {sT2}, {sW_ID}, 1
        s_lshl_b32 {sT2}, {sT2}, 7
        v_xor_b32 v{vA+8}, {sT2}, v{vL16}
        s_lshl_b32 {sT2}, {sRot}, 6
        """)
        for j in range(8):
            A(f"v_xor_b32 v{vA+j}, {j*16}, v{vA+8}")
            A(f"v_add_u32 v{vA+j}, {sT2}, v{vA+j}")
            A(f"v_and_b32 v{vA+j}, 0x3ff, v{vA+j}")
        A(f"s_lshr_b32 {sT2}, {sW_ID}, 2\ns_lshl_b32 {sT2}, {sT2}, 14")
        for half in range(2):
            A(f"s_add_u32 m0, {sT}, {sT2}")
            A("s_nop 0")
            for p in range(4):
                j = 4 * half + p
                off = f" offset:{p*1024}" if p else ""
                A(f"buffer_load_dwordx4 v{vA+j}, {sX}, {sT} offen{off} lds")
            if half == 0:
                A(f"s_add_u32 {sT}, {sT}, 4096")
        self.rec(8, -1)

    def set_wmode(self, mode):
        A = self.A
        if self.wmode == mode:
            return
        if self.wmode == "q":
            A(f"""
            v_lshrrev_b32 v2, 9, v{vL16}
            v_lshlrev_b32 v2, 17, v2
            """)
            for p in range(4):
                A(f"v_xor_b32 v3, {p<<6}, v{vL16}")
                A(f"v_add_u32 v{vWo+p}, v3, v2")
            self.wmode = 0
        if self.wmode != mode:
            for p in range(4):
                A(f"v_xor_b32 v{vWo+p}, 0x20000, v{vWo+p}")
            self.wmode = mode

    def dma_w(self, stage, blk, deadline):
        nt = " nt" if OPT["w_nt"] else ""
        if stage < 32:
            assert self.wmode == "q"
            G, i = stage >> 4, stage & 15
            pre = (f"s_add_u32 {sT}, {sRotI}, {i*262144 + G*512}\n"
                   f"s_add_u32 m0, {sI4k}, {blk*BLK}\n"
                   f"s_and_b32 {sT}, {sT}, 0x3fffff\n")
            srd = sWQ
        else:
            ps, s = (stage - 32) >> 4, stage & 15
            keep, self.A = self.A, Asm()
            self.set_wmode(s >> 3)
            pre = "\n".join(self.A.L) + "\n"
            self.A = keep
            pre += (f"s_add_u32 m0, {sI4k}, {blk*BLK}\n"
                    f"s_add_u32 {sT}, {sI4k}, {(s&7)*16384 + ps*262144}\n")
            srd = sWO
        at = []
        for p in range(4):
            off = f" offset:{p*1024}" if p else ""
            at.append((pre if p == 0 else "") + f"buffer_load_dwordx4 v{vWo+p}, {srd}, {sT} offen{off}{nt} lds")
        self.rec(4, deadline)
        return at

    def dma_kv_b(self, beta, half, deadline):
        nt = " nt" if OPT["kv_nt"] else ""
        buf = (beta + 1) % 3

        m0 = f"s_add_u32 m0, {sKVl}, {buf*BLK + half*4096}\n"
        post = ""
        pre = (f"s_add_u32 {sT}, {sKrot}, {((beta & 15) * 8192 + half * 4096)}\n"
               f"s_and_b32 {sT}, {sT}, 0x1ffff\n")
        pk, pv = max(0, min(31, beta + 1)) >> 4, max(0, beta) >> 4
        if pk == pv:
            pre += f"s_add_u32 {sT}, {sT}, {sKhd if pk == 0 else sKhd1}\n"
        else:
            pre += (f"s_cmp_eq_u32 {sQH}, 0\n"
                    f"s_cselect_b32 {sT2}, {sKhd1}, {sKhd}\n"
                    f"s_add_u32 {sT}, {sT}, {sT2}\n")
        if beta in (-1, 31):
            pre += (f"s_cmp_eq_u32 {sQH}, 0\n"
                    f"s_cselect_b64 exec, {'-1, 1' if beta == -1 else '1, -1'}\n")
            post = "\ns_mov_b64 exec, -1"
        at = []
        for p in range(4):
            off = f" offset:{p*1024}" if p else ""
            at.append((m0 + pre if p == 0 else "") + f"buffer_load_dwordx4 v{vKVo+p}, {sKV}, {sT} offen{off}{nt} lds")
        if post:
            at = ["\n".join(at) + post]
        self.rec(4, deadline)
        return at

    def dma_kv_a_part(self, part, first=False):
        A = self.A
        nt = " nt" if OPT["kv_nt"] else ""
        if part == 0:
            A(f"s_mov_b32 m0, {sKI}")
            if first:
                A(f"s_cmp_eq_u32 {sQH}, 0\ns_cselect_b64 exec, -1, 1")
            A(f"s_and_b32 {sKcur}, {sKoff}, 0x1ffff")
        off = f" offset:{part*1024}" if part else ""
        A(f"buffer_load_dwordx4 v{vKVo+part}, {sKV}, {sKcur} offen{off}{nt} lds")
        if part == 3:
            if first:
                A(f"s_mov_b64 exec, -1")
            A(f"s_add_u32 {sKoff}, {sKoff}, 8192")
            ring_adv(A, sKI, BLK, sKIend, 6 * BLK)

    def dma_kv_a(self, deadline, first=False):
        for p in range(4):
            self.dma_kv_a_part(p, first)
        self.rec(4, deadline)

    def pf_round(self, rec=True):
        A = self.A
        A(f"buffer_load_dword v12, v{vTch}, {sPF}, {sPFoff} offen")
        A(f"s_add_u32 {sPFoff}, {sPFoff}, 4096")
        if rec:
            self.rec(1, 1000)

    def emit(self, atoms):
        for a in atoms:
            self.A(a)

    def read_x(self):
        A = self.A
        a = vA
        for s in range(1, 8):
            A(f"v_xor_b32 v{a+s}, {32*s}, v{vPX}")
        D = self.D
        for s in range(32):
            ad = vPX if (s & 7) == 0 else a + (s & 7)
            D.issue(f"ds_read_b128 {vr(vXF+4*s,4)}, v{ad} offset:{(s>>3)*256}")

    def wslice(self, kind, i, blk, nxt, first, dma=()):
        A = self.A
        a = vA
        pat = vPW if kind == "q" else vPO

        def addr(base, b):
            A(f"v_add_u32 v{base}, {b*BLK}, v{pat}")
            for m in range(1, 4):
                A(f"v_xor_b32 v{base+m}, {64*m}, v{base}")

        def rd(base, h, m, u):
            off = (16 * h + 4 * u) * 512 if kind == "q" else h * 256 + u * 4096
            return f"ds_read_b64_tr_b16 {vr(vWF+16*h+4*m+2*u,2)}, v{base+m} offset:{off}"

        def mf(h, m):
            if kind == "q":
                acc, b = vACC + 16 * m, vXF + 4 * (2 * i + h)
                c0 = first and h == 0
            else:
                acc, b = vACC + 16 * (4 * h + m), vQ + 4 * i
                c0 = first
            c = "0" if c0 else vr(acc, 16)
            return f"v_mfma_f32_32x32x16_bf16 {vr(acc,16)}, {vr(vWF+16*h+4*m,4)}, {vr(b,4)}, {c}"

        dma = list(dma)
        per = (len(dma) + 7) // 8
        D = self.D
        if nxt is not None:
            addr(a, nxt)
        for h in range(2):
            for m in range(4):
                if blk is not None:
                    D.need(self.fid[(h, m)])
                    A(mf(h, m))
                if nxt is not None:
                    D.issue(rd(a, h, m, 0))
                    self.fid[(h, m)] = D.issue(rd(a, h, m, 1))
                self.emit(dma[:per]); dma = dma[per:]
        self.emit(dma)

    def qfinal(self):
        A = self.A
        A("s_nop 7\ns_nop 7")
        for i in range(32):
            A(f"v_mul_f32 v{vACC+2*i}, {sC}, v{vACC+2*i}")
            A(f"v_mul_f32 v{vACC+2*i+1}, {sC}, v{vACC+2*i+1}")
            A(f"v_cvt_pk_bf16_f32 v{vQ+i}, v{vACC+2*i}, v{vACC+2*i+1}")

    def max_atoms(self):
        at = [f"v_max3_f32 v{vT0}, v{vS}, v{vS+1}, v{vS+2}", f"v_max3_f32 v{vT1}, v{vS+3}, v{vS+4}, v{vS+5}"]
        for k, i in enumerate(range(6, 14, 2)):
            t = vT0 if k % 2 == 0 else vT1
            at.append(f"v_max3_f32 v{t}, v{t}, v{vS+i}, v{vS+i+1}")
        at += [f"v_max3_f32 v{vT0}, v{vT0}, v{vS+14}, v{vS+15}", f"v_max_f32 v{vT0}, v{vT0}, v{vT1}"]
        return at

    def qk_mfma(self, s, c0):
        c = c0 if s == 0 else vr(vS, 16)
        return f"v_mfma_f32_32x32x16_bf16 {vr(vS,16)}, {vr(vF0+4*s,4)}, {vr(vQ+4*s,4)}, {c}"

    def pv_mfma(self, k):
        j, m = k >> 2, k & 3
        return f"v_mfma_f32_32x32x16_bf16 {vr(vACC+16*m,16)}, {vr(vF0+4*k,4)}, {vr(vPp+4*j,4)}, {vr(vACC+16*m,16)}"

    def attn_pro(self, buf, base, shifted=False):
        A = self.A
        A(f"v_add_u32 v{vAK}, {base}, v{vPK}")
        A(f"v_add_u32 v{vAV}, {base}, v{vPV}")
        for s in range(1, 8):
            A(f"v_xor_b32 v{vAK+s}, {32*s}, v{vAK}")
        D = self.D
        kid = [D.issue(f"ds_read_b128 {vr(vF0+4*s,4)}, v{vAK+s} offset:{buf*BLK}") for s in range(8)]
        for m in range(1, 4):
            A(f"v_xor_b32 v{vAV+m}, {64*m}, v{vAV}")
        fill = [f"v_mov_b32 v{vACC+i}, 0" for i in range(64)] + [f"v_mov_b32 v{vLA+i}, 0" for i in range(4)]
        fill += [f"v_lshrrev_b32 v{vT0}, 2, v1", f"v_lshrrev_b32 v{vT1}, 4, v1", f"v_xor_b32 v{vT0}, v{vT0}, v{vT1}",
                 f"v_and_b32 v{vT0}, 1, v{vT0}", f"v_and_b32 v{vT1}, 3, v1", f"v_or_b32 v{vT0}, v{vT0}, v{vT1}",
                 f"v_cmp_eq_u32 vcc, 0, v{vT0}", f"v_mov_b32 v{vT1}, 0x3f803f80", "s_nop 0"]
        fill += [f"v_cndmask_b32 v{vOne+i}, 0, v{vT1}, vcc" for i in range(4)]
        for s in range(8):
            D.need(kid[s])
            A(self.qk_mfma(s, "0"))
            self.emit(fill[:8]); fill = fill[8:]
        self.emit(fill)
        self.emit(self.max_atoms())
        A(f"""
        v_mov_b32 v{vT1}, v{vT0}
        s_nop 1
        v_permlane32_swap_b32 v{vT0}, v{vT1}
        s_nop 1
        v_max_f32 v{vT0}, v{vT0}, v{vT1}
        """)
        if shifted:
            for i in range(16):
                A(f"v_sub_f32 v{vS+i}, v{vS+i}, v{vT0}")
                A(f"v_sub_f32 v{vNM+i}, 0, v{vT0}")
            for i in range(8):
                A(f"v_mov_b32 v{vPp+i}, 0")
            return
        for i in range(16):
            A(f"v_sub_f32 v{vX+i}, v{vS+i}, v{vT0}")
            A(f"v_sub_f32 v{vNM+i}, 0, v{vT0}")
        for i in range(16):
            A(f"v_exp_f32 v{vX+i}, v{vX+i}")

    def attn_step(self, buf, last=False, extra={}):
        A = self.A
        D = self.D
        o = buf * BLK

        def vrd(k):
            j, m = k >> 2, k & 3
            D.issue(f"ds_read_b64_tr_b16 {vr(vF0+4*k,2)}, v{vAV+m} offset:{o+8192+4096*j}")
            return D.issue(f"ds_read_b64_tr_b16 {vr(vF0+4*k+2,2)}, v{vAV+m} offset:{o+8192+4096*j+2048}")
        cvt = [f"v_cvt_pk_bf16_f32 v{vPp+i}, v{vX+2*i}, v{vX+2*i+1}" for i in range(8)]
        lsum = [f"v_mfma_f32_16x16x32_bf16 {vr(vLA,4)}, {vr(vOne,4)}, {vr(vPp+4*j,4)}, {vr(vLA,4)}" for j in range(2)]
        vid = {}
        if last:
            for k in range(8):
                vid[k] = vrd(k)
            self.emit(cvt)
            A("s_nop 1")
            self.emit(lsum)
            for k in range(8):
                D.need(vid[k])
                A(self.pv_mfma(k))
            return
        kid = [D.issue(f"ds_read_b128 {vr(vF0+4*s,4)}, v{vAK+s} offset:{o}") for s in range(8)]
        self.emit(cvt)
        for s in range(8):
            D.need(kid[s])
            A(self.qk_mfma(s, vr(vNM, 16)))
            mark = len(A.L)
            vid[s] = vrd(s)
            if s in extra: extra[s]()
        self.emit(lsum)
        lr, lb = A.lab("L_rare"), A.lab("L_back")
        mx = self.max_atoms()
        ex = [f"v_exp_f32 v{vX+i}, v{vS+i}" for i in range(16)]
        fill = [[], [], mx[:5], mx[5:] + [f"v_cmp_lt_f32 vcc, {sT8}, v{vT0}", f"s_cbranch_vccnz {lr}"] + ex[:1],
                ex[1:4], ex[4:7], ex[7:10], ex[10:16]]
        for k in range(8):
            D.need(vid[k])
            A(self.pv_mfma(k))
            if k == 2:
                dist = len(A.L) - mark
                if dist < 12:
                    A(f"s_nop {12 - dist - 1}")
            self.emit(fill[k])
        A(f"{lb}:")
        R = Asm()
        R(f"{lr}:")
        R("s_waitcnt lgkmcnt(0)")
        for k in range(4, 8):
            R(self.pv_mfma(k))
        R(f"""
        v_mov_b32 v{vT1}, v{vT0}
        s_nop 1
        v_permlane32_swap_b32 v{vT0}, v{vT1}
        s_nop 1
        v_max3_f32 v{vT0}, v{vT0}, v{vT1}, 0
        v_sub_f32 v{vT1}, 0, v{vT0}
        v_exp_f32 v{vT1}, v{vT1}
        """)
        for i in range(16):
            R(f"v_sub_f32 v{vX+i}, v{vS+i}, v{vT0}")
            R(f"v_sub_f32 v{vNM+i}, v{vNM+i}, v{vT0}")
        for i in range(16):
            R(f"v_exp_f32 v{vX+i}, v{vX+i}")
        R(f"v_mul_f32 v{vLA}, v{vLA}, v{vT1}")
        for i in range(64):
            R(f"v_mul_f32 v{vACC+i}, v{vACC+i}, v{vT1}")
        R(f"s_branch {lb}")
        self.rare.append(R)

    def attn_step2(self, buf, last=False, extra={}, carry=False):
        A = self.A
        D = self.D
        o = buf * BLK

        def vrd(k):
            j, m = k >> 2, k & 3
            D.issue(f"ds_read_b64_tr_b16 {vr(vF0+4*k,2)}, v{vAV+m} offset:{o+8192+4096*j}")
            return D.issue(f"ds_read_b64_tr_b16 {vr(vF0+4*k+2,2)}, v{vAV+m} offset:{o+8192+4096*j+2048}")

        def krd(k, DD=None):
            t = f"ds_read_b128 {vr(vF0+4*k,4)}, v{vAK+k} offset:{o}"
            return D.issue(t)
        cvt = [f"v_cvt_pk_bf16_f32 v{vPp+i}, v{vX+2*i}, v{vX+2*i+1}" for i in range(8)]
        lsum = [f"v_mfma_f32_16x16x32_bf16 {vr(vLA,4)}, {vr(vOne,4)}, {vr(vPp+4*j,4)}, {vr(vLA,4)}" for j in range(2)]
        lr, lb = A.lab("L_rare"), A.lab("L_back")
        mx = self.max_atoms()
        ex = [f"v_exp_f32 v{vX+i}, v{vS+i}" for i in range(16)]
        fill = [mx[:4], mx[4:] + [f"v_cmp_lt_f32 vcc, {sT8}, v{vT0}", f"s_cbranch_vccnz {lr}"],
                ex[0:2], ex[2:5], ex[5:7], ex[7:10], ex[10:12], ex[12:14]]
        ex_rest = ex[14:]
        nid = {}
        R = Asm()
        R(f"{lr}:")
        R("s_waitcnt lgkmcnt(0)")
        if -1 in extra: extra[-1]()
        A("s_nop 7")
        base = D.n
        D.n += 16
        D.done = base + 1 if carry else D.n
        for k in range(8):
            D.need(base + 2 * k + 1)
            A(self.pv_mfma(k))
            mark = len(A.L)
            nid[k] = vrd(k) if last else krd(k)
            if k >= 2:
                R(self.pv_mfma(k))
                R.L += [l for l in A.L[mark:] if "ds_read" in l]
            self.emit(fill[k])
        self.emit(ex_rest)
        A(f"{lb}:")
        R(f"""
        v_mov_b32 v{vT1}, v{vT0}
        s_nop 1
        v_permlane32_swap_b32 v{vT0}, v{vT1}
        s_nop 1
        v_max3_f32 v{vT0}, v{vT0}, v{vT1}, 0
        v_sub_f32 v{vT1}, 0, v{vT0}
        v_exp_f32 v{vT1}, v{vT1}
        """)
        for i in range(16):
            R(f"v_sub_f32 v{vX+i}, v{vS+i}, v{vT0}")
            R(f"v_sub_f32 v{vNM+i}, v{vNM+i}, v{vT0}")
        for i in range(16):
            R(f"v_exp_f32 v{vX+i}, v{vX+i}")
        R(f"v_mul_f32 v{vLA}, v{vLA}, v{vT1}")
        for i in range(64):
            R(f"v_mul_f32 v{vACC+i}, v{vACC+i}, v{vT1}")
        R("s_waitcnt lgkmcnt(0)")
        R(f"s_branch {lb}")
        self.rare.append(R)
        if last:
            self.emit(cvt)
            A("s_nop 1")
            self.emit(lsum)
            for k in range(8):
                D.need(nid[k])
                A(self.pv_mfma(k))
            return
        fill2 = [cvt[0:3], cvt[3:6], cvt[6:8], [], lsum[:1], [], lsum[1:], []]
        for s_ in range(8):
            D.need(nid[s_])
            A(self.qk_mfma(s_, vr(vNM, 16)))
            vrd(s_)
            self.emit(fill2[s_])
            if s_ in extra: extra[s_]()

    def onorm(self):
        A = self.A
        A(f"""
        s_nop 7
        v_rcp_f32 v{vT0}, v{vLA}
        s_nop 7
        """)
        for i in range(32):
            A(f"v_mul_f32 v{vACC+2*i}, v{vACC+2*i}, v{vT0}")
            A(f"v_mul_f32 v{vACC+2*i+1}, v{vACC+2*i+1}, v{vT0}")
            A(f"v_cvt_pk_bf16_f32 v{vQ+i}, v{vACC+2*i}, v{vACC+2*i+1}")

    def write_o(self, bb):
        A = self.A
        A(f"v_add_u32 v{vA+8}, {sKVl}, v{vL16}")
        for i in range(8):
            last = self.D.issue(f"ds_write_b128 v{vA+8}, {vr(vQ+4*i,4)} offset:{bb*BLK+1024*i}")
        return last

    def read_o(self, bb, own, partner):
        A = self.A
        A(f"""
        v_add_u32 v{vA+8}, {sKVl}, v{vL16}
        s_cmp_eq_u32 {sHH}, 0
        s_cselect_b32 {sT}, {3*BLK}, 0
        s_lshl_b32 {sT2}, {sQH}, 13
        s_add_u32 {sT}, {sT}, {sT2}
        v_add_u32 v{vA+9}, {sT}, v{vL16}
        """)
        D = self.D
        ids = []
        if own:
            for i in range(8):
                ids.append(D.issue(f"ds_read_b128 {vr(vQ+4*i,4)}, v{vA+8} offset:{bb*BLK+1024*i}"))
        if partner:
            for i in range(8):
                ids.append(D.issue(f"ds_read_b128 {vr(vOP+4*i,4)}, v{vA+9} offset:{bb*BLK+1024*i}"))
        return ids

    def store_partial(self, pol):
        A = self.A
        A(f"""
        s_nop 7
        s_nop 7
        s_lshl_b32 {sT}, {sI}, 14
        """)
        for nb in range(8):
            for half in range(2):
                k = 2 * nb + half
                d = vWF + 4 * (k & 7)
                for i in range(4):
                    r = vACC + 16 * nb + 8 * half + 2 * i
                    A(f"v_cvt_pk_bf16_f32 v{d+i}, v{r}, v{r+1}")
                if k in (4, 8, 12):
                    A(f"s_add_u32 {sT}, {sT}, 4096")
                off = f" offset:{(k&3)*1024}" if k & 3 else ""
                A(f"buffer_store_dwordx4 {vr(d,4)}, v{vL16}, {sP}, {sT} offen{off}{pol}")
        if not OPT["fuse"] or OPT["ts"]:
            A("s_waitcnt vmcnt(0)")

    def loop_end(self, lab, end):
        self.A(f"""
        s_add_u32 {sN}, {sN}, 1
        s_cmp_lt_u32 {sN}, {end}
        s_cbranch_scc1 {lab}
        """)


def schedule_w(order, rd, rel, earliest, reserved, can_issue, cap, pref={}):
    res = {b: list(reserved.get(b, [])) for b in range(10)}
    blk, iss = {}, {}
    cnt = {}
    cur = -2
    for st in order:
        s = max(cur, earliest[st])
        while True:
            assert s < rd[st], (st, s, rd[st])
            ok = None
            if can_issue(s, st) and cnt.get(s, 0) < cap(s):
                best = None
                for b in ([pref[st]] if st in pref else range(9, -1, -1)):
                    if all(rel[st] < a or s > e for a, e in res[b]):
                        nx = min([a for a, e in res[b] if a > rel[st]] + [1000])
                        if best is None or nx < best:
                            ok, best = b, nx
            if ok is not None:
                break
            s += 1
        res[ok].append((s, rel[st]))
        blk[st], iss[st] = ok, s
        cnt[s] = cnt.get(s, 0) + 1
        cur = s
    return blk, iss


def setup(A):
    if OPT["ts"]:
        A("s_memrealtime s[100:101]")
    A(f"""
    s_cmp_ge_u32 s2, 256
    s_cbranch_scc1 L_exit
    s_load_dwordx8 s[60:67], s[0:1], 0
    s_load_dwordx2 s[68:69], s[0:1], 32
    s_load_dwordx8 s[72:79], s[0:1], 40
    s_load_dwordx2 s[80:81], s[0:1], 72
    s_load_dwordx2 s[82:83], s[0:1], 96
    v_lshrrev_b32 v1, 6, v0
    s_and_b32 s4, s2, 7
    v_readfirstlane_b32 {sW_ID}, v1
    s_bfe_u32 s5, s2, 0x10003
    s_lshr_b32 s6, s2, 4
    v_and_b32 v1, 63, v0
    v_lshlrev_b32 v{vL16}, 4, v1
    s_and_b32 {sI}, {sW_ID}, 3
    s_bfe_u32 {sHH}, {sW_ID}, 0x10001
    s_and_b32 {sQH}, {sW_ID}, 1
    s_lshl_b32 {sI4k}, {sI}, 12
    s_lshl_b32 {sI8k}, {sI}, 13
    s_lshl_b32 {sI64k}, {sI}, 16
    s_lshl_b32 {sKhd}, {sHH}, 17
    s_add_u32 {sKhd1}, {sKhd}, 0x40000
    s_mul_i32 {sKrot}, s4, {OPT["rotg"]}
    s_mul_i32 {sT}, s6, {OPT["rotb"]}
    s_add_u32 {sKrot}, {sKrot}, {sT}
    s_and_b32 {sKrot}, {sKrot}, 15
    s_xor_b32 {sT}, {sQH}, 1
    s_add_u32 {sKrot}, {sKrot}, {sT}
    s_lshl_b32 {sKrot}, {sKrot}, 13
    s_mov_b32 {sRot}, s6
    s_mul_i32 {sKVl}, {sHH}, {3*BLK}
    s_lshl_b32 {sT}, {sQH}, 13
    s_add_u32 {sKVl}, {sKVl}, {sT}
    s_lshl_b32 {sRotI}, s6, 18
    s_add_u32 {sRotI}, {sRotI}, {sI64k}
    s_mov_b32 {sC}, {f32bits(math.log2(math.e) / math.sqrt(128.0)):#x}
    s_mov_b32 {sT8}, 0x41000000
    s_waitcnt lgkmcnt(0)
    s_cmp_eq_u32 s5, 0
    s_cselect_b32 s60, s60, s72
    s_cselect_b32 s61, s61, s73
    s_cselect_b32 s62, s62, s74
    s_cselect_b32 s63, s63, s75
    s_cselect_b32 s64, s64, s76
    s_cselect_b32 s65, s65, s77
    s_cselect_b32 s66, s66, s78
    s_cselect_b32 s67, s67, s79
    s_cselect_b32 s68, s68, s80
    s_cselect_b32 s69, s69, s81
    s_cselect_b32 s7, 17, 19
    s_lshl_b32 s10, 1, s7
    s_lshl_b32 {sT}, s6, 16
    s_add_u32 s20, s60, {sT}
    s_addc_u32 s21, s61, 0
    s_and_b32 s21, s21, 0xffff
    s_mov_b32 s22, 0x10000
    s_mov_b32 s23, 0x20000
    s_lshl_b32 {sT}, s4, 10
    s_add_u32 s12, s66, {sT}
    s_addc_u32 s13, s67, 0
    s_and_b32 s13, s13, 0xffff
    s_sub_u32 s14, 0x400000, {sT}
    s_mov_b32 s15, 0x20000
    s_lshl_b32 {sT}, s6, 3
    s_add_u32 {sT}, {sT}, s4
    s_lshl_b32 {sT}, {sT}, s7
    s_bitcmp1_b32 {sW_ID}, 0
    s_cselect_b32 s8, s64, s62
    s_cselect_b32 s9, s65, s63
    s_add_u32 s8, s8, {sT}
    s_addc_u32 s9, s9, 0
    s_and_b32 s9, s9, 0xffff
    s_mov_b32 s11, 0x20000
    s_lshl_b32 {sT}, s4, 19
    s_add_u32 s24, s68, {sT}
    s_addc_u32 s25, s69, 0
    s_and_b32 s25, s25, 0xffff
    s_mov_b32 s26, 0x80000
    s_mov_b32 s27, 0x20000
    s_lshl_b32 {sT}, s5, 4
    s_add_u32 {sT}, {sT}, s6
    s_lshl_b32 {sT}, {sT}, 3
    s_add_u32 {sT}, {sT}, s4
    s_lshl_b32 {sT}, {sT}, 16
    s_add_u32 s28, s82, {sT}
    s_addc_u32 s29, s83, 0
    s_and_b32 s29, s29, 0xffff
    s_mov_b32 s30, 0x10000
    s_mov_b32 s31, 0x20000
    """)
    if OPT["ts"]:
        A(f"""
        s_lshl_b32 {sT}, s2, 3
        s_add_u32 {sT}, {sT}, {sW_ID}
        s_lshl_b32 {sT}, {sT}, 6
        s_add_u32 {sT}, {sT}, 0x8000000
        s_add_u32 s54, s82, {sT}
        s_addc_u32 s55, s83, 0
        """)
        for i in range(16):
            A(f"s_mov_b32 s{84+i}, 0")
        A("s_mov_b32 s66, 0\nv_mov_b32 v30, 0\nv_mov_b32 v31, 0")
        if OPT.get("trace"):
            A("v_writelane_b32 v31, s100, 63")


def patterns(A):
    A(f"""
    v_lshrrev_b32 v2, 5, v1
    v_and_b32 v3, 31, v1
    """)
    for p in range(4):
        A(f"""
        v_add_u32 v29, {(2*p)&3}, v2
        v_lshlrev_b32 v29, 2, v29
        v_xor_b32 v29, v29, v3
        v_lshlrev_b32 v29, 4, v29
        v_lshl_add_u32 v29, v2, 13, v29
        v_add_u32 v{vWo+p}, {2*p*8192 - p*1024}, v29
        """)


def patterns2(A):
    A(f"""
    v_lshrrev_b32 v2, 4, v1
    v_and_b32 v3, 15, v1
    v_lshlrev_b32 v19, 2, v2
    s_bitcmp1_b32 {sW_ID}, 0
    s_cselect_b64 vcc, -1, 0
    """)
    for p in range(4):
        A(f"""
        v_add_u32 v29, {4*p}, v2
        v_cndmask_b32 v29, v29, v19, vcc
        v_xor_b32 v29, v29, v3
        v_lshlrev_b32 v29, 4, v29
        v_lshl_add_u32 v{vKVo+p}, v2, 8, v29
        """)
    A(f"""
    v_and_b32 v2, 31, v1
    v_lshrrev_b32 v3, 5, v1
    v_and_b32 v19, 15, v1
    v_xor_b32 v19, v19, v3
    v_lshlrev_b32 v19, 4, v19
    v_lshl_add_u32 v{vPK}, v2, 8, v19
    v_lshl_add_u32 v19, v2, 10, v19
    s_mul_i32 {sT}, {sQH}, {3*BLK}
    v_add_u32 v{vPX}, {sT}, v19
    """)
    A(f"""
    v_bfe_u32 v32, v1, 4, 1
    v_bfe_u32 v33, v1, 2, 2
    v_and_b32 v34, 1, v1
    v_bfe_u32 v35, v1, 1, 1
    v_lshlrev_b32 v36, 1, v34
    v_or_b32 v36, v36, v35
    v_lshl_add_u32 v36, v32, 2, v36
    v_lshlrev_b32 v36, 3, v36
    v_lshl_add_u32 v36, v33, 6, v36
    v_lshlrev_b32 v37, 2, v3
    v_add_u32 v37, v37, v33
    v_lshl_add_u32 v{vPV}, v37, 8, v36
    v_lshlrev_b32 v37, 3, v3
    v_add_u32 v37, v37, v33
    v_lshl_add_u32 v38, v37, 9, v36
    s_lshl_b32 {sT}, {sHH}, 8
    v_add_u32 v{vPW}, {sT}, v38
    v_lshlrev_b32 v36, 2, v34
    v_lshl_add_u32 v36, v32, 1, v36
    v_add_u32 v36, v36, v35
    v_lshlrev_b32 v36, 3, v36
    v_lshl_add_u32 v36, v33, 6, v36
    v_lshl_add_u32 v38, v37, 10, v36
    s_lshl_b32 {sT}, {sHH}, 9
    v_add_u32 v{vPO}, {sT}, v38
    """)


def pre_x(S, issue_pre, preread, fine=False):
    A = S.A
    stamp(A, 0)
    if fine: stamp(A, 10, True)
    S.dma_x()
    patterns(A)
    issue_pre(-2)
    patterns2(A)
    if fine: stamp(A, 11, True)
    S.endslot(-2, barrier=False)
    if fine: stamp(A, 15, True)
    A("s_barrier")
    stamp(A, 7)
    issue_pre(-1)
    S.read_x()
    if preread is not None:
        S.wslice("q", 0, None, preread, False)
    S.endslot(-1)
    stamp(A, 1)


def attn_loop(S, first_buf, n0, body_pre=None, tail=None, st=None, shifted=False, carry=False):
    A = S.A
    A(f"s_mov_b32 {sN}, 0")
    l = A.lab("L_attn")
    A(f"{l}:")
    for k in range(3):
        if st and k == 0:
            cstamp(A, 8, 2); cstamp(A, 13, 0); cstamp(A, 14, 4)
        if st and k == 1:
            cstamp(A, 12, 2)
        S.attn_step2((first_buf + k) % 3, extra=body_pre(k) if body_pre else {}, carry=carry)
        if st and k == 0:
            cstamp(A, 9, 2)
        tail(k)
        S.D.done = S.D.n
    S.drained()
    S.loop_end(l, 5)


def prog_b():
    w1, w2 = int(OPT["w1"]), int(OPT["w2"])
    per = int(OPT["wper"])
    look = int(OPT["look"])
    uq, uo = OPT["uq"], int(OPT["uo"])
    use, rd, rel, early = {}, {}, {}, {}
    for st in range(64):
        k = st & 15
        if st < 16:
            use[st] = st
        elif st < 32:
            use[st] = k if uq else w1 + k // per
        elif st < 48 - uo:
            use[st] = w2 + k // per
        else:
            use[st] = 49 + st - (48 - uo)
    E0 = 49 + uo
    NS = 65 + uo
    for st in range(64):
        k = st & 15
        win = (16 <= st < 32 and not uq) or (32 <= st < 48 - uo)
        rd[st] = use[st] - 1 if (k == 0 or not win) else use[st - 1]
        rel[st] = rd[st] if win else use[st]
        early[st] = rd[st] - (2 if win else look)
        if st >= 48 - uo:
            early[st] = max(early[st], int(OPT["estart"]))
    assert use[31] <= 31 and w2 >= 34
    order = ([x for i in range(16) for x in (i, 16 + i)] if uq else list(range(32))) + list(range(32, 64))
    kv2 = int(OPT["kv2"])
    kvs = int(OPT["kvstart"])
    reserved = {0: [(-2, -1), (kvs, E0)], 3: [(-2, -1), (kvs, E0)], 1: [(-2, -1), (kvs + 2, 47)], 4: [(-2, -1), (kvs + 2, 47)],
                2: [(kv2, 48)], 5: [(kv2, 48)], 8: [(32, 33)], 9: [(32, 33)]}
    blk, iss = schedule_w(order, rd, rel, early, reserved, lambda s, st: True,
                          lambda s: int(OPT["first"]) * (2 if uq else 1) if s < 0 else int(OPT["maxiss"]) + (1 if uq else 0),
                          {} if uq else dict(enumerate([2, 5, 9, 8, 7, 6, 0, 3, 1, 4, 2, 5, 9, 8, 7, 6])))
    by_slot, at_slot = {}, {}
    for st in order:
        by_slot.setdefault(iss[st], []).append(st)
        at_slot.setdefault(use[st], []).append(st)
    if OPT.get("verbose"):
        print("B sched", [(st, iss[st], rd[st], blk[st]) for st in range(64)], file=sys.stderr)
    MB = 8 * BLK
    LB = max(iss[63] + int(OPT['lbd']), E0)

    def w_atoms(S, n, G=None):
        at = []
        for st in by_slot.get(n, []):
            if uq and st < 32 and (st >> 4) != G:
                continue
            at += S.dma_w(st, blk[st], min(rd[st], LB + 1))
        return at

    def kv_atoms(S, n):
        beta = n - 15
        if beta < 2 or beta > 31:
            return []
        return S.dma_kv_b(beta, 0, 17 + beta) + S.dma_kv_b(beta, 1, 17 + beta)

    def slices(S, n, lo, hi, kind, at):
        sts = [st for st in at_slot.get(n, []) if lo <= st < hi]
        pre = [st for st in range(lo, hi) if rd[st] == n and not (st > lo and use[st - 1] == n)]
        if not sts and not pre:
            S.emit(at)
            return
        nparts = len(sts) + len(pre)
        chunk = (len(at) + nparts - 1) // nparts
        for st in sts:
            nxt = st + 1 if (st + 1 < hi and rd[st + 1] == n and ((st + 1) & 15 or True) and st + 1 not in pre) else None
            S.wslice(kind, st & 15, blk[st], blk[nxt] if nxt is not None else None, st in (0, 16, 32), at[:chunk])
            at = at[chunk:]
        for st in pre:
            S.wslice(kind, 0, None, blk[st], False, at[:chunk])
            at = at[chunk:]

    S = G0 = Stream()
    A = S.A
    tail = lambda k: S.A("s_waitcnt vmcnt(0) lgkmcnt(0)\ns_barrier")
    pre_x(S, lambda n: S.emit(w_atoms(S, n, 0)) if uq else None, blk[0])
    A(f"s_mul_i32 {sKU}, {sHH}, {3*BLK}")
    for n in range(16):
        at = w_atoms(S, n, 0) if uq else []
        if kvs <= n < kvs + 4:
            k = n - kvs
            at = at + S.dma_kv_b((k >> 1) - 1, k & 1, 16 + (k >> 1))
        if kv2 <= n < kv2 + 2:
            at = at + S.dma_kv_b(1, n - kv2, 18)
        if n == 8: stamp(A, 10, True)
        if n == 12: stamp(A, 11, True)
        slices(S, n, 0, 16, "q", at)
        S.endslot(n, drain=False)
    stamp(A, 2)
    S.qfinal()
    bs = OPT["bshift"]
    S.attn_pro(0, sKU, bs)
    S.endslot(16)
    attn_loop(S, 1, 17, tail=tail, st=True, shifted=bs)
    (S.attn_step2 if bs else S.attn_step)(1, last=True)
    S.onorm()
    A(f"""
    s_add_u32 {sT}, {sI8k}, {MB}
    v_add_u32 v{vA+8}, {sT}, v{vL16}
    v_xor_b32 v{vA+9}, 0x4000, v{vA+8}
    """)
    for i in range(8):
        S.D.issue(f"ds_write_b128 v{vA+8}, {vr(vQ+4*i,4)} offset:{1024*i}")
    S.endslot(32)
    stamp(A, 3)
    for n in range(33, NS):
        at = []
        must = None
        if n <= 48:
            at = w_atoms(S, n) + kv_atoms(S, n)
        if n == 33:
            for i in range(8):
                S.D.issue(f"ds_read_b128 {vr(vOP+4*i,4)}, v{vA+9} offset:{1024*i}")
        if n == 41: stamp(A, 15, True)
        if n == 49:
            stamp(A, 4)
        if n == E0:
            ids = S.read_o(0, True, True)
            S.D.need(ids[0])
            must = ids[-1]
        slices(S, n, 32, 64, "o", at)
        if must is not None:
            S.D.need(must)
        if n <= LB:
            S.endslot(n, drain=(n < 48))
    stamp(A, 5)
    S.store_partial(OPT['st'])
    stamp(A, 6)
    finish(A)
    S = G1 = Stream()
    A = S.A
    pre_x(S, lambda n: S.emit(w_atoms(S, n, 1)), blk[16] if uq else None)
    for n in range(32):
        if n == 16: stamp(A, 2)
        if n == 20: stamp(A, 8, True)
        if n == 21: stamp(A, 9, True)
        if n == 25: stamp(A, 10, True)
        if n == 28: stamp(A, 11, True)
        if n == 29: stamp(A, 12, True)
        at = w_atoms(S, n, 1) + kv_atoms(S, n)
        slices(S, n, 16, 32, "q", at)
        if n == use[31] + 1:
            S.qfinal()
        S.endslot(n, drain=not (uq and n < 16))
    S.emit(w_atoms(S, 32) + kv_atoms(S, 32))
    if use[31] == 31:
        S.qfinal()
    A(f"s_mul_i32 {sKU}, {sHH}, {3*BLK}")
    S.attn_pro(1, sKU, bs)
    S.endslot(32)
    stamp(A, 3)
    attn_loop(S, 2, 33, tail=tail, shifted=bs)
    (S.attn_step2 if bs else S.attn_step)(2, last=True)
    S.onorm()
    S.write_o(0)
    S.endslot(48)
    stamp(A, 4)
    for n in range(49, LB + 1):
        S.emit(w_atoms(S, n))
        S.endslot(n)
    stamp(A, 5)
    finish(A)
    return G0, G1


def prog_a():
    use = {st: (st & 15 if st < 32 else st + 1) for st in range(64)}
    rd = {st: use[st] - 1 for st in range(64)}
    order = [x for i in range(16) for x in (i, 16 + i)] + list(range(32, 64))
    ks = int(OPT['akvstart'])
    pre_slots = [14, 14, 14, 15, 15, 15]
    sets = [(9, 8), (7, 6), (2, 5), (0, 1), (3, 4)]
    pref = {16 * g + i: sets[i % 5][g] for i in range(16) for g in range(2)}
    reserved = {b: [(pre_slots[b], 30 if b < 3 else 32)] for b in range(6)}
    for b in (0, 1, 3, 4):
        reserved[b].append((-2, -1))
    reserved[0].append((33, 34)); reserved[3].append((33, 34)); reserved[1].append((33, 49)); reserved[4].append((33, 49))
    early = {st: -2 if st < 32 else 29 for st in range(64)}
    blk, iss = schedule_w(order, rd, use, early, reserved, lambda s, st: not (15 < s < 29 or s in (30, 31)),
                          lambda s: int(OPT['afirst']) if s == -2 else 4, pref)
    if OPT.get("verbose"):
        print("A sched", [(st, iss[st], blk[st]) for st in order], file=sys.stderr)
    by_slot = {}
    for st in order:
        by_slot.setdefault(iss[st], []).append(st)
    LB = iss[63] + int(OPT["lbd"])

    res = []
    for G in range(2):
        S = Stream()
        A = S.A

        def w_atoms(n):
            at = []
            for st in by_slot.get(n, []):
                owner = (st >> 4) if st < 32 else 1
                if owner == G:
                    at += S.dma_w(st, blk[st], min(rd[st], LB + 1))
            return at

        pre_x(S, lambda n: S.emit(w_atoms(n)), blk[16 * G], True)
        A(f"""
        s_lshl_b32 {sKoff}, {sHH}, 12
        s_lshl_b32 {sKI}, {sQH}, 13
        s_add_u32 {sKI}, {sKI}, {sKoff}
        s_add_u32 {sKIend}, {sKI}, {6*BLK}
        s_add_u32 {sKoff}, {sKoff}, {sKrot}
        s_add_u32 {sKoff}, {sKoff}, {15*8192}
        """)
        for n in range(17):
            if n < 16:
                S.wslice("q", n, blk[16 * G + n], blk[16 * G + n + 1] if n < 15 else None, n == 0, w_atoms(n))
            if G == 0:
                for j in range(6):
                    if pre_slots[j] == n:
                        S.dma_kv_a(16 if j < 3 else 19, first=(j == 0))
            if n < 16:
                S.endslot(n, drain=False)
        stamp(A, 2)
        if G == 1:
            A(f"""
            s_lshl_b32 {sT}, s4, 19
            s_add_u32 s16, s80, {sT}
            s_addc_u32 s17, s81, 0
            s_and_b32 s17, s17, 0xffff
            s_mov_b32 s18, 0x80000
            s_mov_b32 s19, 0x20000
            s_lshl_b32 s65, {sRot}, 15
            s_add_u32 s65, s65, {sI8k}
            v_lshlrev_b32 v{vTch}, 3, v{vL16}
            s_lshl_b32 {sT}, s6, 3
            s_add_u32 {sT}, {sT}, s4
            s_lshl_b32 {sT}, {sT}, 19
            s_bitcmp1_b32 {sW_ID}, 0
            s_cselect_b32 s60, s76, s74
            s_cselect_b32 s61, s77, s75
            s_add_u32 s60, s60, {sT}
            s_addc_u32 s61, s61, 0
            s_and_b32 s61, s61, 0xffff
            s_mov_b32 s62, 0x80000
            s_mov_b32 s63, 0x20000
            s_lshl_b32 {sPFoff}, {sHH}, 17
            """)
        S.qfinal()
        S.attn_pro(0, 0, True)
        A("s_waitcnt lgkmcnt(0)")

        def guarded(cond, f):
            def g():
                sk = A.lab("L_sk")
                A(cond + f"\ns_cbranch_scc0 {sk}")
                f()
                A(f"{sk}:")
            return g

        def body_pre(k):
            e = {}
            if G == 0:
                two = lambda p: (lambda: (S.dma_kv_a_part(p), S.dma_kv_a_part(p + 1)))
                if k == 2:
                    c, c3 = f"s_cmp_lt_u32 {sN}, 4", f"s_cmp_lt_u32 {sN}, 3"
                    e = {-1: guarded(c, lambda: (two(0)(), two(2)())), 0: guarded(c, two(0)), 1: guarded(c, two(2)),
                         2: guarded(c3, two(0)), 3: guarded(c3, two(2))}
            else:
                if OPT["wopf"] and k != 1:
                    e[5] = guarded(f"s_cmp_eq_u32 {sN}, {OPT['wopfit']}",
                                   lambda: A(f"buffer_load_dword v12, v{vTch}, {sWO if k else 's[16:19]'}, s65 offen"))
                if k == 0:
                    e[1] = guarded(f"s_cmp_eq_u32 {sN}, 4", lambda: S.emit(w_atoms(29)))
            return e

        def tail(k):
            if k == 1:
                for r in range(12):
                    A(f"v_xor_b32 v{vAK+r}, 0xc000, v{vAK+r}")
                if G == 1:
                    guarded(f"s_cmp_eq_u32 {sN}, 4", lambda: A("s_waitcnt vmcnt(0)"))()
                    A("s_waitcnt lgkmcnt(0)\ns_barrier")
                else:
                    A("s_waitcnt vmcnt(0) lgkmcnt(0)\ns_barrier")
        attn_loop(S, 1, 17, body_pre, tail, st=True, shifted=True, carry=True)
        S.emit(w_atoms(32))
        S.attn_step2(1, last=True, carry=True)
        S.onorm()
        if G == 0:
            S.wslice("o", 0, None, blk[32], False)
        S.endslot(32, drain=(G == 1))
        stamp(A, 3)
        must = S.write_o(G)
        if G == 0:
            for n in range(33, 65):
                st = n - 1
                if n == 34:
                    must = S.read_o(0, False, True)[-1]
                if n == 49:
                    stamp(A, 4)
                    ids = S.read_o(1, True, True)
                    S.D.need(ids[0])
                    must = ids[-1]
                S.wslice("o", st & 15, blk[st], blk[st + 1] if st < 63 else None, n == 33)
                if must is not None:
                    S.D.need(must)
                    must = None
                if n <= LB:
                    S.endslot(n, drain=False)
            stamp(A, 5)
            S.store_partial(OPT['sta'])
            stamp(A, 6)
        else:
            for n in range(33, LB + 1):
                S.emit(w_atoms(n))
                S.endslot(n)
            stamp(A, 5)
            for t in range(int(OPT["lt0"]), 32):
                A(f"s_add_u32 {sT}, {sPFoff}, {(t >> 4) * 262144 + (t & 15) * 8192}")
                A(f"buffer_load_dword v12, v{vTch}, {sPF}, {sT} offen")
            stamp(A, 6)
        finish(A)
        res.append(S)
    return res


def final_reduce(A):
    A(f"""
    L_final:
    s_load_dwordx4 s[68:71], s[0:1], 80
    s_lshr_b32 s72, s2, 3
    s_lshl_b32 {sT}, s5, 4
    s_add_u32 {sT}, {sT}, s6
    s_lshl_b32 {sT}, {sT}, 19
    s_add_u32 s16, s82, {sT}
    s_addc_u32 s17, s83, 0
    s_and_b32 s17, s17, 0xffff
    s_mov_b32 s18, 0x80000
    s_mov_b32 s19, 0x20000
    s_lshl_b32 s73, s4, 3
    s_add_u32 s73, s73, {sW_ID}
    s_lshl_b32 s73, s73, 10
    v_and_b32 v2, 31, v1
    v_lshrrev_b32 v3, 5, v1
    v_lshlrev_b32 v2, 11, v2
    v_lshl_add_u32 v2, v3, 5, v2
    s_lshl_b32 s74, s6, 17
    s_lshl_b32 {sT}, s5, 10
    s_add_u32 s74, s74, {sT}
    s_bfe_u32 {sT}, s4, 0x10001
    s_lshl_b32 {sT}, {sT}, 16
    s_add_u32 s74, s74, {sT}
    s_lshr_b32 {sT}, s4, 2
    s_lshl_b32 {sT}, {sT}, 9
    s_add_u32 s74, s74, {sT}
    s_and_b32 {sT}, s4, 1
    s_lshl_b32 {sT}, {sT}, 8
    s_add_u32 s74, s74, {sT}
    s_lshr_b32 {sT}, {sW_ID}, 1
    s_lshl_b32 {sT}, {sT}, 6
    s_add_u32 s74, s74, {sT}
    s_lshl_b32 {sT}, {sQH}, 4
    s_add_u32 s74, s74, {sT}
    s_mov_b32 s75, 0xffff0000
    s_lshl_b32 s76, s72, 11
    s_add_u32 s76, s76, 0x2000000
    v_lshlrev_b32 v7, 8, v1
    v_add_u32 v7, s76, v7
    s_lshl_b32 s76, s2, 8
    s_add_u32 s76, s76, 0x2000000
    v_mov_b32 v8, s76
    v_mov_b32 v9, 0
    s_lshl_b32 s72, s72, 2
    v_mov_b32 v4, s72
    v_mov_b32 v5, 1
    s_cmp_eq_u32 {sW_ID}, 4
    s_cbranch_scc0 L_fin_noclr
    s_mov_b64 exec, 1
    global_store_dword v8, v9, s[82:83] sc1
    s_mov_b64 exec, -1
    L_fin_noclr:
    s_waitcnt vmcnt(0) lgkmcnt(0)
    s_mov_b32 s20, s68
    s_and_b32 s21, s69, 0xffff
    s_mov_b32 s22, 0x200000
    s_mov_b32 s23, 0x20000
    s_barrier
    s_cmp_eq_u32 {sW_ID}, 0
    s_cbranch_scc0 L_fin_wait
    s_mov_b64 exec, 1
    global_atomic_add v6, v4, v5, s[70:71] sc0
    s_mov_b32 s76, 0
    s_waitcnt vmcnt(0)
    v_readfirstlane_b32 s77, v6
    s_and_b32 s77, s77, 7
    s_cmp_eq_u32 s77, 7
    s_cbranch_scc0 L_fin_poll
    s_mov_b64 exec, 0xff
    global_store_dword v7, v5, s[82:83] sc1
    s_branch L_fin_go
    L_fin_poll:
    global_load_dword v6, v8, s[82:83] sc1
    s_add_u32 s76, s76, 1
    s_waitcnt vmcnt(0)
    v_readfirstlane_b32 s77, v6
    s_cmp_gt_u32 s76, 0x40000
    s_cbranch_scc1 L_fin_go
    s_cmp_eq_u32 s77, 1
    s_cbranch_scc0 L_fin_poll
    L_fin_go:
    s_mov_b64 exec, -1
    L_fin_wait:
    s_barrier
    """)
    for j in range(8):
        A(f"buffer_load_dwordx4 {vr(32+4*j,4)}, v{vL16}, s[16:19], s73 offen sc1")
        if j < 7:
            A("s_add_u32 s73, s73, 0x10000")
    A("s_waitcnt vmcnt(7)")
    for i in range(4):
        A(f"v_lshlrev_b32 v{64+2*i}, 16, v{32+i}")
        A(f"v_and_b32 v{65+2*i}, s75, v{32+i}")
    for j in range(1, 8):
        A(f"s_waitcnt vmcnt({7-j})")
        for i in range(4):
            A(f"v_lshlrev_b32 v72, 16, v{32+4*j+i}")
            A(f"v_and_b32 v73, s75, v{32+4*j+i}")
            A(f"v_add_f32 v{64+2*i}, v{64+2*i}, v72")
            A(f"v_add_f32 v{65+2*i}, v{65+2*i}, v73")
    for i in range(4):
        A(f"v_cvt_pk_bf16_f32 v{76+i}, v{64+2*i}, v{65+2*i}")
    A("buffer_store_dwordx4 v[76:79], v2, s[20:23], s74 offen")
    if OPT["ts"]:
        A("s_waitcnt vmcnt(0)")
        stamp(A, 1)
    stamps_out(A)
    A("s_endpgm")


def finish(A):
    if OPT["fuse"]:
        A("s_branch L_final")
    else:
        stamps_out(A)
        A("s_endpgm")


def reduce_kernel(A):
    A(f"""
    s_cmp_ge_u32 s2, 512
    s_cbranch_scc1 L_exit2
    {"s_memrealtime s[24:25]" if OPT["ts"] else ""}
    s_load_dwordx2 s[4:5], s[0:1], 96
    s_load_dwordx2 s[6:7], s[0:1], 80
    v_lshlrev_b32 v1, 4, v0
    s_lshr_b32 s16, s2, 4
    s_lshl_b32 s17, s16, 19
    s_and_b32 s18, s2, 15
    s_lshl_b32 s18, s18, 12
    s_add_u32 s17, s17, s18
    s_waitcnt lgkmcnt(0)
    s_mov_b32 s8, s4
    s_and_b32 s9, s5, 0xffff
    s_mov_b32 s10, 0x1000000
    s_mov_b32 s11, 0x20000
    s_mov_b32 s12, s6
    s_and_b32 s13, s7, 0xffff
    s_mov_b32 s14, 0x200000
    s_mov_b32 s15, 0x20000
    """)
    for j in range(8):
        A(f"buffer_load_dwordx4 {vr(8+4*j,4)}, v1, s[8:11], s17 offen")
        if j < 7:
            A("s_add_u32 s17, s17, 0x10000")
    A(f"""
    v_and_b32 v2, 31, v0
    v_bfe_u32 v3, v0, 5, 1
    v_bfe_u32 v4, v0, 6, 1
    v_bfe_u32 v5, v0, 7, 1
    v_lshlrev_b32 v2, 11, v2
    v_lshl_add_u32 v2, v3, 5, v2
    v_lshl_add_u32 v2, v4, 4, v2
    v_lshl_add_u32 v2, v5, 6, v2
    s_and_b32 s18, s16, 15
    s_lshl_b32 s18, s18, 17
    s_lshr_b32 s19, s16, 4
    s_lshl_b32 s19, s19, 10
    s_add_u32 s18, s18, s19
    s_bfe_u32 s19, s2, 0x10002
    s_lshl_b32 s19, s19, 16
    s_add_u32 s18, s18, s19
    s_bfe_u32 s19, s2, 0x10003
    s_lshl_b32 s19, s19, 9
    s_add_u32 s18, s18, s19
    s_and_b32 s19, s2, 3
    s_lshl_b32 s19, s19, 7
    s_add_u32 s18, s18, s19
    s_mov_b32 s20, 0xffff0000
    s_waitcnt vmcnt(7)
    """)
    for i in range(4):
        A(f"v_lshlrev_b32 v{40+2*i}, 16, v{8+i}")
        A(f"v_and_b32 v{41+2*i}, s20, v{8+i}")
    for j in range(1, 8):
        A(f"s_waitcnt vmcnt({7-j})")
        for i in range(4):
            A(f"v_lshlrev_b32 v48, 16, v{8+4*j+i}")
            A(f"v_and_b32 v49, s20, v{8+4*j+i}")
            A(f"v_add_f32 v{40+2*i}, v{40+2*i}, v48")
            A(f"v_add_f32 v{41+2*i}, v{41+2*i}, v49")
    for i in range(4):
        A(f"v_cvt_pk_bf16_f32 v{52+i}, v{40+2*i}, v{41+2*i}")
    A("buffer_store_dwordx4 v[52:55], v2, s[12:15], s18 offen")
    if OPT["ts"]:
        A("""
        s_waitcnt vmcnt(0)
        s_memrealtime s[26:27]
        s_lshl_b32 s18, s2, 3
        s_add_u32 s18, s18, 0x8100000
        v_mov_b32 v2, s18
        s_waitcnt lgkmcnt(0)
        v_mov_b32 v4, s24
        v_mov_b32 v5, s26
        global_store_dwordx2 v2, v[4:5], s[4:5]
        """)
    A("L_exit2:")
    A("s_endpgm")


def kd(name, vg, sg):
    return f""".amdhsa_kernel {name}
  .amdhsa_next_free_vgpr {vg}
  .amdhsa_next_free_sgpr {sg}
  .amdhsa_accum_offset {vg}
  .amdhsa_group_segment_fixed_size 0
  .amdhsa_kernarg_size 104
  .amdhsa_user_sgpr_count 2
  .amdhsa_user_sgpr_kernarg_segment_ptr 1
  .amdhsa_system_sgpr_workgroup_id_x 1
.end_amdhsa_kernel
"""


def build(code_slice=1024):
    Asm.nlab = 0
    out = HEADER
    kn = NAME + "_kernel" if OPT["fuse"] else "attn_kernel"
    if OPT["fuse"]:
        out += f"; @launch grid=(256,1,1) block=(512,1,1) lds={LDS_BYTES}\n"
    else:
        out += f"; @launch kernel=attn_kernel grid=(256,1,1) block=(512,1,1) lds={LDS_BYTES}\n"
        out += "; @launch kernel=reduce_kernel grid=(512,1,1) block=(256,1,1) lds=0\n"
    out += '.amdgcn_target "amdgcn-amd-amdhsa--gfx950"\n.text\n'
    A = Asm()
    A.L.append(f".globl {kn}\n.p2align 8\n.type {kn},@function\n{kn}:")
    setup(A)
    if OPT["codepf"]:
        A(f"""
        s_cmp_eq_u32 {sW_ID}, 0
        s_cbranch_scc0 L_nopf
        s_getpc_b64 s[58:59]
        s_lshr_b32 {sT}, s2, 3
        s_mul_i32 {sT}, {sT}, {code_slice}
        v_lshlrev_b32 v3, 3, v{vL16}
        v_add_u32 v3, {sT}, v3
        v_cmp_gt_u32 vcc, {code_slice//128}, v1
        s_and_saveexec_b64 s[70:71], vcc
        global_load_dword v12, v3, s[58:59]
        s_mov_b64 exec, -1
        L_nopf:
        """)
    A(f"""
    s_lshr_b32 {sT}, {sW_ID}, 2
    s_lshl_b32 {sT2}, s5, 1
    s_or_b32 {sT}, {sT}, {sT2}
    s_cmp_eq_u32 {sT}, 1
    s_cbranch_scc1 L_AG1
    s_cmp_eq_u32 {sT}, 2
    s_cbranch_scc1 L_BG0
    s_cmp_eq_u32 {sT}, 3
    s_cbranch_scc1 L_BG1
    """)
    a0, a1 = prog_a()
    b0, b1 = prog_b()
    for lab, S in (("L_AG0", a0), ("L_AG1", a1), ("L_BG0", b0), ("L_BG1", b1)):
        A(f"{lab}:")
        A.L += S.A.L
        for R in S.rare:
            A.L += R.L
    if OPT["fuse"]:
        final_reduce(A)
    A("L_exit:")
    A("s_endpgm")
    if not OPT["fuse"]:
        A.L.append(".globl reduce_kernel\n.p2align 8\n.type reduce_kernel,@function\nreduce_kernel:")
        reduce_kernel(A)
    out += A.text()
    out += '.section .rodata,"a"\n.p2align 6\n' + kd(kn, 256, 102)
    if not OPT["fuse"]:
        out += ".p2align 6\n" + kd("reduce_kernel", 56, 32)
    return out


if __name__ == "__main__":
    path = sys.argv[1]
    for kv in sys.argv[2:]:
        k, v = kv.split("=")
        if k in ("ts", "kv_nt", "w_nt", "verbose", "wopf", "codepf", "bshift", "ashift", "clk", "uq", "trace", "fuse"):
            OPT[k] = v == "1"
        else:
            OPT[k] = v.replace("_", " ")
    import subprocess, tempfile, os
    txt = build()
    with tempfile.TemporaryDirectory() as d:
        open(d + "/a.s", "w").write(txt)
        subprocess.check_call(["clang", "-x", "assembler", "-target", "amdgcn-amd-amdhsa", "-mcpu=gfx950", "-c", d + "/a.s", "-o", d + "/a.o"])
        nm = subprocess.check_output(["llvm-objdump", "-t", d + "/a.o"], text=True)
    sym = {l.split()[-1]: int(l.split()[0], 16) for l in nm.splitlines() if ".text" in l and len(l.split()) >= 4}
    size = sym["L_exit"] - sym["L_AG0"]
    OPT["verbose"] = False
    open(path, "w").write(build(size // 32 // 128 * 128))
```

```python
import sys, math, struct

NAME = "concat_heads__gqa_block_cached__mha_block_cached__near_ridge"
HEADER = open("cdna_kernels/" + NAME + ".s.ref").read().split("; Override")[0]


def f32bits(x):
    return struct.unpack("<I", struct.pack("<f", x))[0]


class Asm:
    nlab = 0

    def __init__(self):
        self.L = []

    def __call__(self, s):
        for line in s.strip("\n").split("\n"):
            t = line.strip()
            if t:
                self.L.append(t if t.endswith(":") else "  " + t)
                if t == "s_barrier" and OPT.get("trace"):
                    n = Asm.nlab = Asm.nlab + 1
                    self.L += ["  s_memrealtime s[56:57]", "  s_mov_b32 m0, s66", "  s_waitcnt lgkmcnt(0)", "  s_cmp_lt_u32 s66, 64",
                               f"  s_cbranch_scc0 L_tr{n}", "  v_writelane_b32 v30, s56, m0", f"  s_branch L_tr{n}b", f"L_tr{n}:",
                               "  v_writelane_b32 v31, s56, m0", f"L_tr{n}b:", "  s_add_u32 s66, s66, 1"]

    def lab(self, base="L"):
        Asm.nlab += 1
        return f"{base}_{Asm.nlab}"

    def text(self):
        return "\n".join(self.L) + "\n"


class DS:
    def __init__(self, A, pending=0):
        self.A = A
        self.n = pending
        self.done = 0

    def issue(self, text):
        if self.n - self.done >= 15:
            self.need(self.n - 15)
        self.A(text)
        self.n += 1
        return self.n - 1

    def need(self, idx):
        if idx < self.done:
            return
        self.A(f"s_waitcnt lgkmcnt({self.n - 1 - idx})")
        self.done = idx + 1


def vr(a, n):
    return f"v[{a}:{a+n-1}]"


BLK = 16384
XH2 = 3
XP_OFF = 0x1000000
HO_OFF = 0x1800000
LDS_BYTES = 163840

sW_ID = "s3"
sKV = "s[8:11]"
sWQ = "s[12:15]"
sX = "s[20:23]"
sWO = "s[24:27]"
sP = "s[28:31]"
sN = "s32"
sI4k = "s33"
sI8k = "s34"
sI64k = "s35"
sKU = "s36"
sKhd = "s37"
sKI = "s38"
sKoff = "s40"
sC = "s41"
sInvC = "s42"
sT = "s43"
sT2 = "s44"
sI = "s45"
sHH = "s46"
sQH = "s47"
sRotI = "s48"
sRot = "s49"
sKVl = "s39"
sKmax = "s50"
sKhd1 = "s52"
sKrot = "s42"
sKcur = "s36"
sPF = "s[60:63]"
sPFoff = "s64"
sKIend = "s51"
sKUend = "s52"
sT8 = "s53"
sTSb = "s[54:55]"
sTS = 56

vKVo = 4
vWo = 8
vPK, vPV, vPW, vPX, vPO, vL16 = 13, 14, 15, 16, 17, 18
vA = 20
vM, vThr, vL0, vL1, vT0, vT1, vT2, vT3 = 32, 33, 34, 35, 36, 37, 38, 39
vS = 40
vPp = 56
vACC = 64
vF0 = 128
vF1 = 160
vQ = 192
vOP = 224
vWF = 32
vXF = 128
vX = 224
vAK = 240
vAV = 248
vTch = 19
vLA = 252
vNM = 160
vOne = 176

OPT = dict(ts=False, kv_nt=True, w_nt=False, st=" sc1", sta=" sc1", look=10, maxiss=4, lead=12, kvstart=8, kv2=12, w1=18, w2=36, wper=2, estart=46, m1a=0, m1b=0, awo=31, adist=4, uq=False, fuse=True, lbd=1, rotg=0, rotb=1, aop=False, asleep=0, prio=2, latew=True, la=3, lb=2, n1=8, n2=12, wosplit=True, ad=1, abar=False, aspread=False, ag0=14, ag1=15, m1n=5, m1t=3, m1pol='', lt0=32, uo=16, afirst=4, wopfit=0, akvstart=12, wopf=True, bshift=True, ashift=True, first=2, pf0=3, pfP=2, pfR=0, pfO=2, pfmax=32, codepf=True)


def stamp(A, idx, cyc=False):
    if not OPT["ts"]:
        return
    if OPT.get("clk"):
        if cyc:
            return
        A(f"s_memtime s[{sTS}:{sTS+1}]\ns_waitcnt lgkmcnt(0)\ns_mov_b32 s{84+8+idx}, s{sTS}")
    A(f"""
    {'s_memtime' if cyc else 's_memrealtime'} s[{sTS}:{sTS+1}]
    s_waitcnt lgkmcnt(0)
    s_mov_b32 s{84+idx}, s{sTS}
    """)


def cstamp(A, idx, n):
    if not OPT["ts"]:
        return
    l = A.lab("L_st")
    A(f"s_cmp_eq_u32 {sN}, {n}\ns_cbranch_scc0 {l}")
    stamp(A, idx, True)
    A(f"{l}:")


def stamps_out(A):
    if not OPT["ts"]:
        return
    if OPT.get("trace"):
        A(f"""
        s_lshl_b32 {sT}, s2, 3
        s_add_u32 {sT}, {sT}, {sW_ID}
        s_lshl_b32 {sT}, {sT}, 9
        s_add_u32 {sT}, {sT}, 0x8200000
        v_lshlrev_b32 v3, 2, v1
        v_add_u32 v3, {sT}, v3
        global_store_dword v3, v30, s[82:83]
        global_store_dword v3, v31, s[82:83] offset:256
        """)
    A("v_mov_b32 v3, 0")
    for i in range(16):
        A(f"v_mov_b32 v2, s{84+i}")
        A(f"global_store_dword v3, v2, {sTSb} offset:{i*4}")
    A("s_waitcnt vmcnt(0)")


def ring_adv(A, reg, step, end, span):
    A(f"""
    s_add_u32 {reg}, {reg}, {step}
    s_cmp_ge_u32 {reg}, {end}
    s_cselect_b32 {sT}, {span}, 0
    s_sub_u32 {reg}, {reg}, {sT}
    """)


class Stream:
    def __init__(self):
        self.A = Asm()
        self.out = []
        self.wmode = "q"
        self.rare = []
        self.par = 0
        self.D = DS(self.A)
        self.fid = {}

    def rec(self, n, deadline):
        self.out.append((n, deadline))

    def vm_for(self, slot):
        last = -1
        for i, (n, d) in enumerate(self.out):
            if d <= slot:
                last = i
        if last < 0:
            return None
        rest = self.out[last + 1:]
        self.out = rest
        return sum(n for n, _ in rest)

    def endslot(self, slot, barrier=True, drain=True):
        vm = self.vm_for(slot + 1)
        w = []
        if vm is not None:
            assert vm <= 63
            w.append(f"vmcnt({vm})")
        if drain:
            w.append("lgkmcnt(0)")
            self.D.done = self.D.n
        if w:
            self.A("s_waitcnt " + " ".join(w))
        if barrier:
            self.A("s_barrier")

    def drained(self):
        self.out = []

    def dma_x(self, half):
        A = self.A
        if half == 0:
            A(f"""
            v_lshrrev_b32 v2, 5, v1
            v_and_b32 v3, 31, v1
            s_and_b32 {sT2}, {sW_ID}, 1
            s_lshl_b32 {sT2}, {sT2}, 3
            v_or_b32 v{vA+8}, {sT2}, v2
            v_xor_b32 v{vA+8}, v{vA+8}, v3
            v_lshlrev_b32 v{vA+9}, 10, v2
            s_lshl_b32 {sT2}, {sRot}, 2
            """)
            for j in range(4):
                A(f"""
                v_xor_b32 v{vA+j}, {2*j}, v{vA+8}
                v_add_u32 v{vA+j}, {sT2}, v{vA+j}
                v_and_b32 v{vA+j}, 63, v{vA+j}
                v_lshl_add_u32 v{vA+j}, v{vA+j}, 4, v{vA+9}
                """)
                if j:
                    A(f"v_add_u32 v{vA+j}, {j*1024}, v{vA+j}")
        else:
            for j in range(4):
                A(f"v_xor_b32 v{vA+j}, 0x200, v{vA+j}")
        A(f"""
        s_lshl_b32 {sT}, {sW_ID}, 12
        s_add_u32 m0, {sT}, {half*3*BLK}
        s_lshl_b32 {sT}, {sW_ID}, 13
        """)
        for j in range(4):
            off = f" offset:{j*1024}" if j else ""
            A(f"buffer_load_dwordx4 v{vA+j}, {sX}, {sT} offen{off} lds")
        self.rec(4, -1 if half == 0 else XH2)

    def set_wmode(self, mode):
        A = self.A
        if self.wmode == mode:
            return
        if self.wmode == "q":
            A(f"""
            v_lshrrev_b32 v2, 9, v{vL16}
            v_lshlrev_b32 v2, 17, v2
            """)
            for p in range(4):
                A(f"v_xor_b32 v3, {p<<6}, v{vL16}")
                A(f"v_add_u32 v{vWo+p}, v3, v2")
            self.wmode = 0
        if self.wmode != mode:
            for p in range(4):
                A(f"v_xor_b32 v{vWo+p}, 0x20000, v{vWo+p}")
            self.wmode = mode

    def dma_w(self, stage, blk, deadline):
        nt = " nt" if OPT["w_nt"] else ""
        if stage < 32:
            assert self.wmode == "q"
            G, i = stage >> 4, stage & 15
            pre = (f"s_add_u32 {sT}, {sRotI}, {i*262144 + G*512}\n"
                   f"s_add_u32 m0, {sI4k}, {blk*BLK}\n"
                   f"s_and_b32 {sT}, {sT}, 0x3fffff\n")
            srd = sWQ
        else:
            ps, s = ((stage - 32) >> 4) & 1, stage & 15
            keep, self.A = self.A, Asm()
            self.set_wmode(s >> 3)
            pre = "\n".join(self.A.L) + "\n"
            self.A = keep
            pre += (f"s_add_u32 m0, {sI4k}, {blk*BLK}\n"
                    f"s_add_u32 {sT}, {sI4k}, {(s&7)*16384 + ps*262144}\n")
            srd = sWO if stage < 64 else "s[16:19]"
        at = []
        for p in range(4):
            off = f" offset:{p*1024}" if p else ""
            at.append((pre if p == 0 else "") + f"buffer_load_dwordx4 v{vWo+p}, {srd}, {sT} offen{off}{nt} lds")
        self.rec(4, deadline)
        return at

    def dma_kv_b(self, beta, half, deadline):
        nt = " nt" if OPT["kv_nt"] else ""
        buf = (beta + 1) % 3

        m0 = f"s_add_u32 m0, {sKVl}, {buf*BLK + half*4096}\n"
        post = ""
        pre = (f"s_add_u32 {sT}, {sKrot}, {((beta & 15) * 8192 + half * 4096)}\n"
               f"s_and_b32 {sT}, {sT}, 0x1ffff\n")
        pk, pv = max(0, min(31, beta + 1)) >> 4, max(0, beta) >> 4
        if pk == pv:
            pre += f"s_add_u32 {sT}, {sT}, {sKhd if pk == 0 else sKhd1}\n"
        else:
            pre += (f"s_cmp_eq_u32 {sQH}, 0\n"
                    f"s_cselect_b32 {sT2}, {sKhd1}, {sKhd}\n"
                    f"s_add_u32 {sT}, {sT}, {sT2}\n")
        if beta in (-1, 31):
            pre += (f"s_cmp_eq_u32 {sQH}, 0\n"
                    f"s_cselect_b64 exec, {'-1, 1' if beta == -1 else '1, -1'}\n")
            post = "\ns_mov_b64 exec, -1"
        at = []
        for p in range(4):
            off = f" offset:{p*1024}" if p else ""
            at.append((m0 + pre if p == 0 else "") + f"buffer_load_dwordx4 v{vKVo+p}, {sKV}, {sT} offen{off}{nt} lds")
        if post:
            at = ["\n".join(at) + post]
        self.rec(4, deadline)
        return at

    def dma_kv_a_part(self, part, first=False):
        A = self.A
        nt = " nt" if OPT["kv_nt"] else ""
        if part == 0:
            A(f"s_mov_b32 m0, {sKI}")
            if first:
                A(f"s_cmp_eq_u32 {sQH}, 0\ns_cselect_b64 exec, -1, 1")
            A(f"s_and_b32 {sKcur}, {sKoff}, 0x1ffff")
        off = f" offset:{part*1024}" if part else ""
        A(f"buffer_load_dwordx4 v{vKVo+part}, {sKV}, {sKcur} offen{off}{nt} lds")
        if part == 3:
            if first:
                A(f"s_mov_b64 exec, -1")
            A(f"s_add_u32 {sKoff}, {sKoff}, 8192")
            ring_adv(A, sKI, BLK, sKIend, 6 * BLK)

    def dma_kv_a(self, deadline, first=False):
        for p in range(4):
            self.dma_kv_a_part(p, first)
        self.rec(4, deadline)

    def pf_round(self, rec=True):
        A = self.A
        A(f"buffer_load_dword v12, v{vTch}, {sPF}, {sPFoff} offen")
        A(f"s_add_u32 {sPFoff}, {sPFoff}, 4096")
        if rec:
            self.rec(1, 1000)

    def emit(self, atoms):
        for a in atoms:
            self.A(a)

    def read_x(self, half):
        A = self.A
        regs = [vPX, 2, 3, vA + 4, vA + 5, vA + 6, vA + 7, vA + 8]
        for s in range(1, 8):
            A(f"v_xor_b32 v{regs[s]}, {32*s}, v{vPX}")
        D = self.D
        for s in range(16):
            ad = regs[s & 7]
            last = D.issue(f"ds_read_b128 {vr(vXF+64*half+4*s,4)}, v{ad} offset:{half*3*BLK+(s>>3)*256}")
        return last

    def wslice(self, kind, i, blk, nxt, first, dma=()):
        A = self.A
        a = vA
        pat = vPW if kind == "q" else vPO

        def addr(base, b):
            A(f"v_add_u32 v{base}, {b*BLK}, v{pat}")
            for m in range(1, 4):
                A(f"v_xor_b32 v{base+m}, {64*m}, v{base}")

        def rd(base, h, m, u):
            off = (16 * h + 4 * u) * 512 if kind == "q" else h * 256 + u * 4096
            return f"ds_read_b64_tr_b16 {vr(vWF+16*h+4*m+2*u,2)}, v{base+m} offset:{off}"

        def mf(h, m):
            if kind == "q":
                acc, b = vACC + 16 * m, vXF + 4 * (2 * i + h)
                c0 = first and h == 0
            else:
                acc, b = vACC + 16 * (4 * h + m), vQ + 4 * i
                c0 = first
            c = "0" if c0 else vr(acc, 16)
            return f"v_mfma_f32_32x32x16_bf16 {vr(acc,16)}, {vr(vWF+16*h+4*m,4)}, {vr(b,4)}, {c}"

        dma = list(dma)
        per = (len(dma) + 7) // 8
        D = self.D
        if nxt is not None:
            addr(a, nxt)
        for h in range(2):
            for m in range(4):
                if blk is not None:
                    D.need(self.fid[(h, m)])
                    A(mf(h, m))
                if nxt is not None:
                    D.issue(rd(a, h, m, 0))
                    self.fid[(h, m)] = D.issue(rd(a, h, m, 1))
                self.emit(dma[:per]); dma = dma[per:]
        self.emit(dma)

    def qfinal(self):
        A = self.A
        A(f"s_nop 7\nv_mov_b32 v{vT0}, {sC}\ns_nop 6")
        for i in range(32):
            A(f"v_pk_mul_f32 {vr(vACC+2*i,2)}, {vr(vACC+2*i,2)}, {vr(vT0,2)} op_sel_hi:[1,0]")
            if i:
                A(f"v_cvt_pk_bf16_f32 v{vQ+i-1}, v{vACC+2*i-2}, v{vACC+2*i-1}")
        A(f"v_cvt_pk_bf16_f32 v{vQ+31}, v{vACC+62}, v{vACC+63}")

    def max_atoms(self):
        at = [f"v_max3_f32 v{vT0}, v{vS}, v{vS+1}, v{vS+2}", f"v_max3_f32 v{vT1}, v{vS+3}, v{vS+4}, v{vS+5}"]
        for k, i in enumerate(range(6, 14, 2)):
            t = vT0 if k % 2 == 0 else vT1
            at.append(f"v_max3_f32 v{t}, v{t}, v{vS+i}, v{vS+i+1}")
        at += [f"v_max3_f32 v{vT0}, v{vT0}, v{vS+14}, v{vS+15}", f"v_max_f32 v{vT0}, v{vT0}, v{vT1}"]
        return at

    def qk_mfma(self, s, c0):
        c = c0 if s == 0 else vr(vS, 16)
        return f"v_mfma_f32_32x32x16_bf16 {vr(vS,16)}, {vr(vF0+4*s,4)}, {vr(vQ+4*s,4)}, {c}"

    def pv_mfma(self, k):
        j, m = k >> 2, k & 3
        return f"v_mfma_f32_32x32x16_bf16 {vr(vACC+16*m,16)}, {vr(vF0+4*k,4)}, {vr(vPp+4*j,4)}, {vr(vACC+16*m,16)}"

    def attn_pro(self, buf, base, shifted=False):
        A = self.A
        A(f"v_add_u32 v{vAK}, {base}, v{vPK}")
        A(f"v_add_u32 v{vAV}, {base}, v{vPV}")
        for s in range(1, 8):
            A(f"v_xor_b32 v{vAK+s}, {32*s}, v{vAK}")
        D = self.D
        kid = [D.issue(f"ds_read_b128 {vr(vF0+4*s,4)}, v{vAK+s} offset:{buf*BLK}") for s in range(8)]
        for m in range(1, 4):
            A(f"v_xor_b32 v{vAV+m}, {64*m}, v{vAV}")
        fill = [f"v_mov_b64 {vr(vACC+2*i,2)}, 0" for i in range(32)] + [f"v_mov_b64 {vr(vLA+2*i,2)}, 0" for i in range(2)]
        fill += [f"v_mov_b64 {vr(vPp+2*i,2)}, 0" for i in range(4)]
        fill += [f"v_lshrrev_b32 v{vT0}, 2, v1", f"v_lshrrev_b32 v{vT1}, 4, v1", f"v_xor_b32 v{vT0}, v{vT0}, v{vT1}",
                 f"v_and_b32 v{vT0}, 1, v{vT0}", f"v_and_b32 v{vT1}, 3, v1", f"v_or_b32 v{vT0}, v{vT0}, v{vT1}",
                 f"v_cmp_eq_u32 vcc, 0, v{vT0}", f"v_mov_b32 v{vT1}, 0x3f803f80", "s_nop 0"]
        fill += [f"v_cndmask_b32 v{vOne+i}, 0, v{vT1}, vcc" for i in range(4)]
        for s in range(8):
            D.need(kid[s])
            A(self.qk_mfma(s, "0"))
            self.emit(fill[:5]); fill = fill[5:]
        self.emit(fill)
        A("s_nop 1")
        self.emit(self.max_atoms())
        A(f"""
        v_mov_b32 v{vT1}, v{vT0}
        s_nop 1
        v_permlane32_swap_b32 v{vT0}, v{vT1}
        s_nop 1
        v_max_f32 v{vT0}, v{vT0}, v{vT1}
        """)
        if shifted:
            for i in range(16):
                A(f"v_sub_f32 v{vS+i}, v{vS+i}, v{vT0}")
                A(f"v_sub_f32 v{vNM+i}, 0, v{vT0}")
            return
        for i in range(16):
            A(f"v_sub_f32 v{vX+i}, v{vS+i}, v{vT0}")
            A(f"v_sub_f32 v{vNM+i}, 0, v{vT0}")
        for i in range(16):
            A(f"v_exp_f32 v{vX+i}, v{vX+i}")

    def attn_step(self, buf, last=False, extra={}):
        A = self.A
        D = self.D
        o = buf * BLK

        def vrd(k):
            j, m = k >> 2, k & 3
            D.issue(f"ds_read_b64_tr_b16 {vr(vF0+4*k,2)}, v{vAV+m} offset:{o+8192+4096*j}")
            return D.issue(f"ds_read_b64_tr_b16 {vr(vF0+4*k+2,2)}, v{vAV+m} offset:{o+8192+4096*j+2048}")
        cvt = [f"v_cvt_pk_bf16_f32 v{vPp+i}, v{vX+2*i}, v{vX+2*i+1}" for i in range(8)]
        lsum = [f"v_mfma_f32_16x16x32_bf16 {vr(vLA,4)}, {vr(vOne,4)}, {vr(vPp+4*j,4)}, {vr(vLA,4)}" for j in range(2)]
        vid = {}
        if last:
            for k in range(8):
                vid[k] = vrd(k)
            self.emit(cvt)
            A("s_nop 1")
            self.emit(lsum)
            for k in range(8):
                D.need(vid[k])
                A(self.pv_mfma(k))
            return
        kid = [D.issue(f"ds_read_b128 {vr(vF0+4*s,4)}, v{vAK+s} offset:{o}") for s in range(8)]
        self.emit(cvt)
        for s in range(8):
            D.need(kid[s])
            A(self.qk_mfma(s, vr(vNM, 16)))
            mark = len(A.L)
            vid[s] = vrd(s)
            if s in extra: extra[s]()
        self.emit(lsum)
        lr, lb = A.lab("L_rare"), A.lab("L_back")
        mx = self.max_atoms()
        ex = [f"v_exp_f32 v{vX+i}, v{vS+i}" for i in range(16)]
        fill = [[], [], mx[:5], mx[5:] + [f"v_cmp_lt_f32 vcc, {sT8}, v{vT0}", f"s_cbranch_vccnz {lr}"] + ex[:1],
                ex[1:4], ex[4:7], ex[7:10], ex[10:16]]
        for k in range(8):
            D.need(vid[k])
            A(self.pv_mfma(k))
            if k == 2:
                dist = len(A.L) - mark
                if dist < 12:
                    A(f"s_nop {12 - dist - 1}")
            self.emit(fill[k])
        A(f"{lb}:")
        R = Asm()
        R(f"{lr}:")
        R("s_waitcnt lgkmcnt(0)")
        for k in range(4, 8):
            R(self.pv_mfma(k))
        R(f"""
        v_mov_b32 v{vT1}, v{vT0}
        s_nop 1
        v_permlane32_swap_b32 v{vT0}, v{vT1}
        s_nop 1
        v_max3_f32 v{vT0}, v{vT0}, v{vT1}, 0
        v_sub_f32 v{vT1}, 0, v{vT0}
        v_exp_f32 v{vT1}, v{vT1}
        """)
        for i in range(16):
            R(f"v_sub_f32 v{vX+i}, v{vS+i}, v{vT0}")
            R(f"v_sub_f32 v{vNM+i}, v{vNM+i}, v{vT0}")
        for i in range(16):
            R(f"v_exp_f32 v{vX+i}, v{vX+i}")
        R(f"v_mul_f32 v{vLA}, v{vLA}, v{vT1}")
        for i in range(64):
            R(f"v_mul_f32 v{vACC+i}, v{vACC+i}, v{vT1}")
        R(f"s_branch {lb}")
        self.rare.append(R)

    def attn_step2(self, buf, last=False, extra={}, carry=False):
        A = self.A
        D = self.D
        o = buf * BLK

        def vrd(k):
            j, m = k >> 2, k & 3
            D.issue(f"ds_read_b64_tr_b16 {vr(vF0+4*k,2)}, v{vAV+m} offset:{o+8192+4096*j}")
            return D.issue(f"ds_read_b64_tr_b16 {vr(vF0+4*k+2,2)}, v{vAV+m} offset:{o+8192+4096*j+2048}")

        def krd(k, DD=None):
            t = f"ds_read_b128 {vr(vF0+4*k,4)}, v{vAK+k} offset:{o}"
            return D.issue(t)
        cvt = [f"v_cvt_pk_bf16_f32 v{vPp+i}, v{vX+2*i}, v{vX+2*i+1}" for i in range(8)]
        lsum = [f"v_mfma_f32_16x16x32_bf16 {vr(vLA,4)}, {vr(vOne,4)}, {vr(vPp+4*j,4)}, {vr(vLA,4)}" for j in range(2)]
        lr, lb = A.lab("L_rare"), A.lab("L_back")
        mx = self.max_atoms()
        ex = [f"v_exp_f32 v{vX+i}, v{vS+i}" for i in range(16)]
        fill = [mx[:4], mx[4:] + [f"v_cmp_lt_f32 vcc, {sT8}, v{vT0}", f"s_cbranch_vccnz {lr}"],
                ex[0:2], ex[2:5], ex[5:7], ex[7:10], ex[10:12], ex[12:14]]
        ex_rest = ex[14:]
        nid = {}
        R = Asm()
        R(f"{lr}:")
        R("s_waitcnt lgkmcnt(0)")
        if -1 in extra: extra[-1]()
        A("s_nop 7")
        base = D.n
        D.n += 16
        D.done = base + 1 if carry else D.n
        for k in range(8):
            D.need(base + 2 * k + 1)
            A(self.pv_mfma(k))
            mark = len(A.L)
            nid[k] = vrd(k) if last else krd(k)
            if k >= 2:
                R(self.pv_mfma(k))
                R.L += [l for l in A.L[mark:] if "ds_read" in l]
            self.emit(fill[k])
        self.emit(ex_rest)
        A(f"{lb}:")
        R(f"""
        v_mov_b32 v{vT1}, v{vT0}
        s_nop 1
        v_permlane32_swap_b32 v{vT0}, v{vT1}
        s_nop 1
        v_max3_f32 v{vT0}, v{vT0}, v{vT1}, 0
        v_sub_f32 v{vT1}, 0, v{vT0}
        v_exp_f32 v{vT1}, v{vT1}
        """)
        for i in range(16):
            R(f"v_sub_f32 v{vX+i}, v{vS+i}, v{vT0}")
            R(f"v_sub_f32 v{vNM+i}, v{vNM+i}, v{vT0}")
        for i in range(16):
            R(f"v_exp_f32 v{vX+i}, v{vX+i}")
        R(f"v_mul_f32 v{vLA}, v{vLA}, v{vT1}")
        for i in range(64):
            R(f"v_mul_f32 v{vACC+i}, v{vACC+i}, v{vT1}")
        R("s_waitcnt lgkmcnt(0)")
        R(f"s_branch {lb}")
        self.rare.append(R)
        if last:
            self.emit(cvt)
            A("s_nop 1")
            self.emit(lsum)
            for k in range(8):
                D.need(nid[k])
                A(self.pv_mfma(k))
            return
        fill2 = [cvt[0:3], cvt[3:6], cvt[6:8], [], lsum[:1], [], lsum[1:], []]
        for s_ in range(8):
            D.need(nid[s_])
            A(self.qk_mfma(s_, vr(vNM, 16)))
            vrd(s_)
            self.emit(fill2[s_])
            if s_ in extra: extra[s_]()

    def onorm(self, dma=()):
        A = self.A
        dma = list(dma)
        A(f"""
        s_nop 7
        v_rcp_f32 v{vT0}, v{vLA}
        s_nop 7
        """)
        for i in range(32):
            if dma and i % 2 == 0:
                A(dma.pop(0))
            A(f"v_pk_mul_f32 {vr(vACC+2*i,2)}, {vr(vACC+2*i,2)}, {vr(vT0,2)} op_sel_hi:[1,0]")
            if i:
                A(f"v_cvt_pk_bf16_f32 v{vQ+i-1}, v{vACC+2*i-2}, v{vACC+2*i-1}")
        A(f"v_cvt_pk_bf16_f32 v{vQ+31}, v{vACC+62}, v{vACC+63}")
        self.emit(dma)

    def write_o(self, bb):
        A = self.A
        A(f"v_add_u32 v{vA+8}, {sKVl}, v{vL16}")
        for i in range(8):
            last = self.D.issue(f"ds_write_b128 v{vA+8}, {vr(vQ+4*i,4)} offset:{bb*BLK+1024*i}")
        return last

    def read_o(self, bb, own, partner):
        A = self.A
        A(f"""
        v_add_u32 v{vA+8}, {sKVl}, v{vL16}
        s_cmp_eq_u32 {sHH}, 0
        s_cselect_b32 {sT}, {3*BLK}, 0
        s_lshl_b32 {sT2}, {sQH}, 13
        s_add_u32 {sT}, {sT}, {sT2}
        v_add_u32 v{vA+9}, {sT}, v{vL16}
        """)
        D = self.D
        ids = []
        if own:
            for i in range(8):
                ids.append(D.issue(f"ds_read_b128 {vr(vQ+4*i,4)}, v{vA+8} offset:{bb*BLK+1024*i}"))
        if partner:
            for i in range(8):
                ids.append(D.issue(f"ds_read_b128 {vr(vOP+4*i,4)}, v{vA+9} offset:{bb*BLK+1024*i}"))
        return ids

    def store_partial(self, pol, tmp=vWF, srd=sP, wait=True):
        A = self.A
        A(f"""
        s_nop 7
        s_nop 7
        s_lshl_b32 {sT}, {sI}, 14
        """)
        for nb in range(8):
            for half in range(2):
                k = 2 * nb + half
                d = tmp + 4 * (k & 7)
                for i in range(4):
                    r = vACC + 16 * nb + 8 * half + 2 * i
                    A(f"v_cvt_pk_bf16_f32 v{d+i}, v{r}, v{r+1}")
                if k in (4, 8, 12):
                    A(f"s_add_u32 {sT}, {sT}, 4096")
                off = f" offset:{(k&3)*1024}" if k & 3 else ""
                A(f"buffer_store_dwordx4 {vr(d,4)}, v{vL16}, {srd}, {sT} offen{off}{pol}")
        if wait and (not OPT["fuse"] or OPT["ts"]):
            A("s_waitcnt vmcnt(0)")

    def loop_end(self, lab, end):
        self.A(f"""
        s_add_u32 {sN}, {sN}, 1
        s_cmp_lt_u32 {sN}, {end}
        s_cbranch_scc1 {lab}
        """)


def schedule_w(order, rd, rel, earliest, reserved, can_issue, cap, pref={}):
    res = {b: list(reserved.get(b, [])) for b in range(10)}
    blk, iss = {}, {}
    cnt = {}
    cur = -2
    for st in order:
        s = max(cur, earliest[st])
        while True:
            assert s < rd[st], (st, s, rd[st])
            ok = None
            if can_issue(s, st) and cnt.get(s, 0) < cap(s):
                best = None
                for b in ([pref[st]] if st in pref else range(9, -1, -1)):
                    if all(rel[st] < a or s > e for a, e in res[b]):
                        nx = min([a for a, e in res[b] if a > rel[st]] + [1000])
                        if best is None or nx < best:
                            ok, best = b, nx
            if ok is not None:
                break
            s += 1
        res[ok].append((s, rel[st]))
        blk[st], iss[st] = ok, s
        cnt[s] = cnt.get(s, 0) + 1
        cur = s
    return blk, iss


def setup(A):
    if OPT["ts"]:
        A("s_memrealtime s[100:101]")
    A(f"""
    s_cmp_ge_u32 s2, 256
    s_cbranch_scc1 L_exit
    s_load_dwordx8 s[60:67], s[0:1], 0
    s_load_dwordx2 s[68:69], s[0:1], 32
    s_load_dwordx8 s[72:79], s[0:1], 40
    s_load_dwordx2 s[80:81], s[0:1], 72
    s_load_dwordx2 s[82:83], s[0:1], 96
    v_lshrrev_b32 v1, 6, v0
    s_and_b32 s4, s2, 7
    v_readfirstlane_b32 {sW_ID}, v1
    s_bfe_u32 s5, s2, 0x10003
    s_lshr_b32 s6, s2, 4
    v_and_b32 v1, 63, v0
    v_lshlrev_b32 v{vL16}, 4, v1
    s_and_b32 {sI}, {sW_ID}, 3
    s_bfe_u32 {sHH}, {sW_ID}, 0x10001
    s_and_b32 {sQH}, {sW_ID}, 1
    s_lshl_b32 {sI4k}, {sI}, 12
    s_lshl_b32 {sI8k}, {sI}, 13
    s_lshl_b32 {sI64k}, {sI}, 16
    s_lshl_b32 {sKhd}, {sHH}, 17
    s_add_u32 {sKhd1}, {sKhd}, 0x40000
    s_mul_i32 {sKrot}, s4, {OPT["rotg"]}
    s_mul_i32 {sT}, s6, {OPT["rotb"]}
    s_add_u32 {sKrot}, {sKrot}, {sT}
    s_and_b32 {sKrot}, {sKrot}, 15
    s_xor_b32 {sT}, {sQH}, 1
    s_add_u32 {sKrot}, {sKrot}, {sT}
    s_lshl_b32 {sKrot}, {sKrot}, 13
    s_mov_b32 {sRot}, s6
    s_mul_i32 {sKVl}, {sHH}, {3*BLK}
    s_lshl_b32 {sT}, {sQH}, 13
    s_add_u32 {sKVl}, {sKVl}, {sT}
    s_lshl_b32 {sRotI}, s6, 18
    s_add_u32 {sRotI}, {sRotI}, {sI64k}
    s_mov_b32 {sC}, {f32bits(math.log2(math.e) / math.sqrt(128.0)):#x}
    s_mov_b32 {sT8}, 0x41000000
    s_waitcnt lgkmcnt(0)
    s_cmp_eq_u32 s5, 0
    s_cselect_b32 s60, s60, s72
    s_cselect_b32 s61, s61, s73
    s_cselect_b32 s62, s62, s74
    s_cselect_b32 s63, s63, s75
    s_cselect_b32 s64, s64, s76
    s_cselect_b32 s65, s65, s77
    s_cselect_b32 s66, s66, s78
    s_cselect_b32 s67, s67, s79
    s_cselect_b32 s68, s68, s80
    s_cselect_b32 s69, s69, s81
    s_cselect_b32 s7, 17, 19
    s_lshl_b32 s10, 1, s7
    s_lshl_b32 {sT}, s6, 16
    s_add_u32 s20, s60, {sT}
    s_addc_u32 s21, s61, 0
    s_and_b32 s21, s21, 0xffff
    s_mov_b32 s22, 0x10000
    s_mov_b32 s23, 0x20000
    s_lshl_b32 {sT}, s4, 10
    s_add_u32 s12, s66, {sT}
    s_addc_u32 s13, s67, 0
    s_and_b32 s13, s13, 0xffff
    s_sub_u32 s14, 0x400000, {sT}
    s_mov_b32 s15, 0x20000
    s_lshl_b32 {sT}, s6, 3
    s_add_u32 {sT}, {sT}, s4
    s_lshl_b32 {sT}, {sT}, s7
    s_bitcmp1_b32 {sW_ID}, 0
    s_cselect_b32 s8, s64, s62
    s_cselect_b32 s9, s65, s63
    s_add_u32 s8, s8, {sT}
    s_addc_u32 s9, s9, 0
    s_and_b32 s9, s9, 0xffff
    s_mov_b32 s11, 0x20000
    s_lshl_b32 {sT}, s4, 19
    s_add_u32 s24, s68, {sT}
    s_addc_u32 s25, s69, 0
    s_and_b32 s25, s25, 0xffff
    s_mov_b32 s26, 0x80000
    s_mov_b32 s27, 0x20000
    s_lshl_b32 {sT}, s5, 4
    s_add_u32 {sT}, {sT}, s6
    s_lshl_b32 {sT}, {sT}, 3
    s_add_u32 {sT}, {sT}, s4
    s_lshl_b32 {sT}, {sT}, 16
    s_add_u32 s28, s82, {sT}
    s_addc_u32 s29, s83, 0
    s_and_b32 s29, s29, 0xffff
    s_mov_b32 s30, 0x10000
    s_mov_b32 s31, 0x20000
    """)
    if OPT["ts"]:
        A(f"""
        s_lshl_b32 {sT}, s2, 3
        s_add_u32 {sT}, {sT}, {sW_ID}
        s_lshl_b32 {sT}, {sT}, 6
        s_add_u32 {sT}, {sT}, 0x8000000
        s_add_u32 s54, s82, {sT}
        s_addc_u32 s55, s83, 0
        """)
        for i in range(16):
            A(f"s_mov_b32 s{84+i}, 0")
        A("s_mov_b32 s66, 0\nv_mov_b32 v30, 0\nv_mov_b32 v31, 0")
        if OPT.get("trace"):
            A("v_writelane_b32 v31, s100, 63")


def patterns(A):
    A(f"""
    v_lshrrev_b32 v2, 5, v1
    v_and_b32 v3, 31, v1
    """)
    for p in range(4):
        A(f"""
        v_add_u32 v29, {(2*p)&3}, v2
        v_lshlrev_b32 v29, 2, v29
        v_xor_b32 v29, v29, v3
        v_lshlrev_b32 v29, 4, v29
        v_lshl_add_u32 v29, v2, 13, v29
        v_add_u32 v{vWo+p}, {2*p*8192 - p*1024}, v29
        """)


def patterns2(A):
    A(f"""
    v_lshrrev_b32 v2, 4, v1
    v_and_b32 v3, 15, v1
    v_lshlrev_b32 v19, 2, v2
    s_bitcmp1_b32 {sW_ID}, 0
    s_cselect_b64 vcc, -1, 0
    """)
    for p in range(4):
        A(f"""
        v_add_u32 v29, {4*p}, v2
        v_cndmask_b32 v29, v29, v19, vcc
        v_xor_b32 v29, v29, v3
        v_lshlrev_b32 v29, 4, v29
        v_lshl_add_u32 v{vKVo+p}, v2, 8, v29
        """)
    A(f"""
    v_and_b32 v2, 31, v1
    v_lshrrev_b32 v3, 5, v1
    v_and_b32 v19, 15, v1
    v_xor_b32 v19, v19, v3
    v_lshlrev_b32 v19, 4, v19
    v_lshl_add_u32 v{vPK}, v2, 8, v19
    v_lshl_add_u32 v19, v2, 9, v19
    s_lshl_b32 {sT}, {sQH}, 14
    v_add_u32 v{vPX}, {sT}, v19
    """)
    A(f"""
    v_bfe_u32 v32, v1, 4, 1
    v_bfe_u32 v33, v1, 2, 2
    v_and_b32 v34, 1, v1
    v_bfe_u32 v35, v1, 1, 1
    v_lshlrev_b32 v36, 1, v34
    v_or_b32 v36, v36, v35
    v_lshl_add_u32 v36, v32, 2, v36
    v_lshlrev_b32 v36, 3, v36
    v_lshl_add_u32 v36, v33, 6, v36
    v_lshlrev_b32 v37, 2, v3
    v_add_u32 v37, v37, v33
    v_lshl_add_u32 v{vPV}, v37, 8, v36
    v_lshlrev_b32 v37, 3, v3
    v_add_u32 v37, v37, v33
    v_lshl_add_u32 v38, v37, 9, v36
    s_lshl_b32 {sT}, {sHH}, 8
    v_add_u32 v{vPW}, {sT}, v38
    v_lshlrev_b32 v36, 2, v34
    v_lshl_add_u32 v36, v32, 1, v36
    v_add_u32 v36, v36, v35
    v_lshlrev_b32 v36, 3, v36
    v_lshl_add_u32 v36, v33, 6, v36
    v_lshl_add_u32 v38, v37, 10, v36
    s_lshl_b32 {sT}, {sHH}, 9
    v_add_u32 v{vPO}, {sT}, v38
    """)


def pre_x(S, issue_pre, preread, fine=False):
    A = S.A
    stamp(A, 0)
    if fine: stamp(A, 10, True)
    S.dma_x(0)
    patterns(A)
    issue_pre(-2)
    patterns2(A)
    if fine: stamp(A, 11, True)
    S.endslot(-2, barrier=False)
    if fine: stamp(A, 15, True)
    A("s_barrier")
    stamp(A, 7)
    S.read_x(0)
    issue_pre(-1)
    S.dma_x(1)
    if preread is not None:
        S.wslice("q", 0, None, preread, False)
    S.endslot(-1)
    stamp(A, 1)


def attn_loop(S, first_buf, n0, body_pre=None, tail=None, st=None, shifted=False, carry=False):
    A = S.A
    A(f"s_mov_b32 {sN}, 0")
    l = A.lab("L_attn")
    A(f"{l}:")
    for k in range(3):
        if st and k == 0:
            cstamp(A, 8, 2); cstamp(A, 13, 0); cstamp(A, 14, 4)
        if st and k == 1:
            cstamp(A, 12, 2)
        S.attn_step2((first_buf + k) % 3, extra=body_pre(k) if body_pre else {}, carry=carry)
        if st and k == 0:
            cstamp(A, 9, 2)
        tail(k)
        S.D.done = S.D.n
    S.drained()
    S.loop_end(l, 5)


def prog_b():
    w1, w2 = int(OPT["w1"]), int(OPT["w2"])
    per = int(OPT["wper"])
    look = int(OPT["look"])
    uq, uo = OPT["uq"], int(OPT["uo"])
    use, rd, rel, early = {}, {}, {}, {}
    for st in range(64):
        k = st & 15
        if st < 16:
            use[st] = st
        elif st < 32:
            use[st] = k if uq else w1 + (k * int(OPT['n1'])) // 16
        elif st < 48 - uo:
            use[st] = w2 + (k * int(OPT['n2'])) // 16
        else:
            use[st] = 49 + st - (48 - uo)
    lw = OPT["latew"] and uo == 16
    la, lb_ = int(OPT["la"]), int(OPT["lb"])
    if lw:
        for st in range(32, 64):
            k = st - 32
            use[st] = 47 if k < la else (48 if k < la + lb_ else 49 + k - la - lb_)
    E0 = use[48]
    NS = use[63] + 1
    for st in range(64):
        k = st & 15
        win = (16 <= st < 32 and not uq) or (32 <= st < 48 - uo)
        rd[st] = use[st] - 1 if (k == 0 or not win) else use[st - 1]
        rel[st] = rd[st] if win else use[st]
        if lw and st >= 32:
            rd[st] = 47 if st == 32 else use[st - 1]
            rel[st] = rd[st] if rd[st] == 47 else use[st]
        early[st] = rd[st] - (2 if win else look)
        if st >= 48 - uo:
            early[st] = max(early[st], int(OPT["estart"]))
    assert use[31] <= 31 and w2 >= 34
    aop = OPT["aop"]
    order = ([x for i in range(16) for x in (i, 16 + i)] if uq else list(range(32))) + list(range(48 if aop else 32, 64))
    kv2 = int(OPT["kv2"])
    kvs = int(OPT["kvstart"])
    reserved = {0: [(-2, -1), (kvs, 46)], 3: [(-2, XH2), (kvs, 46)], 1: [(-2, -1), (kvs + 2, E0)], 4: [(-2, XH2), (kvs + 2, E0)],
                2: [(kv2, 48)], 5: [(kv2, 48)], 8: [(33, 34)], 9: [(33, 34)]}
    blk, iss = schedule_w(order, rd, rel, early, reserved, lambda s, st: True,
                          lambda s: int(OPT["first"]) * (2 if uq else 1) if s < 0 else int(OPT["maxiss"]) + (1 if uq else 0),
                          {} if uq else dict(enumerate([2, 5, 9, 8, 7, 6, 0, 3, 1, 4, 2, 5, 9, 8, 7, 6])))
    by_slot, at_slot = {}, {}
    for st in order:
        by_slot.setdefault(iss[st], []).append(st)
        at_slot.setdefault(use[st], []).append(st)
    if OPT.get("verbose"):
        print("B sched", [(st, iss[st], rd[st], blk[st]) for st in order], file=sys.stderr)
    MB = 8 * BLK
    LB = max(iss[63] + int(OPT['lbd']), E0)
    OPT['lwB'] = min(b for b in range(10) if all(rel[st] <= LB for st in order if blk[st] == b))

    def w_atoms(S, n, G=None):
        at = []
        for st in by_slot.get(n, []):
            if uq and st < 32 and (st >> 4) != G:
                continue
            at += S.dma_w(st, blk[st], min(rd[st], LB + 1))
        return at

    def kv_atoms(S, n):
        beta = n - 15
        if beta < 2 or beta > 31:
            return []
        return S.dma_kv_b(beta, 0, 17 + beta) + S.dma_kv_b(beta, 1, 17 + beta)

    def slices(S, n, lo, hi, kind, at):
        sts = [st for st in at_slot.get(n, []) if lo <= st < hi]
        pre = [st for st in range(lo, hi) if rd[st] == n and not (st > lo and use[st - 1] == n)]
        if not sts and not pre:
            S.emit(at)
            return
        nparts = len(sts) + len(pre)
        chunk = (len(at) + nparts - 1) // nparts
        for st in [p for p in pre if use[p] == n]:
            S.wslice(kind, 0, None, blk[st], False, at[:chunk])
            at = at[chunk:]
        for st in sts:
            nxt = st + 1 if (st + 1 < hi and rd[st + 1] == n and st + 1 not in pre) else None
            S.wslice(kind, st & 15, blk[st], blk[nxt] if nxt is not None else None, st in (0, 16, 48 if aop else 32), at[:chunk])
            at = at[chunk:]
        for st in [p for p in pre if use[p] != n]:
            S.wslice(kind, 0, None, blk[st], False, at[:chunk])
            at = at[chunk:]

    S = G0 = Stream()
    A = S.A
    tail = lambda k: S.A("s_waitcnt vmcnt(0) lgkmcnt(0)\ns_barrier")
    pre_x(S, lambda n: S.emit(w_atoms(S, n, 0)) if uq else None, blk[0])
    A(f"s_mul_i32 {sKU}, {sHH}, {3*BLK}")
    for n in range(16):
        at = w_atoms(S, n, 0) if uq else []
        if kvs <= n < kvs + 4:
            k = n - kvs
            at = at + S.dma_kv_b((k >> 1) - 1, k & 1, 16 + (k >> 1))
        if kv2 <= n < kv2 + 2:
            at = at + S.dma_kv_b(1, n - kv2, 18)
        if n == 8: stamp(A, 10, True)
        if n == 12: stamp(A, 11, True)
        if n == XH2:
            xl = S.read_x(1)
        slices(S, n, 0, 16, "q", at)
        if n == XH2:
            S.D.need(xl)
        S.endslot(n, drain=False)
    stamp(A, 2)
    S.qfinal()
    bs = OPT["bshift"]
    S.attn_pro(0, sKU, bs)
    S.endslot(16)
    attn_loop(S, 1, 17, tail=tail, st=True, shifted=bs)
    count_clear(A)
    S.attn_step2(1, last=True)
    S.endslot(32)
    stamp(A, 3)
    for n in range(33, NS):
        at = []
        must = None
        if n <= 48:
            at = w_atoms(S, n) + kv_atoms(S, n)
        if n == 33:
            S.onorm(at)
            at = []
            A(f"""
            s_add_u32 {sT}, {sI8k}, {MB}
            v_add_u32 v{vA+8}, {sT}, v{vL16}
            v_xor_b32 v{vA+9}, 0x4000, v{vA+8}
            """)
            for i in range(8):
                S.D.issue(f"ds_write_b128 v{vA+8}, {vr(vQ+4*i,4)} offset:{1024*i}")
        if n == 34:
            for i in range(8):
                S.D.issue(f"ds_read_b128 {vr(vOP+4*i,4)}, v{vA+9} offset:{1024*i}")
        if n == 41: stamp(A, 15, True)
        if n == 49:
            stamp(A, 4)
        if n == E0:
            ids = S.read_o(1, True, True)
            S.D.need(ids[0])
            must = ids[-1]
        slices(S, n, 48 if aop else 32, 64, "o", at)
        if must is not None:
            S.D.need(must)
        if n <= LB:
            S.endslot(n, drain=(n < 48))
    stamp(A, 5)
    S.store_partial(OPT['st'])
    stamp(A, 6)
    finish(A)
    S = G1 = Stream()
    A = S.A
    if OPT['prio']:
        A(f"s_setprio {OPT['prio']}")
    pre_x(S, lambda n: S.emit(w_atoms(S, n, 1)), blk[16] if uq else None)
    for n in range(32):
        if n == 16: stamp(A, 2)
        if n == 20: stamp(A, 8, True)
        if n == 21: stamp(A, 9, True)
        if n == 25: stamp(A, 10, True)
        if n == 28: stamp(A, 11, True)
        if n == 29: stamp(A, 12, True)
        at = w_atoms(S, n, 1) + kv_atoms(S, n)
        if n == XH2:
            S.D.need(S.read_x(1))
        slices(S, n, 16, 32, "q", at)
        if n == use[31] + 1:
            S.qfinal()
        S.endslot(n, drain=not (uq and n < 16))
    S.emit(w_atoms(S, 32) + kv_atoms(S, 32))
    if OPT['prio']:
        A('s_setprio 0')
    if use[31] == 31:
        S.qfinal()
    A(f"s_mul_i32 {sKU}, {sHH}, {3*BLK}")
    S.attn_pro(1, sKU, bs)
    S.endslot(32)
    stamp(A, 3)
    attn_loop(S, 2, 33, tail=tail, shifted=bs)
    (S.attn_step2 if bs else S.attn_step)(2, last=True)
    S.onorm()
    S.write_o(1)
    S.endslot(48)
    stamp(A, 4)
    if OPT['prio']:
        A(f"s_setprio {OPT['prio']}")
    for n in range(49, LB + 1):
        S.emit(w_atoms(S, n))
        S.endslot(n)
    stamp(A, 5)
    finish(A)
    return G0, G1


def prog_a():
    aop = OPT["aop"]
    NST = 80 if aop else 64
    use = {st: (st & 15 if st < 32 else st + 1) for st in range(NST)}
    rd = {st: use[st] - 1 for st in range(NST)}
    order = [x for i in range(16) for x in (i, 16 + i)] + list(range(32, NST))
    ks = int(OPT['akvstart'])
    g0s, g1s = int(OPT['ag0']), int(OPT['ag1'])
    AD = int(OPT['ad'])
    pre_slots = [g0s, g0s, g0s, g1s, g1s, g1s]
    seq = [(9, 8), (7, 6), (2, 5), (0, 1)] + [(9, 8), (7, 6), (2, 5), (3, 4), (0, 1)] * 3
    pref = {16 * g + i: seq[i][g] for i in range(16) for g in range(2)}
    reserved = {b: [(pre_slots[b], 30 if b < 3 else 32)] for b in range(6)}
    for b in (0, 1, 3, 4):
        reserved[b].append((-2, -1 if b < 3 else XH2))
    reserved[0].append((33, 34)); reserved[3].append((33, 34)); reserved[1].append((33, 49)); reserved[4].append((33, 49))
    early = {st: -2 if st < 32 else 29 for st in range(NST)}
    blk, iss = schedule_w(order, rd, use, early, reserved, lambda s, st: not (15 < s < 29 or s in (30, 31)),
                          lambda s: int(OPT['afirst']) if s == -2 else 4, pref)
    if OPT.get("verbose"):
        print("A sched", [(st, iss[st], blk[st]) for st in order], file=sys.stderr)
    by_slot = {}
    for st in order:
        by_slot.setdefault(iss[st], []).append(st)
    LB = iss[NST - 1] + int(OPT["lbd"])
    OPT['lwA'] = min(b for b in range(10) if all(use[st] <= LB for st in order if blk[st] == b))

    res = []
    for G in range(2):
        S = Stream()
        A = S.A

        def w_atoms(n):
            at = []
            for st in by_slot.get(n, []):
                owner = (st >> 4) if st < 32 else 1
                if owner == G:
                    at += S.dma_w(st, blk[st], min(rd[st], LB + 1))
            return at

        m1n, m1t = int(OPT["m1n"]), int(OPT["m1t"])
        if m1n:
            A(f"""
            s_lshl_b32 {sT}, s6, 3
            s_add_u32 {sT}, {sT}, s4
            s_lshl_b32 {sT}, {sT}, 19
            s_bitcmp1_b32 {sW_ID}, 0
            s_cselect_b32 s60, s76, s74
            s_cselect_b32 s61, s77, s75
            s_add_u32 s60, s60, {sT}
            s_addc_u32 s61, s61, 0
            s_and_b32 s61, s61, 0xffff
            s_mov_b32 s62, 0x80000
            s_mov_b32 s63, 0x20000
            v_lshlrev_b32 v29, 3, v{vL16}
            """)
            for t in range(m1t + G, m1t + m1n, 2):
                A(f"""
                s_add_u32 {sT}, {sKrot}, {(t & 15) * 8192}
                s_and_b32 {sT}, {sT}, 0x1ffff
                s_add_u32 {sT}, {sT}, {sKhd1 if t >= 16 else sKhd}
                buffer_load_dword v12, v29, {sPF}, {sT} offen{OPT["m1pol"]}
                """)
        pre_x(S, lambda n: S.emit(w_atoms(n)), blk[16 * G], True)
        A(f"""
        s_lshl_b32 {sKoff}, {sHH}, 12
        s_lshl_b32 {sKI}, {sQH}, 13
        s_add_u32 {sKI}, {sKI}, {sKoff}
        s_add_u32 {sKIend}, {sKI}, {6*BLK}
        s_add_u32 {sKoff}, {sKoff}, {sKrot}
        s_add_u32 {sKoff}, {sKoff}, {15*8192}
        """)
        for n in range(17):
            if n == XH2:
                xl = S.read_x(1)
            if n < 16:
                S.wslice("q", n, blk[16 * G + n], blk[16 * G + n + 1] if n < 15 else None, n == 0, w_atoms(n))
            if n == XH2:
                S.D.need(xl)
            if G == 0:
                for j in range(AD + 1 if AD else 6):
                    if pre_slots[j] == n:
                        S.dma_kv_a((16 + j) if AD else (16 if j < 3 else 19), first=(j == 0))
            if n < 16:
                S.endslot(n, drain=False)
        stamp(A, 2)
        if G == 1:
            A(f"""
            s_lshl_b32 {sT}, s4, 19
            s_add_u32 s16, s80, {sT}
            s_addc_u32 s17, s81, 0
            s_and_b32 s17, s17, 0xffff
            s_mov_b32 s18, 0x80000
            s_mov_b32 s19, 0x20000
            s_lshl_b32 s65, {sRot}, 15
            s_add_u32 s65, s65, {sI8k}
            v_lshlrev_b32 v{vTch}, 3, v{vL16}
            s_lshl_b32 {sT}, s6, 3
            s_add_u32 {sT}, {sT}, s4
            s_lshl_b32 {sT}, {sT}, 19
            s_bitcmp1_b32 {sW_ID}, 0
            s_cselect_b32 s60, s76, s74
            s_cselect_b32 s61, s77, s75
            s_add_u32 s60, s60, {sT}
            s_addc_u32 s61, s61, 0
            s_and_b32 s61, s61, 0xffff
            s_mov_b32 s62, 0x80000
            s_mov_b32 s63, 0x20000
            s_lshl_b32 {sPFoff}, {sHH}, 17
            """)
        S.qfinal()
        S.attn_pro(0, 0, True)
        if AD:
            S.endslot(16)
        else:
            A("s_waitcnt lgkmcnt(0)")
        lim = lambda k: (15 - AD - k) // 3 + 1

        def guarded(cond, f):
            def g():
                sk = A.lab("L_sk")
                A(cond + f"\ns_cbranch_scc0 {sk}")
                f()
                A(f"{sk}:")
            return g

        def body_pre(k):
            e = {}
            if G == 0:
                two = lambda p: (lambda: (S.dma_kv_a_part(p), S.dma_kv_a_part(p + 1)))
                if k == 2:
                    c, c3 = f"s_cmp_lt_u32 {sN}, 4", f"s_cmp_lt_u32 {sN}, 3"
                    e = {-1: guarded(c, lambda: (two(0)(), two(2)())), 0: guarded(c, two(0)), 1: guarded(c, two(2)),
                         2: guarded(c3, two(0)), 3: guarded(c3, two(2))}
                if AD:
                    four = lambda: (two(0)(), two(2)())
                    e = {-1: guarded(f"s_cmp_lt_u32 {sN}, {lim(k)}", four) if lim(k) < 5 else four}
                elif OPT["aspread"]:
                    if k == 2:
                        e = {-1: guarded(c, two(0)), 1: guarded(c, two(2)), 4: guarded(c, two(0)), 7: guarded(c, two(2))}
                    if k == 0:
                        c = f"s_sub_u32 {sT}, {sN}, 1\ns_cmp_lt_u32 {sT}, 3"
                        e = {-1: guarded(c, two(0)), 1: guarded(c, two(2))}
            else:
                if OPT["wopf"] and OPT["wosplit"]:
                    it = int(OPT['wopfit'])

                    def tch(srd, hi):
                        return lambda: A(f"s_mov_b32 exec_{'lo' if hi else 'hi'}, 0\n"
                                         f"buffer_load_dword v12, v{vTch}, {srd}, s65 offen\ns_mov_b64 exec, -1")
                    if k < 2:
                        e[5] = guarded(f"s_cmp_eq_u32 {sN}, {it}", tch('s[16:19]', k))
                        e[6] = guarded(f"s_cmp_eq_u32 {sN}, {it + 1}", tch(sWO, k))
                elif OPT["wopf"] and k != 1:
                    e[5] = guarded(f"s_cmp_eq_u32 {sN}, {OPT['wopfit']}",
                                   lambda: A(f"buffer_load_dword v12, v{vTch}, {sWO if k else 's[16:19]'}, s65 offen"))
                if k == 0:
                    e[1] = guarded(f"s_cmp_eq_u32 {sN}, 4", lambda: S.emit(w_atoms(29)))
            return e

        def tail(k):
            if int(OPT["asleep"]):
                A(f"s_sleep {OPT['asleep']}")
            if k == 1:
                for r in range(12):
                    A(f"v_xor_b32 v{vAK+r}, 0xc000, v{vAK+r}")
            if AD:
                if G == 1:
                    if k == 1:
                        guarded(f"s_cmp_eq_u32 {sN}, 4", lambda: A("s_waitcnt vmcnt(0)"))()
                else:
                    if lim(k) < 5 and AD > 1:
                        guarded(f"s_cmp_ge_u32 {sN}, {lim(k)}", lambda: A("s_waitcnt vmcnt(0)"))()
                    A(f"s_waitcnt vmcnt({4 * (AD - 1)})")
                A("s_barrier")
            elif k == 1:
                if G == 1:
                    guarded(f"s_cmp_eq_u32 {sN}, 4", lambda: A("s_waitcnt vmcnt(0)"))()
                    A("s_waitcnt lgkmcnt(0)\ns_barrier")
                else:
                    A("s_waitcnt vmcnt(0) lgkmcnt(0)\ns_barrier")
            elif OPT["abar"]:
                A("s_barrier")
        attn_loop(S, 1, 17, body_pre, tail, st=True, shifted=True, carry=True)
        S.emit(w_atoms(32))
        S.attn_step2(1, last=True, carry=True)
        S.onorm()
        if G == 0:
            S.wslice("o", 0, None, blk[32], False)
        S.endslot(32, drain=(G == 1))
        stamp(A, 3)
        if G == 0:
            count_clear(A)
        must = S.write_o(G)
        if G == 0:
            for n in range(33, NST + 1):
                st = n - 1
                if n == 34:
                    must = S.read_o(0, False, True)[-1]
                if n == 49:
                    stamp(A, 4)
                    ids = S.read_o(1, True, True)
                    S.D.need(ids[0])
                    must = ids[-1]
                if n == 60 and aop:
                    A(f"""
                    s_waitcnt lgkmcnt(0)
                    s_load_dwordx2 s[70:71], s[0:1], 88
                    s_lshl_b32 {sT}, s6, 2
                    s_add_u32 {sT}, {sT}, 128
                    v_mov_b32 v{vA+8}, {sT}
                    s_lshl_b32 {sT}, s6, 3
                    s_add_u32 {sT}, {sT}, s4
                    s_lshl_b32 {sT2}, {sT}, 16
                    s_add_u32 {sT2}, {sT2}, {XP_OFF}
                    s_add_u32 s60, s82, {sT2}
                    s_addc_u32 s61, s83, 0
                    s_and_b32 s61, s61, 0xffff
                    s_mov_b32 s62, 0x10000
                    s_mov_b32 s63, 0x20000
                    s_lshl_b32 {sT}, {sT}, 15
                    s_add_u32 {sT}, {sT}, {HO_OFF}
                    s_add_u32 {sT}, {sT}, {sI8k}
                    v_add_u32 v{vA+4}, {sT}, v{vL16}
                    v_add_u32 v{vA+5}, 0x1000, v{vA+4}
                    v_xor_b32 v{vA+6}, 0x4000, v{vA+4}
                    v_xor_b32 v{vA+7}, 0x4000, v{vA+5}
                    s_mov_b32 s76, 0
                    s_waitcnt lgkmcnt(0)
                    L_a_poll:
                    global_load_dword v{vA+9}, v{vA+8}, s[70:71] sc1
                    s_add_u32 s76, s76, 1
                    s_waitcnt vmcnt(0)
                    v_readfirstlane_b32 s77, v{vA+9}
                    s_cmp_gt_u32 s76, 0x40000
                    s_cbranch_scc1 L_a_go
                    s_lshr_b32 s77, s77, s4
                    s_bitcmp1_b32 s77, 0
                    s_cbranch_scc1 L_a_go
                    s_sleep 8
                    s_branch L_a_poll
                    L_a_go:
                    """)
                    S.D.done = S.D.n
                    for i in range(8):
                        A(f"global_load_dwordx4 {vr(vQ+4*i,4)}, v{vA+4+(i>>2)}, s[82:83] offset:{(i&3)*1024} sc1")
                if n == 65:
                    stamp(A, 5)
                    S.store_partial(OPT['sta'], tmp=vOP, wait=False)
                    A("s_nop 1")
                    for i in range(8):
                        A(f"global_load_dwordx4 {vr(vOP+4*i,4)}, v{vA+6+(i>>2)}, s[82:83] offset:{(i&3)*1024} sc1")
                    A("s_waitcnt vmcnt(24)")
                if n == 73:
                    A("s_waitcnt vmcnt(0)")
                S.wslice("o", st & 15, blk[st], blk[st + 1] if st < NST - 1 else None, n in (33, 65))
                if must is not None:
                    S.D.need(must)
                    must = None
                if n <= LB:
                    S.endslot(n, drain=False)
            if aop:
                S.store_partial(OPT['sta'], srd="s[60:63]")
            else:
                stamp(A, 5)
                S.store_partial(OPT['sta'])
            stamp(A, 6)
        else:
            for n in range(33, LB + 1):
                S.emit(w_atoms(n))
                S.endslot(n)
            stamp(A, 5)
            for t in range(int(OPT["lt0"]), 32):
                A(f"s_add_u32 {sT}, {sPFoff}, {(t >> 4) * 262144 + (t & 15) * 8192}")
                A(f"buffer_load_dword v12, v{vTch}, {sPF}, {sT} offen")
            stamp(A, 6)
        finish(A)
        res.append(S)
    return res


MBX = 0x2000000


def early_clear(A):
    A(f"""
    s_cmp_eq_u32 {sW_ID}, 1
    s_cbranch_scc0 L_noclr
    s_lshl_b32 {sT}, s2, 8
    s_add_u32 {sT}, {sT}, {MBX}
    v_lshlrev_b32 v2, 2, v1
    v_add_u32 v2, {sT}, v2
    v_mov_b32 v3, 0
    s_mov_b64 exec, 0xff
    global_store_dword v2, v3, s[82:83] sc1
    s_mov_b64 exec, -1
    L_noclr:
    s_load_dwordx2 s[70:71], s[0:1], 88
    """)


def count_clear(A):
    l = A.lab("L_cc")
    A(f"""
    s_cmp_eq_u32 {sW_ID}, 1
    s_cbranch_scc0 {l}
    s_lshr_b32 {sT}, s2, 3
    s_lshl_b32 {sT}, {sT}, 2
    v_mov_b32 v2, {sT}
    v_mov_b32 v3, 1
    s_mov_b64 exec, 1
    global_atomic_add v2, v3, s[70:71]
    s_mov_b64 exec, -1
    {l}:
    """)


def final_reduce(A):
    A(f"""
    L_final:
    s_load_dwordx4 s[68:71], s[0:1], 80
    s_lshr_b32 s72, s2, 3
    s_lshl_b32 {sT}, s5, 4
    s_add_u32 {sT}, {sT}, s6
    s_lshl_b32 {sT}, {sT}, 19
    s_add_u32 s16, s82, {sT}
    s_addc_u32 s17, s83, 0
    s_and_b32 s17, s17, 0xffff
    s_mov_b32 s18, 0x80000
    s_mov_b32 s19, 0x20000
    s_lshl_b32 s73, s4, 3
    s_add_u32 s73, s73, {sW_ID}
    s_lshl_b32 s73, s73, 10
    v_and_b32 v2, 31, v1
    v_lshrrev_b32 v3, 5, v1
    v_lshlrev_b32 v2, 11, v2
    v_lshl_add_u32 v2, v3, 5, v2
    s_lshl_b32 s74, s6, 17
    s_lshl_b32 {sT}, s5, 10
    s_add_u32 s74, s74, {sT}
    s_bfe_u32 {sT}, s4, 0x10001
    s_lshl_b32 {sT}, {sT}, 16
    s_add_u32 s74, s74, {sT}
    s_lshr_b32 {sT}, s4, 2
    s_lshl_b32 {sT}, {sT}, 9
    s_add_u32 s74, s74, {sT}
    s_and_b32 {sT}, s4, 1
    s_lshl_b32 {sT}, {sT}, 8
    s_add_u32 s74, s74, {sT}
    s_lshr_b32 {sT}, {sW_ID}, 1
    s_lshl_b32 {sT}, {sT}, 6
    s_add_u32 s74, s74, {sT}
    s_lshl_b32 {sT}, {sQH}, 4
    s_add_u32 s74, s74, {sT}
    s_mov_b32 s75, 0xffff0000
    s_lshl_b32 s76, s72, 11
    s_lshl_b32 {sT}, s4, 2
    s_add_u32 s76, s76, {sT}
    s_add_u32 s76, s76, {MBX}
    v_lshlrev_b32 v7, 8, v1
    v_add_u32 v7, s76, v7
    s_lshl_b32 s76, s2, 8
    s_add_u32 s76, s76, {MBX}
    v_and_b32 v8, 7, v1
    v_lshlrev_b32 v8, 2, v8
    v_add_u32 v8, s76, v8
    s_lshl_b32 s72, s72, 2
    v_mov_b32 v4, s72
    v_mov_b32 v5, 1
    s_mov_b32 s76, 0
    s_waitcnt lgkmcnt(0)
    s_mov_b32 s20, s68
    s_and_b32 s21, s69, 0xffff
    s_mov_b32 s22, 0x200000
    s_mov_b32 s23, 0x20000
    s_cmp_eq_u32 {sW_ID}, 5
    s_cbranch_scc0 L_fin_t1
    L_fin_clr:
    global_load_dword v6, v4, s[70:71] sc1
    s_add_u32 s76, s76, 1
    s_waitcnt vmcnt(0)
    v_readfirstlane_b32 s77, v6
    s_cmp_gt_u32 s76, 0x40000
    s_cbranch_scc1 L_fin_t1
    s_cmp_ge_u32 s77, 8
    s_cbranch_scc1 L_fin_t1
    s_sleep 16
    s_branch L_fin_clr
    L_fin_t1:
    s_cmp_eq_u32 s5, 0
    s_cselect_b32 {sT}, {OPT["lwA"]}, {OPT["lwB"]}
    s_lshl_b32 {sT}, {sT}, 14
    v_mov_b32 v9, {sT}
    v_mov_b32 v6, 0
    s_cmp_eq_u32 {sW_ID}, 7
    s_cbranch_scc0 L_fin_nz
    ds_write_b32 v9, v6
    L_fin_nz:
    s_waitcnt vmcnt(0) lgkmcnt(0)
    s_barrier
    s_cmp_eq_u32 {sW_ID}, 0
    s_cbranch_scc0 L_fin_nosig
    s_mov_b64 exec, 0xff
    global_store_dword v7, v5, s[82:83] sc1
    s_mov_b64 exec, -1
    L_fin_nosig:
    s_mov_b32 s76, 0
    s_mov_b32 s78, 0
    L_fin_poll:
    s_cmp_eq_u32 {sW_ID}, 7
    s_cbranch_scc1 L_fin_pg
    s_sleep 1
    ds_read_b32 v6, v9
    s_waitcnt lgkmcnt(0)
    v_readfirstlane_b32 s77, v6
    s_branch L_fin_pj
    L_fin_pg:
    global_load_dword v6, v8, s[82:83] sc1
    s_add_u32 s76, s76, 1
    s_waitcnt vmcnt(0)
    v_cmp_eq_u32 vcc, 1, v6
    s_cmp_gt_u32 s76, 0x40000
    s_cselect_b32 s77, 0xff, 0
    s_or_b32 s77, s77, vcc_lo
    s_and_b32 s77, s77, 0xff
    v_mov_b32 v6, s77
    ds_write_b32 v9, v6
    L_fin_pj:
    s_andn2_b32 s79, s77, s78
    s_or_b32 s78, s78, s77
    """)
    for j in range(8):
        A(f"""
        s_bitcmp1_b32 s79, {j}
        s_cbranch_scc0 L_fin_s{j}
        s_add_u32 {sT}, s73, {j*0x10000}
        buffer_load_dwordx4 {vr(80+4*j,4)}, v{vL16}, s[16:19], {sT} offen sc1
        L_fin_s{j}:
        """)
    A("""
    s_cmp_eq_u32 s78, 0xff
    s_cbranch_scc0 L_fin_poll
    s_waitcnt vmcnt(0)
    """)
    for j in range(8):
        for i in range(4):
            r = 80 + 4 * j + i
            if j == 0:
                A(f"v_lshlrev_b32 v{64+2*i}, 16, v{r}")
                A(f"v_and_b32 v{65+2*i}, s75, v{r}")
            else:
                A(f"v_lshlrev_b32 v72, 16, v{r}")
                A(f"v_and_b32 v73, s75, v{r}")
                A(f"v_add_f32 v{64+2*i}, v{64+2*i}, v72")
                A(f"v_add_f32 v{65+2*i}, v{65+2*i}, v73")
    for i in range(4):
        A(f"v_cvt_pk_bf16_f32 v{76+i}, v{64+2*i}, v{65+2*i}")
    A("buffer_store_dwordx4 v[76:79], v2, s[20:23], s74 offen")
    if OPT["ts"]:
        A("s_waitcnt vmcnt(0)")
        stamp(A, 1)
    stamps_out(A)
    A("s_endpgm")


def finish(A):
    if OPT["fuse"]:
        A("s_branch L_final")
    else:
        stamps_out(A)
        A("s_endpgm")


def reduce_kernel(A):
    A(f"""
    s_cmp_ge_u32 s2, 512
    s_cbranch_scc1 L_exit2
    {"s_memrealtime s[24:25]" if OPT["ts"] else ""}
    s_load_dwordx2 s[4:5], s[0:1], 96
    s_load_dwordx2 s[6:7], s[0:1], 80
    v_lshlrev_b32 v1, 4, v0
    s_lshr_b32 s16, s2, 4
    s_lshl_b32 s17, s16, 19
    s_and_b32 s18, s2, 15
    s_lshl_b32 s18, s18, 12
    s_add_u32 s17, s17, s18
    s_waitcnt lgkmcnt(0)
    s_mov_b32 s8, s4
    s_and_b32 s9, s5, 0xffff
    s_mov_b32 s10, 0x1000000
    s_mov_b32 s11, 0x20000
    s_mov_b32 s12, s6
    s_and_b32 s13, s7, 0xffff
    s_mov_b32 s14, 0x200000
    s_mov_b32 s15, 0x20000
    """)
    for j in range(8):
        A(f"buffer_load_dwordx4 {vr(8+4*j,4)}, v1, s[8:11], s17 offen")
        if j < 7:
            A("s_add_u32 s17, s17, 0x10000")
    A(f"""
    v_and_b32 v2, 31, v0
    v_bfe_u32 v3, v0, 5, 1
    v_bfe_u32 v4, v0, 6, 1
    v_bfe_u32 v5, v0, 7, 1
    v_lshlrev_b32 v2, 11, v2
    v_lshl_add_u32 v2, v3, 5, v2
    v_lshl_add_u32 v2, v4, 4, v2
    v_lshl_add_u32 v2, v5, 6, v2
    s_and_b32 s18, s16, 15
    s_lshl_b32 s18, s18, 17
    s_lshr_b32 s19, s16, 4
    s_lshl_b32 s19, s19, 10
    s_add_u32 s18, s18, s19
    s_bfe_u32 s19, s2, 0x10002
    s_lshl_b32 s19, s19, 16
    s_add_u32 s18, s18, s19
    s_bfe_u32 s19, s2, 0x10003
    s_lshl_b32 s19, s19, 9
    s_add_u32 s18, s18, s19
    s_and_b32 s19, s2, 3
    s_lshl_b32 s19, s19, 7
    s_add_u32 s18, s18, s19
    s_mov_b32 s20, 0xffff0000
    s_waitcnt vmcnt(7)
    """)
    for i in range(4):
        A(f"v_lshlrev_b32 v{40+2*i}, 16, v{8+i}")
        A(f"v_and_b32 v{41+2*i}, s20, v{8+i}")
    for j in range(1, 8):
        A(f"s_waitcnt vmcnt({7-j})")
        for i in range(4):
            A(f"v_lshlrev_b32 v48, 16, v{8+4*j+i}")
            A(f"v_and_b32 v49, s20, v{8+4*j+i}")
            A(f"v_add_f32 v{40+2*i}, v{40+2*i}, v48")
            A(f"v_add_f32 v{41+2*i}, v{41+2*i}, v49")
    for i in range(4):
        A(f"v_cvt_pk_bf16_f32 v{52+i}, v{40+2*i}, v{41+2*i}")
    A("buffer_store_dwordx4 v[52:55], v2, s[12:15], s18 offen")
    if OPT["ts"]:
        A("""
        s_waitcnt vmcnt(0)
        s_memrealtime s[26:27]
        s_lshl_b32 s18, s2, 3
        s_add_u32 s18, s18, 0x8100000
        v_mov_b32 v2, s18
        s_waitcnt lgkmcnt(0)
        v_mov_b32 v4, s24
        v_mov_b32 v5, s26
        global_store_dwordx2 v2, v[4:5], s[4:5]
        """)
    A("L_exit2:")
    A("s_endpgm")


def kd(name, vg, sg):
    return f""".amdhsa_kernel {name}
  .amdhsa_next_free_vgpr {vg}
  .amdhsa_next_free_sgpr {sg}
  .amdhsa_accum_offset {vg}
  .amdhsa_group_segment_fixed_size 0
  .amdhsa_kernarg_size 104
  .amdhsa_user_sgpr_count 2
  .amdhsa_user_sgpr_kernarg_segment_ptr 1
  .amdhsa_system_sgpr_workgroup_id_x 1
.end_amdhsa_kernel
"""


def build(code_slice=1024):
    Asm.nlab = 0
    out = HEADER
    kn = NAME + "_kernel" if OPT["fuse"] else "attn_kernel"
    if OPT["fuse"]:
        out += f"; @launch grid=(256,1,1) block=(512,1,1) lds={LDS_BYTES}\n"
    else:
        out += f"; @launch kernel=attn_kernel grid=(256,1,1) block=(512,1,1) lds={LDS_BYTES}\n"
        out += "; @launch kernel=reduce_kernel grid=(512,1,1) block=(256,1,1) lds=0\n"
    out += '.amdgcn_target "amdgcn-amd-amdhsa--gfx950"\n.text\n'
    A = Asm()
    A.L.append(f".globl {kn}\n.p2align 8\n.type {kn},@function\n{kn}:")
    setup(A)
    if OPT["codepf"]:
        A(f"""
        s_cmp_eq_u32 {sW_ID}, 0
        s_cbranch_scc0 L_nopf
        s_getpc_b64 s[58:59]
        s_lshr_b32 {sT}, s2, 3
        s_mul_i32 {sT}, {sT}, {code_slice}
        v_lshlrev_b32 v3, 3, v{vL16}
        v_add_u32 v3, {sT}, v3
        v_cmp_gt_u32 vcc, {code_slice//128}, v1
        s_and_saveexec_b64 s[70:71], vcc
        global_load_dword v12, v3, s[58:59]
        s_mov_b64 exec, -1
        L_nopf:
        """)
    early_clear(A)
    A(f"""
    s_lshr_b32 {sT}, {sW_ID}, 2
    s_lshl_b32 {sT2}, s5, 1
    s_or_b32 {sT}, {sT}, {sT2}
    s_cmp_eq_u32 {sT}, 1
    s_cbranch_scc1 L_AG1
    s_cmp_eq_u32 {sT}, 2
    s_cbranch_scc1 L_BG0
    s_cmp_eq_u32 {sT}, 3
    s_cbranch_scc1 L_BG1
    """)
    a0, a1 = prog_a()
    b0, b1 = prog_b()
    for lab, S in (("L_AG0", a0), ("L_AG1", a1), ("L_BG0", b0), ("L_BG1", b1)):
        A(f"{lab}:")
        A.L += S.A.L
        for R in S.rare:
            A.L += R.L
    if OPT["fuse"]:
        final_reduce(A)
    A("L_exit:")
    A("s_endpgm")
    if not OPT["fuse"]:
        A.L.append(".globl reduce_kernel\n.p2align 8\n.type reduce_kernel,@function\nreduce_kernel:")
        reduce_kernel(A)
    out += A.text()
    out += '.section .rodata,"a"\n.p2align 6\n' + kd(kn, 256, 102)
    if not OPT["fuse"]:
        out += ".p2align 6\n" + kd("reduce_kernel", 56, 32)
    return out


if __name__ == "__main__":
    path = sys.argv[1]
    for kv in sys.argv[2:]:
        k, v = kv.split("=")
        if k in ("ts", "kv_nt", "w_nt", "verbose", "wopf", "codepf", "bshift", "ashift", "clk", "uq", "trace", "fuse", "aop", "abar", "aspread", "wosplit", "latew"):
            OPT[k] = v == "1"
        else:
            OPT[k] = v.replace("_", " ")
    import subprocess, tempfile, os
    txt = build()
    with tempfile.TemporaryDirectory() as d:
        open(d + "/a.s", "w").write(txt)
        subprocess.check_call(["clang", "-x", "assembler", "-target", "amdgcn-amd-amdhsa", "-mcpu=gfx950", "-c", d + "/a.s", "-o", d + "/a.o"])
        nm = subprocess.check_output(["llvm-objdump", "-t", d + "/a.o"], text=True)
    sym = {l.split()[-1]: int(l.split()[0], 16) for l in nm.splitlines() if ".text" in l and len(l.split()) >= 4}
    size = sym["L_exit"] - sym["L_AG0"]
    OPT["verbose"] = False
    open(path, "w").write(build(size // 32 // 128 * 128))
```

```python
import sys, math, struct

NAME = "concat_heads__gqa_block_cached__mha_block_cached__near_ridge"
HEADER = open("cdna_kernels/" + NAME + ".s.ref").read().split("; Override")[0]


def f32bits(x):
    return struct.unpack("<I", struct.pack("<f", x))[0]


class Asm:
    nlab = 0

    def __init__(self):
        self.L = []

    def __call__(self, s):
        for line in s.strip("\n").split("\n"):
            t = line.strip()
            if t:
                self.L.append(t if t.endswith(":") else "  " + t)
                if t == "s_barrier" and OPT.get("trace"):
                    n = Asm.nlab = Asm.nlab + 1
                    self.L += ["  s_memrealtime s[56:57]", "  s_mov_b32 m0, s66", "  s_waitcnt lgkmcnt(0)", "  s_cmp_lt_u32 s66, 64",
                               f"  s_cbranch_scc0 L_tr{n}", "  v_writelane_b32 v30, s56, m0", f"  s_branch L_tr{n}b", f"L_tr{n}:",
                               "  v_writelane_b32 v31, s56, m0", f"L_tr{n}b:", "  s_add_u32 s66, s66, 1"]

    def lab(self, base="L"):
        Asm.nlab += 1
        return f"{base}_{Asm.nlab}"

    def text(self):
        return "\n".join(self.L) + "\n"


class DS:
    def __init__(self, A, pending=0):
        self.A = A
        self.n = pending
        self.done = 0

    def issue(self, text):
        if self.n - self.done >= 15:
            self.need(self.n - 15)
        self.A(text)
        self.n += 1
        return self.n - 1

    def need(self, idx):
        if idx < self.done:
            return
        self.A(f"s_waitcnt lgkmcnt({self.n - 1 - idx})")
        self.done = idx + 1


def vr(a, n):
    return f"v[{a}:{a+n-1}]"


BLK = 16384
XH2 = 3
XP_OFF = 0x1000000
HO_OFF = 0x1800000
LDS_BYTES = 163840

sW_ID = "s3"
sKV = "s[8:11]"
sWQ = "s[12:15]"
sX = "s[20:23]"
sWO = "s[24:27]"
sP = "s[28:31]"
sN = "s32"
sI4k = "s33"
sI8k = "s34"
sI64k = "s35"
sKU = "s36"
sKhd = "s37"
sKI = "s38"
sKoff = "s40"
sC = "s41"
sInvC = "s42"
sT = "s43"
sT2 = "s44"
sI = "s45"
sHH = "s46"
sQH = "s47"
sRotI = "s48"
sRot = "s49"
sKVl = "s39"
sKmax = "s50"
sKhd1 = "s52"
sKrot = "s42"
sKcur = "s36"
sPF = "s[60:63]"
sPFoff = "s64"
sKIend = "s51"
sKUend = "s52"
sT8 = "s53"
sTSb = "s[54:55]"
sTS = 56

vKVo = 4
vWo = 8
vPK, vPV, vPW, vPX, vPO, vL16 = 13, 14, 15, 16, 17, 18
vA = 20
vM, vThr, vL0, vL1, vT0, vT1, vT2, vT3 = 32, 33, 34, 35, 36, 37, 38, 39
vS = 40
vPp = 56
vACC = 64
vF0 = 128
vF1 = 160
vQ = 192
vOP = 224
vWF = 32
vXF = 128
vX = 224
vAK = 240
vAV = 248
vTch = 19
vLA = 252
vNM = 160
vOne = 176

OPT = dict(ts=False, kv_nt=True, w_nt=False, st=" sc1", sta=" sc1", look=10, maxiss=4, lead=12, kvstart=8, kv2=12, w1=18, w2=36, wper=2, estart=46, m1a=0, m1b=0, awo=31, adist=4, uq=False, fuse=True, lbd=1, rotg=0, rotb=1, aop=False, asleep=0, lal=0, sal=0, bsh=True, xpol='', prio=2, latew=True, la=3, lb=2, n1=8, n2=12, wosplit=True, ad=1, abar=False, aspread=False, ag0=14, ag1=15, m1n=4, m1t=3, m1pol='', lt0=32, uo=16, afirst=4, wopfit=0, akvstart=12, wopf=True, bshift=True, ashift=True, first=2, pf0=3, pfP=2, pfR=0, pfO=2, pfmax=32, codepf=True)


def stamp(A, idx, cyc=False):
    if not OPT["ts"]:
        return
    if OPT.get("clk"):
        if cyc:
            return
        A(f"s_memtime s[{sTS}:{sTS+1}]\ns_waitcnt lgkmcnt(0)\ns_mov_b32 s{84+8+idx}, s{sTS}")
    A(f"""
    {'s_memtime' if cyc else 's_memrealtime'} s[{sTS}:{sTS+1}]
    s_waitcnt lgkmcnt(0)
    s_mov_b32 s{84+idx}, s{sTS}
    """)


def cstamp(A, idx, n):
    if not OPT["ts"]:
        return
    l = A.lab("L_st")
    A(f"s_cmp_eq_u32 {sN}, {n}\ns_cbranch_scc0 {l}")
    stamp(A, idx, True)
    A(f"{l}:")


def stamps_out(A):
    if not OPT["ts"]:
        return
    if OPT.get("trace"):
        A(f"""
        s_lshl_b32 {sT}, s2, 3
        s_add_u32 {sT}, {sT}, {sW_ID}
        s_lshl_b32 {sT}, {sT}, 9
        s_add_u32 {sT}, {sT}, 0x8200000
        v_lshlrev_b32 v3, 2, v1
        v_add_u32 v3, {sT}, v3
        global_store_dword v3, v30, s[82:83]
        global_store_dword v3, v31, s[82:83] offset:256
        """)
    A("v_mov_b32 v3, 0")
    for i in range(16):
        A(f"v_mov_b32 v2, s{84+i}")
        A(f"global_store_dword v3, v2, {sTSb} offset:{i*4}")
    A("s_waitcnt vmcnt(0)")


def ring_adv(A, reg, step, end, span):
    A(f"""
    s_add_u32 {reg}, {reg}, {step}
    s_cmp_ge_u32 {reg}, {end}
    s_cselect_b32 {sT}, {span}, 0
    s_sub_u32 {reg}, {reg}, {sT}
    """)


class Stream:
    def __init__(self):
        self.A = Asm()
        self.out = []
        self.wmode = "q"
        self.rare = []
        self.par = 0
        self.D = DS(self.A)
        self.fid = {}

    def rec(self, n, deadline):
        self.out.append((n, deadline))

    def vm_for(self, slot):
        last = -1
        for i, (n, d) in enumerate(self.out):
            if d <= slot:
                last = i
        if last < 0:
            return None
        rest = self.out[last + 1:]
        self.out = rest
        return sum(n for n, _ in rest)

    def endslot(self, slot, barrier=True, drain=True):
        vm = self.vm_for(slot + 1)
        w = []
        if vm is not None:
            assert vm <= 63
            w.append(f"vmcnt({vm})")
        if drain:
            w.append("lgkmcnt(0)")
            self.D.done = self.D.n
        if w:
            self.A("s_waitcnt " + " ".join(w))
        if barrier:
            self.A("s_barrier")

    def drained(self):
        self.out = []

    def dma_x(self, half):
        A = self.A
        if half == 0:
            A(f"""
            v_lshrrev_b32 v2, 5, v1
            v_and_b32 v3, 31, v1
            s_and_b32 {sT2}, {sW_ID}, 1
            s_lshl_b32 {sT2}, {sT2}, 3
            v_or_b32 v{vA+8}, {sT2}, v2
            v_xor_b32 v{vA+8}, v{vA+8}, v3
            v_lshlrev_b32 v{vA+9}, 10, v2
            s_lshl_b32 {sT2}, {sRot}, 2
            """)
            for j in range(4):
                A(f"""
                v_xor_b32 v{vA+j}, {2*j}, v{vA+8}
                v_add_u32 v{vA+j}, {sT2}, v{vA+j}
                v_and_b32 v{vA+j}, 63, v{vA+j}
                v_lshl_add_u32 v{vA+j}, v{vA+j}, 4, v{vA+9}
                """)
                if j:
                    A(f"v_add_u32 v{vA+j}, {j*1024}, v{vA+j}")
        else:
            for j in range(4):
                A(f"v_xor_b32 v{vA+j}, 0x200, v{vA+j}")
        A(f"""
        s_lshl_b32 {sT}, {sW_ID}, 12
        s_add_u32 m0, {sT}, {half*3*BLK}
        s_lshl_b32 {sT}, {sW_ID}, 13
        """)
        for j in range(4):
            off = f" offset:{j*1024}" if j else ""
            A(f"buffer_load_dwordx4 v{vA+j}, {sX}, {sT} offen{off}{OPT['xpol']} lds")
        self.rec(4, -1 if half == 0 else XH2)

    def set_wmode(self, mode):
        A = self.A
        if self.wmode == mode:
            return
        if self.wmode == "q":
            A(f"""
            v_lshrrev_b32 v2, 9, v{vL16}
            v_lshlrev_b32 v2, 17, v2
            """)
            for p in range(4):
                A(f"v_xor_b32 v3, {p<<6}, v{vL16}")
                A(f"v_add_u32 v{vWo+p}, v3, v2")
            self.wmode = 0
        if self.wmode != mode:
            for p in range(4):
                A(f"v_xor_b32 v{vWo+p}, 0x20000, v{vWo+p}")
            self.wmode = mode

    def dma_w(self, stage, blk, deadline):
        nt = " nt" if OPT["w_nt"] else ""
        if stage < 32:
            assert self.wmode == "q"
            G, i = stage >> 4, stage & 15
            pre = (f"s_add_u32 {sT}, {sRotI}, {i*262144 + G*512}\n"
                   f"s_add_u32 m0, {sI4k}, {blk*BLK}\n"
                   f"s_and_b32 {sT}, {sT}, 0x3fffff\n")
            srd = sWQ
        else:
            ps, s = ((stage - 32) >> 4) & 1, stage & 15
            keep, self.A = self.A, Asm()
            self.set_wmode(s >> 3)
            pre = "\n".join(self.A.L) + "\n"
            self.A = keep
            pre += (f"s_add_u32 m0, {sI4k}, {blk*BLK}\n"
                    f"s_add_u32 {sT}, {sI4k}, {(s&7)*16384 + ps*262144}\n")
            srd = sWO if stage < 64 else "s[16:19]"
        at = []
        for p in range(4):
            off = f" offset:{p*1024}" if p else ""
            at.append((pre if p == 0 else "") + f"buffer_load_dwordx4 v{vWo+p}, {srd}, {sT} offen{off}{nt} lds")
        self.rec(4, deadline)
        return at

    def dma_kv_b(self, beta, half, deadline):
        nt = " nt" if OPT["kv_nt"] else ""
        buf = (beta + 1) % 3

        m0 = f"s_add_u32 m0, {sKVl}, {buf*BLK + half*4096}\n"
        post = ""
        pre = (f"s_add_u32 {sT}, {sKrot}, {((beta & 15) * 8192 + half * 4096)}\n"
               f"s_and_b32 {sT}, {sT}, 0x1ffff\n")
        pk, pv = max(0, min(31, beta + 1)) >> 4, max(0, beta) >> 4
        if pk == pv:
            pre += f"s_add_u32 {sT}, {sT}, {sKhd if pk == 0 else sKhd1}\n"
        else:
            pre += (f"s_cmp_eq_u32 {sQH}, 0\n"
                    f"s_cselect_b32 {sT2}, {sKhd1}, {sKhd}\n"
                    f"s_add_u32 {sT}, {sT}, {sT2}\n")
        if beta in (-1, 31):
            pre += (f"s_cmp_eq_u32 {sQH}, 0\n"
                    f"s_cselect_b64 exec, {'-1, 1' if beta == -1 else '1, -1'}\n")
            post = "\ns_mov_b64 exec, -1"
        at = []
        for p in range(4):
            off = f" offset:{p*1024}" if p else ""
            at.append((m0 + pre if p == 0 else "") + f"buffer_load_dwordx4 v{vKVo+p}, {sKV}, {sT} offen{off}{nt} lds")
        if post:
            at = ["\n".join(at) + post]
        self.rec(4, deadline)
        return at

    def dma_kv_a_part(self, part, first=False):
        A = self.A
        nt = " nt" if OPT["kv_nt"] else ""
        if part == 0:
            A(f"s_mov_b32 m0, {sKI}")
            if first:
                A(f"s_cmp_eq_u32 {sQH}, 0\ns_cselect_b64 exec, -1, 1")
            A(f"s_and_b32 {sKcur}, {sKoff}, 0x1ffff")
        off = f" offset:{part*1024}" if part else ""
        A(f"buffer_load_dwordx4 v{vKVo+part}, {sKV}, {sKcur} offen{off}{nt} lds")
        if part == 3:
            if first:
                A(f"s_mov_b64 exec, -1")
            A(f"s_add_u32 {sKoff}, {sKoff}, 8192")
            ring_adv(A, sKI, BLK, sKIend, 6 * BLK)

    def dma_kv_a(self, deadline, first=False):
        for p in range(4):
            self.dma_kv_a_part(p, first)
        self.rec(4, deadline)

    def pf_round(self, rec=True):
        A = self.A
        A(f"buffer_load_dword v12, v{vTch}, {sPF}, {sPFoff} offen")
        A(f"s_add_u32 {sPFoff}, {sPFoff}, 4096")
        if rec:
            self.rec(1, 1000)

    def emit(self, atoms):
        for a in atoms:
            self.A(a)

    def read_x(self, half):
        A = self.A
        regs = [vPX, 2, 3, vA + 4, vA + 5, vA + 6, vA + 7, vA + 8]
        for s in range(1, 8):
            A(f"v_xor_b32 v{regs[s]}, {32*s}, v{vPX}")
        D = self.D
        for s in range(16):
            ad = regs[s & 7]
            last = D.issue(f"ds_read_b128 {vr(vXF+64*half+4*s,4)}, v{ad} offset:{half*3*BLK+(s>>3)*256}")
        return last

    def wslice(self, kind, i, blk, nxt, first, dma=()):
        A = self.A
        a = vA
        pat = vPW if kind == "q" else vPO

        def addr(base, b):
            A(f"v_add_u32 v{base}, {b*BLK}, v{pat}")
            for m in range(1, 4):
                A(f"v_xor_b32 v{base+m}, {64*m}, v{base}")

        def rd(base, h, m, u):
            off = (16 * h + 4 * u) * 512 if kind == "q" else h * 256 + u * 4096
            return f"ds_read_b64_tr_b16 {vr(vWF+16*h+4*m+2*u,2)}, v{base+m} offset:{off}"

        def mf(h, m):
            if kind == "q":
                acc, b = vACC + 16 * m, vXF + 4 * (2 * i + h)
                c0 = first and h == 0
            else:
                acc, b = vACC + 16 * (4 * h + m), vQ + 4 * i
                c0 = first
            c = "0" if c0 else vr(acc, 16)
            return f"v_mfma_f32_32x32x16_bf16 {vr(acc,16)}, {vr(vWF+16*h+4*m,4)}, {vr(b,4)}, {c}"

        dma = list(dma)
        per = (len(dma) + 7) // 8
        D = self.D
        if nxt is not None:
            addr(a, nxt)
        for h in range(2):
            for m in range(4):
                if blk is not None:
                    D.need(self.fid[(h, m)])
                    A(mf(h, m))
                if nxt is not None:
                    D.issue(rd(a, h, m, 0))
                    self.fid[(h, m)] = D.issue(rd(a, h, m, 1))
                self.emit(dma[:per]); dma = dma[per:]
        self.emit(dma)

    def qfinal(self):
        A = self.A
        A(f"s_nop 7\nv_mov_b32 v{vT0}, {sC}\ns_nop 6")
        for i in range(32):
            A(f"v_pk_mul_f32 {vr(vACC+2*i,2)}, {vr(vACC+2*i,2)}, {vr(vT0,2)} op_sel_hi:[1,0]")
            if i:
                A(f"v_cvt_pk_bf16_f32 v{vQ+i-1}, v{vACC+2*i-2}, v{vACC+2*i-1}")
        A(f"v_cvt_pk_bf16_f32 v{vQ+31}, v{vACC+62}, v{vACC+63}")

    def max_atoms(self):
        at = [f"v_max3_f32 v{vT0}, v{vS}, v{vS+1}, v{vS+2}", f"v_max3_f32 v{vT1}, v{vS+3}, v{vS+4}, v{vS+5}"]
        for k, i in enumerate(range(6, 14, 2)):
            t = vT0 if k % 2 == 0 else vT1
            at.append(f"v_max3_f32 v{t}, v{t}, v{vS+i}, v{vS+i+1}")
        at += [f"v_max3_f32 v{vT0}, v{vT0}, v{vS+14}, v{vS+15}", f"v_max_f32 v{vT0}, v{vT0}, v{vT1}"]
        return at

    def qk_mfma(self, s, c0):
        c = c0 if s == 0 else vr(vS, 16)
        return f"v_mfma_f32_32x32x16_bf16 {vr(vS,16)}, {vr(vF0+4*s,4)}, {vr(vQ+4*s,4)}, {c}"

    def pv_mfma(self, k):
        j, m = k >> 2, k & 3
        return f"v_mfma_f32_32x32x16_bf16 {vr(vACC+16*m,16)}, {vr(vF0+4*k,4)}, {vr(vPp+4*j,4)}, {vr(vACC+16*m,16)}"

    def attn_pro(self, buf, base, shifted=False):
        A = self.A
        A(f"v_add_u32 v{vAK}, {base}, v{vPK}")
        A(f"v_add_u32 v{vAV}, {base}, v{vPV}")
        for s in range(1, 8):
            A(f"v_xor_b32 v{vAK+s}, {32*s}, v{vAK}")
        D = self.D
        kid = [D.issue(f"ds_read_b128 {vr(vF0+4*s,4)}, v{vAK+s} offset:{buf*BLK}") for s in range(8)]
        for m in range(1, 4):
            A(f"v_xor_b32 v{vAV+m}, {64*m}, v{vAV}")
        fill = [f"v_mov_b64 {vr(vACC+2*i,2)}, 0" for i in range(32)] + [f"v_mov_b64 {vr(vLA+2*i,2)}, 0" for i in range(2)]
        fill += [f"v_mov_b64 {vr(vPp+2*i,2)}, 0" for i in range(4)]
        fill += [f"v_lshrrev_b32 v{vT0}, 2, v1", f"v_lshrrev_b32 v{vT1}, 4, v1", f"v_xor_b32 v{vT0}, v{vT0}, v{vT1}",
                 f"v_and_b32 v{vT0}, 1, v{vT0}", f"v_and_b32 v{vT1}, 3, v1", f"v_or_b32 v{vT0}, v{vT0}, v{vT1}",
                 f"v_cmp_eq_u32 vcc, 0, v{vT0}", f"v_mov_b32 v{vT1}, 0x3f803f80", "s_nop 0"]
        fill += [f"v_cndmask_b32 v{vOne+i}, 0, v{vT1}, vcc" for i in range(4)]
        for s in range(8):
            D.need(kid[s])
            A(self.qk_mfma(s, "0"))
            self.emit(fill[:5]); fill = fill[5:]
        self.emit(fill)
        A("s_nop 1")
        self.emit(self.max_atoms())
        A(f"""
        v_mov_b32 v{vT1}, v{vT0}
        s_nop 1
        v_permlane32_swap_b32 v{vT0}, v{vT1}
        s_nop 1
        v_max_f32 v{vT0}, v{vT0}, v{vT1}
        """)
        if shifted:
            for i in range(16):
                A(f"v_sub_f32 v{vS+i}, v{vS+i}, v{vT0}")
                A(f"v_sub_f32 v{vNM+i}, 0, v{vT0}")
            return
        for i in range(16):
            A(f"v_sub_f32 v{vX+i}, v{vS+i}, v{vT0}")
            A(f"v_sub_f32 v{vNM+i}, 0, v{vT0}")
        for i in range(16):
            A(f"v_exp_f32 v{vX+i}, v{vX+i}")

    def attn_step(self, buf, last=False, extra={}):
        A = self.A
        D = self.D
        o = buf * BLK

        def vrd(k):
            j, m = k >> 2, k & 3
            D.issue(f"ds_read_b64_tr_b16 {vr(vF0+4*k,2)}, v{vAV+m} offset:{o+8192+4096*j}")
            return D.issue(f"ds_read_b64_tr_b16 {vr(vF0+4*k+2,2)}, v{vAV+m} offset:{o+8192+4096*j+2048}")
        cvt = [f"v_cvt_pk_bf16_f32 v{vPp+i}, v{vX+2*i}, v{vX+2*i+1}" for i in range(8)]
        lsum = [f"v_mfma_f32_16x16x32_bf16 {vr(vLA,4)}, {vr(vOne,4)}, {vr(vPp+4*j,4)}, {vr(vLA,4)}" for j in range(2)]
        vid = {}
        if last:
            for k in range(8):
                vid[k] = vrd(k)
            self.emit(cvt)
            A("s_nop 1")
            self.emit(lsum)
            for k in range(8):
                D.need(vid[k])
                A(self.pv_mfma(k))
            return
        kid = [D.issue(f"ds_read_b128 {vr(vF0+4*s,4)}, v{vAK+s} offset:{o}") for s in range(8)]
        self.emit(cvt)
        for s in range(8):
            D.need(kid[s])
            A(self.qk_mfma(s, vr(vNM, 16)))
            mark = len(A.L)
            vid[s] = vrd(s)
            if s in extra: extra[s]()
        self.emit(lsum)
        lr, lb = A.lab("L_rare"), A.lab("L_back")
        mx = self.max_atoms()
        ex = [f"v_exp_f32 v{vX+i}, v{vS+i}" for i in range(16)]
        fill = [[], [], mx[:5], mx[5:] + [f"v_cmp_lt_f32 vcc, {sT8}, v{vT0}", f"s_cbranch_vccnz {lr}"] + ex[:1],
                ex[1:4], ex[4:7], ex[7:10], ex[10:16]]
        for k in range(8):
            D.need(vid[k])
            A(self.pv_mfma(k))
            if k == 2:
                dist = len(A.L) - mark
                if dist < 12:
                    A(f"s_nop {12 - dist - 1}")
            self.emit(fill[k])
        A(f"{lb}:")
        R = Asm()
        R(f"{lr}:")
        R("s_waitcnt lgkmcnt(0)")
        for k in range(4, 8):
            R(self.pv_mfma(k))
        R(f"""
        v_mov_b32 v{vT1}, v{vT0}
        s_nop 1
        v_permlane32_swap_b32 v{vT0}, v{vT1}
        s_nop 1
        v_max3_f32 v{vT0}, v{vT0}, v{vT1}, 0
        v_sub_f32 v{vT1}, 0, v{vT0}
        v_exp_f32 v{vT1}, v{vT1}
        """)
        for i in range(16):
            R(f"v_sub_f32 v{vX+i}, v{vS+i}, v{vT0}")
            R(f"v_sub_f32 v{vNM+i}, v{vNM+i}, v{vT0}")
        for i in range(16):
            R(f"v_exp_f32 v{vX+i}, v{vX+i}")
        R(f"v_mul_f32 v{vLA}, v{vLA}, v{vT1}")
        for i in range(64):
            R(f"v_mul_f32 v{vACC+i}, v{vACC+i}, v{vT1}")
        R(f"s_branch {lb}")
        self.rare.append(R)

    def attn_step2(self, buf, last=False, extra={}, carry=False):
        A = self.A
        D = self.D
        o = buf * BLK

        def vrd(k):
            j, m = k >> 2, k & 3
            D.issue(f"ds_read_b64_tr_b16 {vr(vF0+4*k,2)}, v{vAV+m} offset:{o+8192+4096*j}")
            return D.issue(f"ds_read_b64_tr_b16 {vr(vF0+4*k+2,2)}, v{vAV+m} offset:{o+8192+4096*j+2048}")

        def krd(k, DD=None):
            t = f"ds_read_b128 {vr(vF0+4*k,4)}, v{vAK+k} offset:{o}"
            return D.issue(t)
        cvt = [f"v_cvt_pk_bf16_f32 v{vPp+i}, v{vX+2*i}, v{vX+2*i+1}" for i in range(8)]
        lsum = [f"v_mfma_f32_16x16x32_bf16 {vr(vLA,4)}, {vr(vOne,4)}, {vr(vPp+4*j,4)}, {vr(vLA,4)}" for j in range(2)]
        lr, lb = A.lab("L_rare"), A.lab("L_back")
        mx = self.max_atoms()
        ex = [f"v_exp_f32 v{vX+i}, v{vS+i}" for i in range(16)]
        fill = [mx[:4], mx[4:] + [f"v_cmp_lt_f32 vcc, {sT8}, v{vT0}", f"s_cbranch_vccnz {lr}"],
                ex[0:2], ex[2:5], ex[5:7], ex[7:10], ex[10:12], ex[12:14]]
        ex_rest = ex[14:]
        nid = {}
        R = Asm()
        R(f"{lr}:")
        R("s_waitcnt lgkmcnt(0)")
        if -1 in extra: extra[-1]()
        A("s_nop 7")
        base = D.n
        D.n += 16
        D.done = base + 1 if carry else D.n
        for k in range(8):
            D.need(base + 2 * k + 1)
            A(self.pv_mfma(k))
            mark = len(A.L)
            nid[k] = vrd(k) if last else krd(k)
            if k >= 2:
                R(self.pv_mfma(k))
                R.L += [l for l in A.L[mark:] if "ds_read" in l]
            self.emit(fill[k])
        self.emit(ex_rest)
        A(f"{lb}:")
        R(f"""
        v_mov_b32 v{vT1}, v{vT0}
        s_nop 1
        v_permlane32_swap_b32 v{vT0}, v{vT1}
        s_nop 1
        v_max3_f32 v{vT0}, v{vT0}, v{vT1}, 0
        v_sub_f32 v{vT1}, 0, v{vT0}
        v_exp_f32 v{vT1}, v{vT1}
        """)
        for i in range(16):
            R(f"v_sub_f32 v{vX+i}, v{vS+i}, v{vT0}")
            R(f"v_sub_f32 v{vNM+i}, v{vNM+i}, v{vT0}")
        for i in range(16):
            R(f"v_exp_f32 v{vX+i}, v{vX+i}")
        R(f"v_mul_f32 v{vLA}, v{vLA}, v{vT1}")
        for i in range(64):
            R(f"v_mul_f32 v{vACC+i}, v{vACC+i}, v{vT1}")
        R("s_waitcnt lgkmcnt(0)")
        R(f"s_branch {lb}")
        self.rare.append(R)
        if last:
            self.emit(cvt)
            A("s_nop 1")
            self.emit(lsum)
            for k in range(8):
                D.need(nid[k])
                A(self.pv_mfma(k))
            return
        fill2 = [cvt[0:3], cvt[3:6], cvt[6:8], [], lsum[:1], [], lsum[1:], []]
        for s_ in range(8):
            D.need(nid[s_])
            A(self.qk_mfma(s_, vr(vNM, 16)))
            vrd(s_)
            self.emit(fill2[s_])
            if s_ in extra: extra[s_]()

    def onorm(self, dma=()):
        A = self.A
        dma = list(dma)
        A(f"""
        s_nop 7
        v_rcp_f32 v{vT0}, v{vLA}
        s_nop 7
        """)
        for i in range(32):
            if dma and i % 2 == 0:
                A(dma.pop(0))
            A(f"v_pk_mul_f32 {vr(vACC+2*i,2)}, {vr(vACC+2*i,2)}, {vr(vT0,2)} op_sel_hi:[1,0]")
            if i:
                A(f"v_cvt_pk_bf16_f32 v{vQ+i-1}, v{vACC+2*i-2}, v{vACC+2*i-1}")
        A(f"v_cvt_pk_bf16_f32 v{vQ+31}, v{vACC+62}, v{vACC+63}")
        self.emit(dma)

    def write_o(self, bb):
        A = self.A
        A(f"v_add_u32 v{vA+8}, {sKVl}, v{vL16}")
        for i in range(8):
            last = self.D.issue(f"ds_write_b128 v{vA+8}, {vr(vQ+4*i,4)} offset:{bb*BLK+1024*i}")
        return last

    def read_o(self, bb, own, partner):
        A = self.A
        A(f"""
        v_add_u32 v{vA+8}, {sKVl}, v{vL16}
        s_cmp_eq_u32 {sHH}, 0
        s_cselect_b32 {sT}, {3*BLK}, 0
        s_lshl_b32 {sT2}, {sQH}, 13
        s_add_u32 {sT}, {sT}, {sT2}
        v_add_u32 v{vA+9}, {sT}, v{vL16}
        """)
        D = self.D
        ids = []
        if own:
            for i in range(8):
                ids.append(D.issue(f"ds_read_b128 {vr(vQ+4*i,4)}, v{vA+8} offset:{bb*BLK+1024*i}"))
        if partner:
            for i in range(8):
                ids.append(D.issue(f"ds_read_b128 {vr(vOP+4*i,4)}, v{vA+9} offset:{bb*BLK+1024*i}"))
        return ids

    def store_partial(self, pol, tmp=vWF, srd=sP, wait=True):
        A = self.A
        A(f"""
        s_nop 7
        s_nop 7
        s_lshl_b32 {sT}, {sI}, 14
        """)
        for nb in range(8):
            for half in range(2):
                k = 2 * nb + half
                d = tmp + 4 * (k & 7)
                for i in range(4):
                    r = vACC + 16 * nb + 8 * half + 2 * i
                    A(f"v_cvt_pk_bf16_f32 v{d+i}, v{r}, v{r+1}")
                if k in (4, 8, 12):
                    A(f"s_add_u32 {sT}, {sT}, 4096")
                off = f" offset:{(k&3)*1024}" if k & 3 else ""
                A(f"buffer_store_dwordx4 {vr(d,4)}, v{vL16}, {srd}, {sT} offen{off}{pol}")
        if wait and (not OPT["fuse"] or OPT["ts"]):
            A("s_waitcnt vmcnt(0)")

    def loop_end(self, lab, end):
        self.A(f"""
        s_add_u32 {sN}, {sN}, 1
        s_cmp_lt_u32 {sN}, {end}
        s_cbranch_scc1 {lab}
        """)


def schedule_w(order, rd, rel, earliest, reserved, can_issue, cap, pref={}):
    res = {b: list(reserved.get(b, [])) for b in range(10)}
    blk, iss = {}, {}
    cnt = {}
    cur = -2
    for st in order:
        s = max(cur, earliest[st])
        while True:
            assert s < rd[st], (st, s, rd[st])
            ok = None
            if can_issue(s, st) and cnt.get(s, 0) < cap(s):
                best = None
                for b in ([pref[st]] if st in pref else range(9, -1, -1)):
                    if all(rel[st] < a or s > e for a, e in res[b]):
                        nx = min([a for a, e in res[b] if a > rel[st]] + [1000])
                        if best is None or nx < best:
                            ok, best = b, nx
            if ok is not None:
                break
            s += 1
        res[ok].append((s, rel[st]))
        blk[st], iss[st] = ok, s
        cnt[s] = cnt.get(s, 0) + 1
        cur = s
    return blk, iss


def setup(A):
    if OPT["ts"]:
        A("s_memrealtime s[100:101]")
    A(f"""
    s_cmp_ge_u32 s2, 256
    s_cbranch_scc1 L_exit
    s_load_dwordx8 s[60:67], s[0:1], 0
    s_load_dwordx2 s[68:69], s[0:1], 32
    s_load_dwordx8 s[72:79], s[0:1], 40
    s_load_dwordx2 s[80:81], s[0:1], 72
    s_load_dwordx2 s[82:83], s[0:1], 96
    v_lshrrev_b32 v1, 6, v0
    s_and_b32 s4, s2, 7
    v_readfirstlane_b32 {sW_ID}, v1
    s_bfe_u32 s5, s2, 0x10003
    s_lshr_b32 s6, s2, 4
    v_and_b32 v1, 63, v0
    v_lshlrev_b32 v{vL16}, 4, v1
    s_and_b32 {sI}, {sW_ID}, 3
    s_bfe_u32 {sHH}, {sW_ID}, 0x10001
    s_and_b32 {sQH}, {sW_ID}, 1
    s_lshl_b32 {sI4k}, {sI}, 12
    s_lshl_b32 {sI8k}, {sI}, 13
    s_lshl_b32 {sI64k}, {sI}, 16
    s_lshl_b32 {sKhd}, {sHH}, 17
    s_add_u32 {sKhd1}, {sKhd}, 0x40000
    s_mul_i32 {sKrot}, s4, {OPT["rotg"]}
    s_mul_i32 {sT}, s6, {OPT["rotb"]}
    s_add_u32 {sKrot}, {sKrot}, {sT}
    s_and_b32 {sKrot}, {sKrot}, 15
    s_xor_b32 {sT}, {sQH}, 1
    s_add_u32 {sKrot}, {sKrot}, {sT}
    s_lshl_b32 {sKrot}, {sKrot}, 13
    s_mov_b32 {sRot}, s6
    s_mul_i32 {sKVl}, {sHH}, {3*BLK}
    s_lshl_b32 {sT}, {sQH}, 13
    s_add_u32 {sKVl}, {sKVl}, {sT}
    s_lshl_b32 {sRotI}, s6, 18
    s_add_u32 {sRotI}, {sRotI}, {sI64k}
    s_mov_b32 {sC}, {f32bits(math.log2(math.e) / math.sqrt(128.0)):#x}
    s_mov_b32 {sT8}, 0x41000000
    s_waitcnt lgkmcnt(0)
    s_cmp_eq_u32 s5, 0
    s_cselect_b32 s60, s60, s72
    s_cselect_b32 s61, s61, s73
    s_cselect_b32 s62, s62, s74
    s_cselect_b32 s63, s63, s75
    s_cselect_b32 s64, s64, s76
    s_cselect_b32 s65, s65, s77
    s_cselect_b32 s66, s66, s78
    s_cselect_b32 s67, s67, s79
    s_cselect_b32 s68, s68, s80
    s_cselect_b32 s69, s69, s81
    s_cselect_b32 s7, 17, 19
    s_lshl_b32 s10, 1, s7
    s_lshl_b32 {sT}, s6, 16
    s_add_u32 s20, s60, {sT}
    s_addc_u32 s21, s61, 0
    s_and_b32 s21, s21, 0xffff
    s_mov_b32 s22, 0x10000
    s_mov_b32 s23, 0x20000
    s_lshl_b32 {sT}, s4, 10
    s_add_u32 s12, s66, {sT}
    s_addc_u32 s13, s67, 0
    s_and_b32 s13, s13, 0xffff
    s_sub_u32 s14, 0x400000, {sT}
    s_mov_b32 s15, 0x20000
    s_lshl_b32 {sT}, s6, 3
    s_add_u32 {sT}, {sT}, s4
    s_lshl_b32 {sT}, {sT}, s7
    s_bitcmp1_b32 {sW_ID}, 0
    s_cselect_b32 s8, s64, s62
    s_cselect_b32 s9, s65, s63
    s_add_u32 s8, s8, {sT}
    s_addc_u32 s9, s9, 0
    s_and_b32 s9, s9, 0xffff
    s_mov_b32 s11, 0x20000
    s_lshl_b32 {sT}, s4, 19
    s_add_u32 s24, s68, {sT}
    s_addc_u32 s25, s69, 0
    s_and_b32 s25, s25, 0xffff
    s_mov_b32 s26, 0x80000
    s_mov_b32 s27, 0x20000
    s_lshl_b32 {sT}, s5, 4
    s_add_u32 {sT}, {sT}, s6
    s_lshl_b32 {sT}, {sT}, 3
    s_add_u32 {sT}, {sT}, s4
    s_lshl_b32 {sT}, {sT}, 16
    s_add_u32 s28, s82, {sT}
    s_addc_u32 s29, s83, 0
    s_and_b32 s29, s29, 0xffff
    s_mov_b32 s30, 0x10000
    s_mov_b32 s31, 0x20000
    """)
    if OPT["ts"]:
        A(f"""
        s_lshl_b32 {sT}, s2, 3
        s_add_u32 {sT}, {sT}, {sW_ID}
        s_lshl_b32 {sT}, {sT}, 6
        s_add_u32 {sT}, {sT}, 0x8000000
        s_add_u32 s54, s82, {sT}
        s_addc_u32 s55, s83, 0
        """)
        for i in range(16):
            A(f"s_mov_b32 s{84+i}, 0")
        A("s_mov_b32 s66, 0\nv_mov_b32 v30, 0\nv_mov_b32 v31, 0")
        if OPT.get("trace"):
            A("v_writelane_b32 v31, s100, 63")


def patterns(A):
    A(f"""
    v_lshrrev_b32 v2, 5, v1
    v_and_b32 v3, 31, v1
    """)
    for p in range(4):
        A(f"""
        v_add_u32 v29, {(2*p)&3}, v2
        v_lshlrev_b32 v29, 2, v29
        v_xor_b32 v29, v29, v3
        v_lshlrev_b32 v29, 4, v29
        v_lshl_add_u32 v29, v2, 13, v29
        v_add_u32 v{vWo+p}, {2*p*8192 - p*1024}, v29
        """)


def patterns2(A):
    A(f"""
    v_lshrrev_b32 v2, 4, v1
    v_and_b32 v3, 15, v1
    v_lshlrev_b32 v19, 2, v2
    s_bitcmp1_b32 {sW_ID}, 0
    s_cselect_b64 vcc, -1, 0
    """)
    for p in range(4):
        A(f"""
        v_add_u32 v29, {4*p}, v2
        v_cndmask_b32 v29, v29, v19, vcc
        v_xor_b32 v29, v29, v3
        v_lshlrev_b32 v29, 4, v29
        v_lshl_add_u32 v{vKVo+p}, v2, 8, v29
        """)
    A(f"""
    v_and_b32 v2, 31, v1
    v_lshrrev_b32 v3, 5, v1
    v_and_b32 v19, 15, v1
    v_xor_b32 v19, v19, v3
    v_lshlrev_b32 v19, 4, v19
    v_lshl_add_u32 v{vPK}, v2, 8, v19
    v_lshl_add_u32 v19, v2, 9, v19
    s_lshl_b32 {sT}, {sQH}, 14
    v_add_u32 v{vPX}, {sT}, v19
    """)
    A(f"""
    v_bfe_u32 v32, v1, 4, 1
    v_bfe_u32 v33, v1, 2, 2
    v_and_b32 v34, 1, v1
    v_bfe_u32 v35, v1, 1, 1
    v_lshlrev_b32 v36, 1, v34
    v_or_b32 v36, v36, v35
    v_lshl_add_u32 v36, v32, 2, v36
    v_lshlrev_b32 v36, 3, v36
    v_lshl_add_u32 v36, v33, 6, v36
    v_lshlrev_b32 v37, 2, v3
    v_add_u32 v37, v37, v33
    v_lshl_add_u32 v{vPV}, v37, 8, v36
    v_lshlrev_b32 v37, 3, v3
    v_add_u32 v37, v37, v33
    v_lshl_add_u32 v38, v37, 9, v36
    s_lshl_b32 {sT}, {sHH}, 8
    v_add_u32 v{vPW}, {sT}, v38
    v_lshlrev_b32 v36, 2, v34
    v_lshl_add_u32 v36, v32, 1, v36
    v_add_u32 v36, v36, v35
    v_lshlrev_b32 v36, 3, v36
    v_lshl_add_u32 v36, v33, 6, v36
    v_lshl_add_u32 v38, v37, 10, v36
    s_lshl_b32 {sT}, {sHH}, 9
    v_add_u32 v{vPO}, {sT}, v38
    """)


def pre_x(S, issue_pre, preread, fine=False, shared=False):
    A = S.A
    stamp(A, 0)
    if fine: stamp(A, 10, True)
    if shared:
        S.rec(4, -1)
    else:
        S.dma_x(0)
        patterns(A)
    issue_pre(-2)
    patterns2(A)
    if fine: stamp(A, 11, True)
    S.endslot(-2, barrier=False)
    if fine: stamp(A, 15, True)
    A("s_barrier")
    stamp(A, 7)
    S.read_x(0)
    issue_pre(-1)
    S.dma_x(1)
    if preread is not None:
        S.wslice("q", 0, None, preread, False)
    S.endslot(-1)
    stamp(A, 1)


def attn_loop(S, first_buf, n0, body_pre=None, tail=None, st=None, shifted=False, carry=False):
    A = S.A
    A(f"s_mov_b32 {sN}, 0")
    l = A.lab("L_attn")
    if int(OPT["lal"]):
        A.L.append(f".p2align {OPT['lal']}")
    A(f"{l}:")
    for k in range(3):
        if st and k == 0:
            cstamp(A, 8, 2); cstamp(A, 13, 0); cstamp(A, 14, 4)
        if st and k == 1:
            cstamp(A, 12, 2)
        S.attn_step2((first_buf + k) % 3, extra=body_pre(k) if body_pre else {}, carry=carry)
        if st and k == 0:
            cstamp(A, 9, 2)
        tail(k)
        S.D.done = S.D.n
    S.drained()
    S.loop_end(l, 5)


def prog_b():
    w1, w2 = int(OPT["w1"]), int(OPT["w2"])
    per = int(OPT["wper"])
    look = int(OPT["look"])
    uq, uo = OPT["uq"], int(OPT["uo"])
    use, rd, rel, early = {}, {}, {}, {}
    for st in range(64):
        k = st & 15
        if st < 16:
            use[st] = st
        elif st < 32:
            use[st] = k if uq else w1 + (k * int(OPT['n1'])) // 16
        elif st < 48 - uo:
            use[st] = w2 + (k * int(OPT['n2'])) // 16
        else:
            use[st] = 49 + st - (48 - uo)
    lw = OPT["latew"] and uo == 16
    la, lb_ = int(OPT["la"]), int(OPT["lb"])
    if lw:
        for st in range(32, 64):
            k = st - 32
            use[st] = 47 if k < la else (48 if k < la + lb_ else 49 + k - la - lb_)
    E0 = use[48]
    NS = use[63] + 1
    for st in range(64):
        k = st & 15
        win = (16 <= st < 32 and not uq) or (32 <= st < 48 - uo)
        rd[st] = use[st] - 1 if (k == 0 or not win) else use[st - 1]
        rel[st] = rd[st] if win else use[st]
        if lw and st >= 32:
            rd[st] = 47 if st == 32 else use[st - 1]
            rel[st] = rd[st] if rd[st] == 47 else use[st]
        early[st] = rd[st] - (2 if win else look)
        if st >= 48 - uo:
            early[st] = max(early[st], int(OPT["estart"]))
    assert use[31] <= 31 and w2 >= 34
    aop = OPT["aop"]
    order = ([x for i in range(16) for x in (i, 16 + i)] if uq else list(range(32))) + list(range(48 if aop else 32, 64))
    kv2 = int(OPT["kv2"])
    kvs = int(OPT["kvstart"])
    reserved = {0: [(-2, -1), (kvs, 46)], 3: [(-2, XH2), (kvs, 46)], 1: [(-2, -1), (kvs + 2, E0)], 4: [(-2, XH2), (kvs + 2, E0)],
                2: [(kv2, 48)], 5: [(kv2, 48)], 8: [(33, 34)], 9: [(33, 34)]}
    blk, iss = schedule_w(order, rd, rel, early, reserved, lambda s, st: True,
                          lambda s: int(OPT["first"]) * (2 if uq else 1) if s < 0 else int(OPT["maxiss"]) + (1 if uq else 0),
                          {} if uq else dict(enumerate([2, 5, 9, 8, 7, 6, 0, 3, 1, 4, 2, 5, 9, 8, 7, 6])))
    by_slot, at_slot = {}, {}
    for st in order:
        by_slot.setdefault(iss[st], []).append(st)
        at_slot.setdefault(use[st], []).append(st)
    if OPT.get("verbose"):
        print("B sched", [(st, iss[st], rd[st], blk[st]) for st in order], file=sys.stderr)
    MB = 8 * BLK
    LB = max(iss[63] + int(OPT['lbd']), E0)
    OPT['lwB'] = min(b for b in range(10) if all(rel[st] <= LB for st in order if blk[st] == b))

    def w_atoms(S, n, G=None):
        at = []
        for st in by_slot.get(n, []):
            if uq and st < 32 and (st >> 4) != G:
                continue
            at += S.dma_w(st, blk[st], min(rd[st], LB + 1))
        return at

    def kv_atoms(S, n):
        beta = n - 15
        if beta < 2 or beta > 31:
            return []
        return S.dma_kv_b(beta, 0, 17 + beta) + S.dma_kv_b(beta, 1, 17 + beta)

    def slices(S, n, lo, hi, kind, at):
        sts = [st for st in at_slot.get(n, []) if lo <= st < hi]
        pre = [st for st in range(lo, hi) if rd[st] == n and not (st > lo and use[st - 1] == n)]
        if not sts and not pre:
            S.emit(at)
            return
        nparts = len(sts) + len(pre)
        chunk = (len(at) + nparts - 1) // nparts
        for st in [p for p in pre if use[p] == n]:
            S.wslice(kind, 0, None, blk[st], False, at[:chunk])
            at = at[chunk:]
        for st in sts:
            nxt = st + 1 if (st + 1 < hi and rd[st + 1] == n and st + 1 not in pre) else None
            S.wslice(kind, st & 15, blk[st], blk[nxt] if nxt is not None else None, st in (0, 16, 48 if aop else 32), at[:chunk])
            at = at[chunk:]
        for st in [p for p in pre if use[p] != n]:
            S.wslice(kind, 0, None, blk[st], False, at[:chunk])
            at = at[chunk:]

    S = G0 = Stream()
    A = S.A
    tail = lambda k: S.A("s_waitcnt vmcnt(0) lgkmcnt(0)\ns_barrier")
    pre_x(S, lambda n: S.emit(w_atoms(S, n, 0)) if uq else None, blk[0], shared=OPT['bsh'])
    A(f"s_mul_i32 {sKU}, {sHH}, {3*BLK}")
    for n in range(16):
        at = w_atoms(S, n, 0) if uq else []
        if kvs <= n < kvs + 4:
            k = n - kvs
            at = at + S.dma_kv_b((k >> 1) - 1, k & 1, 16 + (k >> 1))
        if kv2 <= n < kv2 + 2:
            at = at + S.dma_kv_b(1, n - kv2, 18)
        if n == 8: stamp(A, 10, True)
        if n == 12: stamp(A, 11, True)
        if n == XH2:
            xl = S.read_x(1)
        slices(S, n, 0, 16, "q", at)
        if n == XH2:
            S.D.need(xl)
        S.endslot(n, drain=False)
    stamp(A, 2)
    S.qfinal()
    bs = OPT["bshift"]
    S.attn_pro(0, sKU, bs)
    S.endslot(16)
    attn_loop(S, 1, 17, tail=tail, st=True, shifted=bs)
    count_clear(A)
    S.attn_step2(1, last=True)
    S.endslot(32)
    stamp(A, 3)
    for n in range(33, NS):
        at = []
        must = None
        if n <= 48:
            at = w_atoms(S, n) + kv_atoms(S, n)
        if n == 33:
            S.onorm(at)
            at = []
            A(f"""
            s_add_u32 {sT}, {sI8k}, {MB}
            v_add_u32 v{vA+8}, {sT}, v{vL16}
            v_xor_b32 v{vA+9}, 0x4000, v{vA+8}
            """)
            for i in range(8):
                S.D.issue(f"ds_write_b128 v{vA+8}, {vr(vQ+4*i,4)} offset:{1024*i}")
        if n == 34:
            for i in range(8):
                S.D.issue(f"ds_read_b128 {vr(vOP+4*i,4)}, v{vA+9} offset:{1024*i}")
        if n == 41: stamp(A, 15, True)
        if n == 49:
            stamp(A, 4)
        if n == E0:
            ids = S.read_o(1, True, True)
            S.D.need(ids[0])
            must = ids[-1]
        slices(S, n, 48 if aop else 32, 64, "o", at)
        if must is not None:
            S.D.need(must)
        if n <= LB:
            S.endslot(n, drain=(n < 48))
    stamp(A, 5)
    S.store_partial(OPT['st'])
    stamp(A, 6)
    finish(A)
    S = G1 = Stream()
    A = S.A
    if OPT['prio']:
        A(f"s_setprio {OPT['prio']}")
    pre_x(S, lambda n: S.emit(w_atoms(S, n, 1)), blk[16] if uq else None, shared=OPT['bsh'])
    for n in range(32):
        if n == 16: stamp(A, 2)
        if n == 20: stamp(A, 8, True)
        if n == 21: stamp(A, 9, True)
        if n == 25: stamp(A, 10, True)
        if n == 28: stamp(A, 11, True)
        if n == 29: stamp(A, 12, True)
        at = w_atoms(S, n, 1) + kv_atoms(S, n)
        if n == XH2:
            S.D.need(S.read_x(1))
        slices(S, n, 16, 32, "q", at)
        if n == use[31] + 1:
            S.qfinal()
        S.endslot(n, drain=not (uq and n < 16))
    S.emit(w_atoms(S, 32) + kv_atoms(S, 32))
    if OPT['prio']:
        A('s_setprio 0')
    if use[31] == 31:
        S.qfinal()
    A(f"s_mul_i32 {sKU}, {sHH}, {3*BLK}")
    S.attn_pro(1, sKU, bs)
    S.endslot(32)
    stamp(A, 3)
    attn_loop(S, 2, 33, tail=tail, shifted=bs)
    (S.attn_step2 if bs else S.attn_step)(2, last=True)
    S.onorm()
    S.write_o(1)
    S.endslot(48)
    stamp(A, 4)
    if OPT['prio']:
        A(f"s_setprio {OPT['prio']}")
    for n in range(49, LB + 1):
        S.emit(w_atoms(S, n))
        S.endslot(n)
    stamp(A, 5)
    finish(A)
    return G0, G1


def prog_a():
    aop = OPT["aop"]
    NST = 80 if aop else 64
    use = {st: (st & 15 if st < 32 else st + 1) for st in range(NST)}
    rd = {st: use[st] - 1 for st in range(NST)}
    order = [x for i in range(16) for x in (i, 16 + i)] + list(range(32, NST))
    ks = int(OPT['akvstart'])
    g0s, g1s = int(OPT['ag0']), int(OPT['ag1'])
    AD = int(OPT['ad'])
    pre_slots = [g0s, g0s, g0s, g1s, g1s, g1s]
    seq = [(9, 8), (7, 6), (2, 5), (0, 1)] + [(9, 8), (7, 6), (2, 5), (3, 4), (0, 1)] * 3
    pref = {16 * g + i: seq[i][g] for i in range(16) for g in range(2)}
    reserved = {b: [(pre_slots[b], 30 if b < 3 else 32)] for b in range(6)}
    for b in (0, 1, 3, 4):
        reserved[b].append((-2, -1 if b < 3 else XH2))
    reserved[0].append((33, 34)); reserved[3].append((33, 34)); reserved[1].append((33, 49)); reserved[4].append((33, 49))
    early = {st: -2 if st < 32 else 29 for st in range(NST)}
    blk, iss = schedule_w(order, rd, use, early, reserved, lambda s, st: not (15 < s < 29 or s in (30, 31)),
                          lambda s: int(OPT['afirst']) if s == -2 else 4, pref)
    if OPT.get("verbose"):
        print("A sched", [(st, iss[st], blk[st]) for st in order], file=sys.stderr)
    by_slot = {}
    for st in order:
        by_slot.setdefault(iss[st], []).append(st)
    LB = iss[NST - 1] + int(OPT["lbd"])
    OPT['lwA'] = min(b for b in range(10) if all(use[st] <= LB for st in order if blk[st] == b))

    res = []
    for G in range(2):
        S = Stream()
        A = S.A

        def w_atoms(n):
            at = []
            for st in by_slot.get(n, []):
                owner = (st >> 4) if st < 32 else 1
                if owner == G:
                    at += S.dma_w(st, blk[st], min(rd[st], LB + 1))
            return at

        m1n, m1t = int(OPT["m1n"]), int(OPT["m1t"])
        if m1n:
            A(f"""
            s_lshl_b32 {sT}, s6, 3
            s_add_u32 {sT}, {sT}, s4
            s_lshl_b32 {sT}, {sT}, 19
            s_bitcmp1_b32 {sW_ID}, 0
            s_cselect_b32 s60, s76, s74
            s_cselect_b32 s61, s77, s75
            s_add_u32 s60, s60, {sT}
            s_addc_u32 s61, s61, 0
            s_and_b32 s61, s61, 0xffff
            s_mov_b32 s62, 0x80000
            s_mov_b32 s63, 0x20000
            v_lshlrev_b32 v29, 3, v{vL16}
            """)
            for t in range(m1t + G, m1t + m1n, 2):
                A(f"""
                s_add_u32 {sT}, {sKrot}, {(t & 15) * 8192}
                s_and_b32 {sT}, {sT}, 0x1ffff
                s_add_u32 {sT}, {sT}, {sKhd1 if t >= 16 else sKhd}
                buffer_load_dword v12, v29, {sPF}, {sT} offen{OPT["m1pol"]}
                """)
        pre_x(S, lambda n: S.emit(w_atoms(n)), blk[16 * G], True)
        A(f"""
        s_lshl_b32 {sKoff}, {sHH}, 12
        s_lshl_b32 {sKI}, {sQH}, 13
        s_add_u32 {sKI}, {sKI}, {sKoff}
        s_add_u32 {sKIend}, {sKI}, {6*BLK}
        s_add_u32 {sKoff}, {sKoff}, {sKrot}
        s_add_u32 {sKoff}, {sKoff}, {15*8192}
        """)
        for n in range(17):
            if n == XH2:
                xl = S.read_x(1)
            if n < 16:
                S.wslice("q", n, blk[16 * G + n], blk[16 * G + n + 1] if n < 15 else None, n == 0, w_atoms(n))
            if n == XH2:
                S.D.need(xl)
            if G == 0:
                for j in range(AD + 1 if AD else 6):
                    if pre_slots[j] == n:
                        S.dma_kv_a((16 + j) if AD else (16 if j < 3 else 19), first=(j == 0))
            if n < 16:
                S.endslot(n, drain=False)
        stamp(A, 2)
        if G == 1:
            A(f"""
            s_lshl_b32 {sT}, s4, 19
            s_add_u32 s16, s80, {sT}
            s_addc_u32 s17, s81, 0
            s_and_b32 s17, s17, 0xffff
            s_mov_b32 s18, 0x80000
            s_mov_b32 s19, 0x20000
            s_lshl_b32 s65, {sRot}, 15
            s_add_u32 s65, s65, {sI8k}
            v_lshlrev_b32 v{vTch}, 3, v{vL16}
            s_lshl_b32 {sT}, s6, 3
            s_add_u32 {sT}, {sT}, s4
            s_lshl_b32 {sT}, {sT}, 19
            s_bitcmp1_b32 {sW_ID}, 0
            s_cselect_b32 s60, s76, s74
            s_cselect_b32 s61, s77, s75
            s_add_u32 s60, s60, {sT}
            s_addc_u32 s61, s61, 0
            s_and_b32 s61, s61, 0xffff
            s_mov_b32 s62, 0x80000
            s_mov_b32 s63, 0x20000
            s_lshl_b32 {sPFoff}, {sHH}, 17
            """)
        S.qfinal()
        S.attn_pro(0, 0, True)
        if AD:
            S.endslot(16)
        else:
            A("s_waitcnt lgkmcnt(0)")
        lim = lambda k: (15 - AD - k) // 3 + 1

        def guarded(cond, f):
            def g():
                sk = A.lab("L_sk")
                A(cond + f"\ns_cbranch_scc0 {sk}")
                f()
                A(f"{sk}:")
            return g

        def body_pre(k):
            e = {}
            if G == 0:
                two = lambda p: (lambda: (S.dma_kv_a_part(p), S.dma_kv_a_part(p + 1)))
                if k == 2:
                    c, c3 = f"s_cmp_lt_u32 {sN}, 4", f"s_cmp_lt_u32 {sN}, 3"
                    e = {-1: guarded(c, lambda: (two(0)(), two(2)())), 0: guarded(c, two(0)), 1: guarded(c, two(2)),
                         2: guarded(c3, two(0)), 3: guarded(c3, two(2))}
                if AD:
                    four = lambda: (two(0)(), two(2)())
                    e = {-1: guarded(f"s_cmp_lt_u32 {sN}, {lim(k)}", four) if lim(k) < 5 else four}
                elif OPT["aspread"]:
                    if k == 2:
                        e = {-1: guarded(c, two(0)), 1: guarded(c, two(2)), 4: guarded(c, two(0)), 7: guarded(c, two(2))}
                    if k == 0:
                        c = f"s_sub_u32 {sT}, {sN}, 1\ns_cmp_lt_u32 {sT}, 3"
                        e = {-1: guarded(c, two(0)), 1: guarded(c, two(2))}
            else:
                if OPT["wopf"] and OPT["wosplit"]:
                    it = int(OPT['wopfit'])

                    def tch(srd, hi):
                        return lambda: A(f"s_mov_b32 exec_{'lo' if hi else 'hi'}, 0\n"
                                         f"buffer_load_dword v12, v{vTch}, {srd}, s65 offen\ns_mov_b64 exec, -1")
                    if k < 2:
                        e[5] = guarded(f"s_cmp_eq_u32 {sN}, {it}", tch('s[16:19]', k))
                        e[6] = guarded(f"s_cmp_eq_u32 {sN}, {it + 1}", tch(sWO, k))
                elif OPT["wopf"] and k != 1:
                    e[5] = guarded(f"s_cmp_eq_u32 {sN}, {OPT['wopfit']}",
                                   lambda: A(f"buffer_load_dword v12, v{vTch}, {sWO if k else 's[16:19]'}, s65 offen"))
                if k == 0:
                    e[1] = guarded(f"s_cmp_eq_u32 {sN}, 4", lambda: S.emit(w_atoms(29)))
            return e

        def tail(k):
            if int(OPT["asleep"]):
                A(f"s_sleep {OPT['asleep']}")
            if k == 1:
                for r in range(12):
                    A(f"v_xor_b32 v{vAK+r}, 0xc000, v{vAK+r}")
            if AD:
                if G == 1:
                    if k == 1:
                        guarded(f"s_cmp_eq_u32 {sN}, 4", lambda: A("s_waitcnt vmcnt(0)"))()
                else:
                    if lim(k) < 5 and AD > 1:
                        guarded(f"s_cmp_ge_u32 {sN}, {lim(k)}", lambda: A("s_waitcnt vmcnt(0)"))()
                    A(f"s_waitcnt vmcnt({4 * (AD - 1)})")
                A("s_barrier")
            elif k == 1:
                if G == 1:
                    guarded(f"s_cmp_eq_u32 {sN}, 4", lambda: A("s_waitcnt vmcnt(0)"))()
                    A("s_waitcnt lgkmcnt(0)\ns_barrier")
                else:
                    A("s_waitcnt vmcnt(0) lgkmcnt(0)\ns_barrier")
            elif OPT["abar"]:
                A("s_barrier")
        attn_loop(S, 1, 17, body_pre, tail, st=True, shifted=True, carry=True)
        S.emit(w_atoms(32))
        S.attn_step2(1, last=True, carry=True)
        S.onorm()
        if G == 0:
            S.wslice("o", 0, None, blk[32], False)
        S.endslot(32, drain=(G == 1))
        stamp(A, 3)
        if G == 0:
            count_clear(A)
        must = S.write_o(G)
        if G == 0:
            for n in range(33, NST + 1):
                st = n - 1
                if n == 34:
                    must = S.read_o(0, False, True)[-1]
                if n == 49:
                    stamp(A, 4)
                    ids = S.read_o(1, True, True)
                    S.D.need(ids[0])
                    must = ids[-1]
                if n == 60 and aop:
                    A(f"""
                    s_waitcnt lgkmcnt(0)
                    s_load_dwordx2 s[70:71], s[0:1], 88
                    s_lshl_b32 {sT}, s6, 2
                    s_add_u32 {sT}, {sT}, 128
                    v_mov_b32 v{vA+8}, {sT}
                    s_lshl_b32 {sT}, s6, 3
                    s_add_u32 {sT}, {sT}, s4
                    s_lshl_b32 {sT2}, {sT}, 16
                    s_add_u32 {sT2}, {sT2}, {XP_OFF}
                    s_add_u32 s60, s82, {sT2}
                    s_addc_u32 s61, s83, 0
                    s_and_b32 s61, s61, 0xffff
                    s_mov_b32 s62, 0x10000
                    s_mov_b32 s63, 0x20000
                    s_lshl_b32 {sT}, {sT}, 15
                    s_add_u32 {sT}, {sT}, {HO_OFF}
                    s_add_u32 {sT}, {sT}, {sI8k}
                    v_add_u32 v{vA+4}, {sT}, v{vL16}
                    v_add_u32 v{vA+5}, 0x1000, v{vA+4}
                    v_xor_b32 v{vA+6}, 0x4000, v{vA+4}
                    v_xor_b32 v{vA+7}, 0x4000, v{vA+5}
                    s_mov_b32 s76, 0
                    s_waitcnt lgkmcnt(0)
                    L_a_poll:
                    global_load_dword v{vA+9}, v{vA+8}, s[70:71] sc1
                    s_add_u32 s76, s76, 1
                    s_waitcnt vmcnt(0)
                    v_readfirstlane_b32 s77, v{vA+9}
                    s_cmp_gt_u32 s76, 0x40000
                    s_cbranch_scc1 L_a_go
                    s_lshr_b32 s77, s77, s4
                    s_bitcmp1_b32 s77, 0
                    s_cbranch_scc1 L_a_go
                    s_sleep 8
                    s_branch L_a_poll
                    L_a_go:
                    """)
                    S.D.done = S.D.n
                    for i in range(8):
                        A(f"global_load_dwordx4 {vr(vQ+4*i,4)}, v{vA+4+(i>>2)}, s[82:83] offset:{(i&3)*1024} sc1")
                if n == 65:
                    stamp(A, 5)
                    S.store_partial(OPT['sta'], tmp=vOP, wait=False)
                    A("s_nop 1")
                    for i in range(8):
                        A(f"global_load_dwordx4 {vr(vOP+4*i,4)}, v{vA+6+(i>>2)}, s[82:83] offset:{(i&3)*1024} sc1")
                    A("s_waitcnt vmcnt(24)")
                if n == 73:
                    A("s_waitcnt vmcnt(0)")
                S.wslice("o", st & 15, blk[st], blk[st + 1] if st < NST - 1 else None, n in (33, 65))
                if must is not None:
                    S.D.need(must)
                    must = None
                if n <= LB:
                    S.endslot(n, drain=False)
            if aop:
                S.store_partial(OPT['sta'], srd="s[60:63]")
            else:
                stamp(A, 5)
                S.store_partial(OPT['sta'])
            stamp(A, 6)
        else:
            for n in range(33, LB + 1):
                S.emit(w_atoms(n))
                S.endslot(n)
            stamp(A, 5)
            for t in range(int(OPT["lt0"]), 32):
                A(f"s_add_u32 {sT}, {sPFoff}, {(t >> 4) * 262144 + (t & 15) * 8192}")
                A(f"buffer_load_dword v12, v{vTch}, {sPF}, {sT} offen")
            stamp(A, 6)
        finish(A)
        res.append(S)
    return res


MBX = 0x2000000


def early_clear(A):
    A(f"""
    s_cmp_eq_u32 {sW_ID}, 1
    s_cbranch_scc0 L_noclr
    s_lshl_b32 {sT}, s2, 8
    s_add_u32 {sT}, {sT}, {MBX}
    v_lshlrev_b32 v2, 2, v1
    v_add_u32 v2, {sT}, v2
    v_mov_b32 v3, 0
    s_mov_b64 exec, 0xff
    global_store_dword v2, v3, s[82:83] sc1
    s_mov_b64 exec, -1
    L_noclr:
    s_load_dwordx2 s[70:71], s[0:1], 88
    """)


def count_clear(A):
    l = A.lab("L_cc")
    A(f"""
    s_cmp_eq_u32 {sW_ID}, 1
    s_cbranch_scc0 {l}
    s_lshr_b32 {sT}, s2, 3
    s_lshl_b32 {sT}, {sT}, 2
    v_mov_b32 v2, {sT}
    v_mov_b32 v3, 1
    s_mov_b64 exec, 1
    global_atomic_add v2, v3, s[70:71]
    s_mov_b64 exec, -1
    {l}:
    """)


def final_reduce(A):
    A(f"""
    L_final:
    s_load_dwordx4 s[68:71], s[0:1], 80
    s_lshr_b32 s72, s2, 3
    s_lshl_b32 {sT}, s5, 4
    s_add_u32 {sT}, {sT}, s6
    s_lshl_b32 {sT}, {sT}, 19
    s_add_u32 s16, s82, {sT}
    s_addc_u32 s17, s83, 0
    s_and_b32 s17, s17, 0xffff
    s_mov_b32 s18, 0x80000
    s_mov_b32 s19, 0x20000
    s_lshl_b32 s73, s4, 3
    s_add_u32 s73, s73, {sW_ID}
    s_lshl_b32 s73, s73, 10
    v_and_b32 v2, 31, v1
    v_lshrrev_b32 v3, 5, v1
    v_lshlrev_b32 v2, 11, v2
    v_lshl_add_u32 v2, v3, 5, v2
    s_lshl_b32 s74, s6, 17
    s_lshl_b32 {sT}, s5, 10
    s_add_u32 s74, s74, {sT}
    s_bfe_u32 {sT}, s4, 0x10001
    s_lshl_b32 {sT}, {sT}, 16
    s_add_u32 s74, s74, {sT}
    s_lshr_b32 {sT}, s4, 2
    s_lshl_b32 {sT}, {sT}, 9
    s_add_u32 s74, s74, {sT}
    s_and_b32 {sT}, s4, 1
    s_lshl_b32 {sT}, {sT}, 8
    s_add_u32 s74, s74, {sT}
    s_lshr_b32 {sT}, {sW_ID}, 1
    s_lshl_b32 {sT}, {sT}, 6
    s_add_u32 s74, s74, {sT}
    s_lshl_b32 {sT}, {sQH}, 4
    s_add_u32 s74, s74, {sT}
    s_mov_b32 s75, 0xffff0000
    s_lshl_b32 s76, s72, 11
    s_lshl_b32 {sT}, s4, 2
    s_add_u32 s76, s76, {sT}
    s_add_u32 s76, s76, {MBX}
    v_lshlrev_b32 v7, 8, v1
    v_add_u32 v7, s76, v7
    s_lshl_b32 s76, s2, 8
    s_add_u32 s76, s76, {MBX}
    v_and_b32 v8, 7, v1
    v_lshlrev_b32 v8, 2, v8
    v_add_u32 v8, s76, v8
    s_lshl_b32 s72, s72, 2
    v_mov_b32 v4, s72
    v_mov_b32 v5, 1
    s_mov_b32 s76, 0
    s_waitcnt lgkmcnt(0)
    s_mov_b32 s20, s68
    s_and_b32 s21, s69, 0xffff
    s_mov_b32 s22, 0x200000
    s_mov_b32 s23, 0x20000
    s_cmp_eq_u32 {sW_ID}, 5
    s_cbranch_scc0 L_fin_t1
    L_fin_clr:
    global_load_dword v6, v4, s[70:71] sc1
    s_add_u32 s76, s76, 1
    s_waitcnt vmcnt(0)
    v_readfirstlane_b32 s77, v6
    s_cmp_gt_u32 s76, 0x40000
    s_cbranch_scc1 L_fin_t1
    s_cmp_ge_u32 s77, 8
    s_cbranch_scc1 L_fin_t1
    s_sleep 16
    s_branch L_fin_clr
    L_fin_t1:
    s_cmp_eq_u32 s5, 0
    s_cselect_b32 {sT}, {OPT["lwA"]}, {OPT["lwB"]}
    s_lshl_b32 {sT}, {sT}, 14
    v_mov_b32 v9, {sT}
    v_mov_b32 v6, 0
    s_cmp_eq_u32 {sW_ID}, 7
    s_cbranch_scc0 L_fin_nz
    ds_write_b32 v9, v6
    L_fin_nz:
    s_waitcnt vmcnt(0) lgkmcnt(0)
    s_barrier
    s_cmp_eq_u32 {sW_ID}, 0
    s_cbranch_scc0 L_fin_nosig
    s_mov_b64 exec, 0xff
    global_store_dword v7, v5, s[82:83] sc1
    s_mov_b64 exec, -1
    L_fin_nosig:
    s_mov_b32 s76, 0
    s_mov_b32 s78, 0
    L_fin_poll:
    s_cmp_eq_u32 {sW_ID}, 7
    s_cbranch_scc1 L_fin_pg
    s_sleep 1
    ds_read_b32 v6, v9
    s_waitcnt lgkmcnt(0)
    v_readfirstlane_b32 s77, v6
    s_branch L_fin_pj
    L_fin_pg:
    global_load_dword v6, v8, s[82:83] sc1
    s_add_u32 s76, s76, 1
    s_waitcnt vmcnt(0)
    v_cmp_eq_u32 vcc, 1, v6
    s_cmp_gt_u32 s76, 0x40000
    s_cselect_b32 s77, 0xff, 0
    s_or_b32 s77, s77, vcc_lo
    s_and_b32 s77, s77, 0xff
    v_mov_b32 v6, s77
    ds_write_b32 v9, v6
    L_fin_pj:
    s_andn2_b32 s79, s77, s78
    s_or_b32 s78, s78, s77
    """)
    for j in range(8):
        A(f"""
        s_bitcmp1_b32 s79, {j}
        s_cbranch_scc0 L_fin_s{j}
        s_add_u32 {sT}, s73, {j*0x10000}
        buffer_load_dwordx4 {vr(80+4*j,4)}, v{vL16}, s[16:19], {sT} offen sc1
        L_fin_s{j}:
        """)
    A("""
    s_cmp_eq_u32 s78, 0xff
    s_cbranch_scc0 L_fin_poll
    s_waitcnt vmcnt(0)
    """)
    for j in range(8):
        for i in range(4):
            r = 80 + 4 * j + i
            if j == 0:
                A(f"v_lshlrev_b32 v{64+2*i}, 16, v{r}")
                A(f"v_and_b32 v{65+2*i}, s75, v{r}")
            else:
                A(f"v_lshlrev_b32 v72, 16, v{r}")
                A(f"v_and_b32 v73, s75, v{r}")
                A(f"v_add_f32 v{64+2*i}, v{64+2*i}, v72")
                A(f"v_add_f32 v{65+2*i}, v{65+2*i}, v73")
    for i in range(4):
        A(f"v_cvt_pk_bf16_f32 v{76+i}, v{64+2*i}, v{65+2*i}")
    A("buffer_store_dwordx4 v[76:79], v2, s[20:23], s74 offen")
    if OPT["ts"]:
        A("s_waitcnt vmcnt(0)")
        stamp(A, 1)
    stamps_out(A)
    A("s_endpgm")


def finish(A):
    if OPT["fuse"]:
        A("s_branch L_final")
    else:
        stamps_out(A)
        A("s_endpgm")


def reduce_kernel(A):
    A(f"""
    s_cmp_ge_u32 s2, 512
    s_cbranch_scc1 L_exit2
    {"s_memrealtime s[24:25]" if OPT["ts"] else ""}
    s_load_dwordx2 s[4:5], s[0:1], 96
    s_load_dwordx2 s[6:7], s[0:1], 80
    v_lshlrev_b32 v1, 4, v0
    s_lshr_b32 s16, s2, 4
    s_lshl_b32 s17, s16, 19
    s_and_b32 s18, s2, 15
    s_lshl_b32 s18, s18, 12
    s_add_u32 s17, s17, s18
    s_waitcnt lgkmcnt(0)
    s_mov_b32 s8, s4
    s_and_b32 s9, s5, 0xffff
    s_mov_b32 s10, 0x1000000
    s_mov_b32 s11, 0x20000
    s_mov_b32 s12, s6
    s_and_b32 s13, s7, 0xffff
    s_mov_b32 s14, 0x200000
    s_mov_b32 s15, 0x20000
    """)
    for j in range(8):
        A(f"buffer_load_dwordx4 {vr(8+4*j,4)}, v1, s[8:11], s17 offen")
        if j < 7:
            A("s_add_u32 s17, s17, 0x10000")
    A(f"""
    v_and_b32 v2, 31, v0
    v_bfe_u32 v3, v0, 5, 1
    v_bfe_u32 v4, v0, 6, 1
    v_bfe_u32 v5, v0, 7, 1
    v_lshlrev_b32 v2, 11, v2
    v_lshl_add_u32 v2, v3, 5, v2
    v_lshl_add_u32 v2, v4, 4, v2
    v_lshl_add_u32 v2, v5, 6, v2
    s_and_b32 s18, s16, 15
    s_lshl_b32 s18, s18, 17
    s_lshr_b32 s19, s16, 4
    s_lshl_b32 s19, s19, 10
    s_add_u32 s18, s18, s19
    s_bfe_u32 s19, s2, 0x10002
    s_lshl_b32 s19, s19, 16
    s_add_u32 s18, s18, s19
    s_bfe_u32 s19, s2, 0x10003
    s_lshl_b32 s19, s19, 9
    s_add_u32 s18, s18, s19
    s_and_b32 s19, s2, 3
    s_lshl_b32 s19, s19, 7
    s_add_u32 s18, s18, s19
    s_mov_b32 s20, 0xffff0000
    s_waitcnt vmcnt(7)
    """)
    for i in range(4):
        A(f"v_lshlrev_b32 v{40+2*i}, 16, v{8+i}")
        A(f"v_and_b32 v{41+2*i}, s20, v{8+i}")
    for j in range(1, 8):
        A(f"s_waitcnt vmcnt({7-j})")
        for i in range(4):
            A(f"v_lshlrev_b32 v48, 16, v{8+4*j+i}")
            A(f"v_and_b32 v49, s20, v{8+4*j+i}")
            A(f"v_add_f32 v{40+2*i}, v{40+2*i}, v48")
            A(f"v_add_f32 v{41+2*i}, v{41+2*i}, v49")
    for i in range(4):
        A(f"v_cvt_pk_bf16_f32 v{52+i}, v{40+2*i}, v{41+2*i}")
    A("buffer_store_dwordx4 v[52:55], v2, s[12:15], s18 offen")
    if OPT["ts"]:
        A("""
        s_waitcnt vmcnt(0)
        s_memrealtime s[26:27]
        s_lshl_b32 s18, s2, 3
        s_add_u32 s18, s18, 0x8100000
        v_mov_b32 v2, s18
        s_waitcnt lgkmcnt(0)
        v_mov_b32 v4, s24
        v_mov_b32 v5, s26
        global_store_dwordx2 v2, v[4:5], s[4:5]
        """)
    A("L_exit2:")
    A("s_endpgm")


def kd(name, vg, sg):
    return f""".amdhsa_kernel {name}
  .amdhsa_next_free_vgpr {vg}
  .amdhsa_next_free_sgpr {sg}
  .amdhsa_accum_offset {vg}
  .amdhsa_group_segment_fixed_size 0
  .amdhsa_kernarg_size 104
  .amdhsa_user_sgpr_count 2
  .amdhsa_user_sgpr_kernarg_segment_ptr 1
  .amdhsa_system_sgpr_workgroup_id_x 1
.end_amdhsa_kernel
"""


def build(code_slice=1024):
    Asm.nlab = 0
    out = HEADER
    kn = NAME + "_kernel" if OPT["fuse"] else "attn_kernel"
    if OPT["fuse"]:
        out += f"; @launch grid=(256,1,1) block=(512,1,1) lds={LDS_BYTES}\n"
    else:
        out += f"; @launch kernel=attn_kernel grid=(256,1,1) block=(512,1,1) lds={LDS_BYTES}\n"
        out += "; @launch kernel=reduce_kernel grid=(512,1,1) block=(256,1,1) lds=0\n"
    out += '.amdgcn_target "amdgcn-amd-amdhsa--gfx950"\n.text\n'
    A = Asm()
    A.L.append(f".globl {kn}\n.p2align 8\n.type {kn},@function\n{kn}:")
    setup(A)

    def misc():
        if OPT["codepf"]:
            l = A.lab("L_nopf")
            A(f"""
            s_cmp_eq_u32 {sW_ID}, 0
            s_cbranch_scc0 {l}
            s_getpc_b64 s[58:59]
            s_lshr_b32 {sT}, s2, 3
            s_mul_i32 {sT}, {sT}, {code_slice}
            v_lshlrev_b32 v3, 3, v{vL16}
            v_add_u32 v3, {sT}, v3
            v_cmp_gt_u32 vcc, {code_slice//128}, v1
            s_and_saveexec_b64 s[70:71], vcc
            global_load_dword v12, v3, s[58:59]
            s_mov_b64 exec, -1
            {l}:
            """)
        early_clear(A)
    a0, a1 = prog_a()
    b0, b1 = prog_b()
    if OPT["bsh"]:
        misc()
        A(f"s_cmp_eq_u32 s5, 0\ns_cbranch_scc1 L_A")
        T = Stream(); T.A = A
        T.dma_x(0)
        patterns(A)
        A(f"s_cmp_lt_u32 {sW_ID}, 4\ns_cbranch_scc1 L_BG0")
        seq = (("L_BG1", b1), ("L_BG0", b0), ("L_A", None), ("L_AG0", a0), ("L_AG1", a1))
    else:
        misc()
        A(f"""
        s_lshr_b32 {sT}, {sW_ID}, 2
        s_lshl_b32 {sT2}, s5, 1
        s_or_b32 {sT}, {sT}, {sT2}
        s_cmp_eq_u32 {sT}, 1
        s_cbranch_scc1 L_AG1
        s_cmp_eq_u32 {sT}, 2
        s_cbranch_scc1 L_BG0
        s_cmp_eq_u32 {sT}, 3
        s_cbranch_scc1 L_BG1
        """)
        seq = (("L_AG0", a0), ("L_AG1", a1), ("L_BG0", b0), ("L_BG1", b1))
    A("L_code0:")
    for lab, S in seq:
        if int(OPT["sal"]) and lab != seq[0][0] and lab != "L_AG0":
            A.L.append(f".p2align {OPT['sal']}")
        A(f"{lab}:")
        if S is None:
            A(f"s_cmp_ge_u32 {sW_ID}, 4\ns_cbranch_scc1 L_AG1")
            continue
        A.L += S.A.L
        for R in S.rare:
            A.L += R.L
    if OPT["fuse"]:
        final_reduce(A)
    A("L_exit:")
    A("s_endpgm")
    if not OPT["fuse"]:
        A.L.append(".globl reduce_kernel\n.p2align 8\n.type reduce_kernel,@function\nreduce_kernel:")
        reduce_kernel(A)
    out += A.text()
    out += '.section .rodata,"a"\n.p2align 6\n' + kd(kn, 256, 102)
    if not OPT["fuse"]:
        out += ".p2align 6\n" + kd("reduce_kernel", 56, 32)
    return out


if __name__ == "__main__":
    path = sys.argv[1]
    for kv in sys.argv[2:]:
        k, v = kv.split("=")
        if k in ("ts", "kv_nt", "w_nt", "verbose", "wopf", "codepf", "bshift", "ashift", "clk", "uq", "trace", "fuse", "aop", "abar", "aspread", "wosplit", "latew", "bsh"):
            OPT[k] = v == "1"
        else:
            OPT[k] = v.replace("_", " ")
    import subprocess, tempfile, os
    txt = build()
    with tempfile.TemporaryDirectory() as d:
        open(d + "/a.s", "w").write(txt)
        subprocess.check_call(["clang", "-x", "assembler", "-target", "amdgcn-amd-amdhsa", "-mcpu=gfx950", "-c", d + "/a.s", "-o", d + "/a.o"])
        nm = subprocess.check_output(["llvm-objdump", "-t", d + "/a.o"], text=True)
    sym = {l.split()[-1]: int(l.split()[0], 16) for l in nm.splitlines() if ".text" in l and len(l.split()) >= 4}
    size = sym["L_exit"] - sym["L_code0"]
    OPT["verbose"] = False
    open(path, "w").write(build(size // 32 // 128 * 128))
```

```python
import sys, math, struct

NAME = "concat_heads__gqa_block_cached__mha_block_cached__near_ridge"
HEADER = open("cdna_kernels/" + NAME + ".s.ref").read().split("; Override")[0]


def f32bits(x):
    return struct.unpack("<I", struct.pack("<f", x))[0]


class Asm:
    nlab = 0

    def __init__(self):
        self.L = []

    def __call__(self, s):
        for line in s.strip("\n").split("\n"):
            t = line.strip()
            if t:
                self.L.append(t if t.endswith(":") else "  " + t)
                if t == "s_barrier" and OPT.get("trace"):
                    n = Asm.nlab = Asm.nlab + 1
                    self.L += ["  s_memrealtime s[56:57]", "  s_mov_b32 m0, s66", "  s_waitcnt lgkmcnt(0)", "  s_cmp_lt_u32 s66, 64",
                               f"  s_cbranch_scc0 L_tr{n}", "  v_writelane_b32 v30, s56, m0", f"  s_branch L_tr{n}b", f"L_tr{n}:",
                               "  v_writelane_b32 v31, s56, m0", f"L_tr{n}b:", "  s_add_u32 s66, s66, 1"]

    def lab(self, base="L"):
        Asm.nlab += 1
        return f"{base}_{Asm.nlab}"

    def text(self):
        return "\n".join(self.L) + "\n"


class DS:
    def __init__(self, A, pending=0):
        self.A = A
        self.n = pending
        self.done = 0

    def issue(self, text):
        if self.n - self.done >= 15:
            self.need(self.n - 15)
        self.A(text)
        self.n += 1
        return self.n - 1

    def need(self, idx):
        if idx < self.done:
            return
        self.A(f"s_waitcnt lgkmcnt({self.n - 1 - idx})")
        self.done = idx + 1


def vr(a, n):
    return f"v[{a}:{a+n-1}]"


BLK = 16384
XH2 = 3
XP_OFF = 0x1000000
HO_OFF = 0x1800000
LDS_BYTES = 163840

sW_ID = "s3"
sKV = "s[8:11]"
sWQ = "s[12:15]"
sX = "s[20:23]"
sWO = "s[24:27]"
sP = "s[28:31]"
sN = "s32"
sI4k = "s33"
sI8k = "s34"
sI64k = "s35"
sKU = "s36"
sKhd = "s37"
sKI = "s38"
sKoff = "s40"
sC = "s41"
sInvC = "s42"
sT = "s43"
sT2 = "s44"
sI = "s45"
sHH = "s46"
sQH = "s47"
sRotI = "s48"
sRot = "s49"
sKVl = "s39"
sKmax = "s50"
sKhd1 = "s52"
sKrot = "s42"
sKcur = "s36"
sPF = "s[60:63]"
sPFoff = "s64"
sKIend = "s51"
sKUend = "s52"
sT8 = "s53"
sTSb = "s[54:55]"
sTS = 56

vKVo = 4
vWo = 8
vPK, vPV, vPW, vPX, vPO, vL16 = 13, 14, 15, 16, 17, 18
vA = 20
vM, vThr, vL0, vL1, vT0, vT1, vT2, vT3 = 32, 33, 34, 35, 36, 37, 38, 39
vS = 40
vPp = 56
vACC = 64
vF0 = 128
vF1 = 160
vQ = 192
vOP = 224
vWF = 32
vXF = 128
vX = 224
vAK = 240
vAV = 248
vTch = 19
vLA = 252
vNM = 160
vOne = 176

OPT = dict(ts=False, kv_nt=True, w_nt=False, st=" sc1", sta=" sc1", look=10, maxiss=4, lead=12, kvstart=8, kv2=12, w1=18, w2=36, wper=2, estart=46, m1a=0, m1b=0, awo=31, adist=4, uq=False, fuse=True, lbd=1, rotg=0, rotb=1, aop=False, asleep=0, lal=0, sal=0, bsh=True, xpol='', prio=2, latew=True, la=3, lb=2, n1=8, n2=12, wosplit=True, ad=1, abar=False, aspread=False, ag0=14, ag1=15, m1n=4, m1t=3, m1pol='', lt0=32, uo=16, afirst=4, wopfit=0, akvstart=12, wopf=True, bshift=True, ashift=True, first=2, pf0=3, pfP=2, pfR=0, pfO=2, pfmax=32, codepf=True)


def stamp(A, idx, cyc=False):
    if not OPT["ts"]:
        return
    if OPT.get("clk"):
        if cyc:
            return
        A(f"s_memtime s[{sTS}:{sTS+1}]\ns_waitcnt lgkmcnt(0)\ns_mov_b32 s{84+8+idx}, s{sTS}")
    A(f"""
    {'s_memtime' if cyc else 's_memrealtime'} s[{sTS}:{sTS+1}]
    s_waitcnt lgkmcnt(0)
    s_mov_b32 s{84+idx}, s{sTS}
    """)


def cstamp(A, idx, n):
    if not OPT["ts"]:
        return
    l = A.lab("L_st")
    A(f"s_cmp_eq_u32 {sN}, {n}\ns_cbranch_scc0 {l}")
    stamp(A, idx, True)
    A(f"{l}:")


def stamps_out(A):
    if not OPT["ts"]:
        return
    if OPT.get("trace"):
        A(f"""
        s_lshl_b32 {sT}, s2, 3
        s_add_u32 {sT}, {sT}, {sW_ID}
        s_lshl_b32 {sT}, {sT}, 9
        s_add_u32 {sT}, {sT}, 0x8200000
        v_lshlrev_b32 v3, 2, v1
        v_add_u32 v3, {sT}, v3
        global_store_dword v3, v30, s[82:83]
        global_store_dword v3, v31, s[82:83] offset:256
        """)
    if OPT.get("dbg"):
        A(f"""
        s_and_b32 {sT}, s2, 0xf7
        s_or_b32 {sT}, {sT}, {sW_ID}
        s_cmp_eq_u32 {sT}, 0
        s_cbranch_scc0 L_nodbg
        s_xor_b32 {sT}, s2, 8
        s_lshl_b32 {sT}, {sT}, 2
        v_mov_b32 v3, {sT}
        """)
        for i in range(8):
            A(f"s_sub_u32 {sT}, s{84+i}, s100\nv_mov_b32 v2, {sT}\nglobal_store_dword v3, v2, s[70:71] offset:{i*4}")
        A("L_nodbg:")
    A("v_mov_b32 v3, 0")
    for i in range(16):
        A(f"v_mov_b32 v2, s{84+i}")
        A(f"global_store_dword v3, v2, {sTSb} offset:{i*4}")
    A("s_waitcnt vmcnt(0)")


def ring_adv(A, reg, step, end, span):
    A(f"""
    s_add_u32 {reg}, {reg}, {step}
    s_cmp_ge_u32 {reg}, {end}
    s_cselect_b32 {sT}, {span}, 0
    s_sub_u32 {reg}, {reg}, {sT}
    """)


class Stream:
    def __init__(self):
        self.A = Asm()
        self.out = []
        self.wmode = "q"
        self.rare = []
        self.par = 0
        self.D = DS(self.A)
        self.fid = {}

    def rec(self, n, deadline):
        self.out.append((n, deadline))

    def vm_for(self, slot):
        last = -1
        for i, (n, d) in enumerate(self.out):
            if d <= slot:
                last = i
        if last < 0:
            return None
        rest = self.out[last + 1:]
        self.out = rest
        return sum(n for n, _ in rest)

    def endslot(self, slot, barrier=True, drain=True):
        vm = self.vm_for(slot + 1)
        w = []
        if vm is not None:
            assert vm <= 63
            w.append(f"vmcnt({vm})")
        if drain:
            w.append("lgkmcnt(0)")
            self.D.done = self.D.n
        if w:
            self.A("s_waitcnt " + " ".join(w))
        if barrier:
            self.A("s_barrier")

    def drained(self):
        self.out = []

    def dma_x(self, half):
        A = self.A
        if half == 0:
            A(f"""
            v_lshrrev_b32 v2, 5, v1
            v_and_b32 v3, 31, v1
            s_and_b32 {sT2}, {sW_ID}, 1
            s_lshl_b32 {sT2}, {sT2}, 3
            v_or_b32 v{vA+8}, {sT2}, v2
            v_xor_b32 v{vA+8}, v{vA+8}, v3
            v_lshlrev_b32 v{vA+9}, 10, v2
            s_lshl_b32 {sT2}, {sRot}, 2
            """)
            for j in range(4):
                A(f"""
                v_xor_b32 v{vA+j}, {2*j}, v{vA+8}
                v_add_u32 v{vA+j}, {sT2}, v{vA+j}
                v_and_b32 v{vA+j}, 63, v{vA+j}
                v_lshl_add_u32 v{vA+j}, v{vA+j}, 4, v{vA+9}
                """)
                if j:
                    A(f"v_add_u32 v{vA+j}, {j*1024}, v{vA+j}")
        else:
            for j in range(4):
                A(f"v_xor_b32 v{vA+j}, 0x200, v{vA+j}")
        A(f"""
        s_lshl_b32 {sT}, {sW_ID}, 12
        s_add_u32 m0, {sT}, {half*3*BLK}
        s_lshl_b32 {sT}, {sW_ID}, 13
        """)
        for j in range(4):
            off = f" offset:{j*1024}" if j else ""
            A(f"buffer_load_dwordx4 v{vA+j}, {sX}, {sT} offen{off}{OPT['xpol']} lds")
        self.rec(4, -1 if half == 0 else XH2)

    def set_wmode(self, mode):
        A = self.A
        if self.wmode == mode:
            return
        if self.wmode == "q":
            A(f"""
            v_lshrrev_b32 v2, 9, v{vL16}
            v_lshlrev_b32 v2, 17, v2
            """)
            for p in range(4):
                A(f"v_xor_b32 v3, {p<<6}, v{vL16}")
                A(f"v_add_u32 v{vWo+p}, v3, v2")
            self.wmode = 0
        if self.wmode != mode:
            for p in range(4):
                A(f"v_xor_b32 v{vWo+p}, 0x20000, v{vWo+p}")
            self.wmode = mode

    def dma_w(self, stage, blk, deadline):
        nt = " nt" if OPT["w_nt"] else ""
        if stage < 32:
            assert self.wmode == "q"
            G, i = stage >> 4, stage & 15
            pre = (f"s_add_u32 {sT}, {sRotI}, {i*262144 + G*512}\n"
                   f"s_add_u32 m0, {sI4k}, {blk*BLK}\n"
                   f"s_and_b32 {sT}, {sT}, 0x3fffff\n")
            srd = sWQ
        else:
            ps, s = ((stage - 32) >> 4) & 1, stage & 15
            keep, self.A = self.A, Asm()
            self.set_wmode(s >> 3)
            pre = "\n".join(self.A.L) + "\n"
            self.A = keep
            pre += (f"s_add_u32 m0, {sI4k}, {blk*BLK}\n"
                    f"s_add_u32 {sT}, {sI4k}, {(s&7)*16384 + ps*262144}\n")
            srd = sWO if stage < 64 else "s[16:19]"
        at = []
        for p in range(4):
            off = f" offset:{p*1024}" if p else ""
            at.append((pre if p == 0 else "") + f"buffer_load_dwordx4 v{vWo+p}, {srd}, {sT} offen{off}{nt} lds")
        self.rec(4, deadline)
        return at

    def dma_kv_b(self, beta, half, deadline):
        nt = " nt" if OPT["kv_nt"] else ""
        buf = (beta + 1) % 3

        m0 = f"s_add_u32 m0, {sKVl}, {buf*BLK + half*4096}\n"
        post = ""
        pre = (f"s_add_u32 {sT}, {sKrot}, {((beta & 15) * 8192 + half * 4096)}\n"
               f"s_and_b32 {sT}, {sT}, 0x1ffff\n")
        pk, pv = max(0, min(31, beta + 1)) >> 4, max(0, beta) >> 4
        if pk == pv:
            pre += f"s_add_u32 {sT}, {sT}, {sKhd if pk == 0 else sKhd1}\n"
        else:
            pre += (f"s_cmp_eq_u32 {sQH}, 0\n"
                    f"s_cselect_b32 {sT2}, {sKhd1}, {sKhd}\n"
                    f"s_add_u32 {sT}, {sT}, {sT2}\n")
        if beta in (-1, 31):
            pre += (f"s_cmp_eq_u32 {sQH}, 0\n"
                    f"s_cselect_b64 exec, {'-1, 1' if beta == -1 else '1, -1'}\n")
            post = "\ns_mov_b64 exec, -1"
        at = []
        for p in range(4):
            off = f" offset:{p*1024}" if p else ""
            at.append((m0 + pre if p == 0 else "") + f"buffer_load_dwordx4 v{vKVo+p}, {sKV}, {sT} offen{off}{nt} lds")
        if post:
            at = ["\n".join(at) + post]
        self.rec(4, deadline)
        return at

    def dma_kv_a_part(self, part, first=False):
        A = self.A
        nt = " nt" if OPT["kv_nt"] else ""
        if part == 0:
            A(f"s_mov_b32 m0, {sKI}")
            if first:
                A(f"s_cmp_eq_u32 {sQH}, 0\ns_cselect_b64 exec, -1, 1")
            A(f"s_and_b32 {sKcur}, {sKoff}, 0x1ffff")
        off = f" offset:{part*1024}" if part else ""
        A(f"buffer_load_dwordx4 v{vKVo+part}, {sKV}, {sKcur} offen{off}{nt} lds")
        if part == 3:
            if first:
                A(f"s_mov_b64 exec, -1")
            A(f"s_add_u32 {sKoff}, {sKoff}, 8192")
            ring_adv(A, sKI, BLK, sKIend, 6 * BLK)

    def dma_kv_a(self, deadline, first=False):
        for p in range(4):
            self.dma_kv_a_part(p, first)
        self.rec(4, deadline)

    def pf_round(self, rec=True):
        A = self.A
        A(f"buffer_load_dword v12, v{vTch}, {sPF}, {sPFoff} offen")
        A(f"s_add_u32 {sPFoff}, {sPFoff}, 4096")
        if rec:
            self.rec(1, 1000)

    def emit(self, atoms):
        for a in atoms:
            self.A(a)

    def read_x(self, half):
        A = self.A
        regs = [vPX, 2, 3, vA + 4, vA + 5, vA + 6, vA + 7, vA + 8]
        for s in range(1, 8):
            A(f"v_xor_b32 v{regs[s]}, {32*s}, v{vPX}")
        D = self.D
        for s in range(16):
            ad = regs[s & 7]
            last = D.issue(f"ds_read_b128 {vr(vXF+64*half+4*s,4)}, v{ad} offset:{half*3*BLK+(s>>3)*256}")
        return last

    def wslice(self, kind, i, blk, nxt, first, dma=()):
        A = self.A
        a = vA
        pat = vPW if kind == "q" else vPO

        def addr(base, b):
            A(f"v_add_u32 v{base}, {b*BLK}, v{pat}")
            for m in range(1, 4):
                A(f"v_xor_b32 v{base+m}, {64*m}, v{base}")

        def rd(base, h, m, u):
            off = (16 * h + 4 * u) * 512 if kind == "q" else h * 256 + u * 4096
            return f"ds_read_b64_tr_b16 {vr(vWF+16*h+4*m+2*u,2)}, v{base+m} offset:{off}"

        def mf(h, m):
            if kind == "q":
                acc, b = vACC + 16 * m, vXF + 4 * (2 * i + h)
                c0 = first and h == 0
            else:
                acc, b = vACC + 16 * (4 * h + m), vQ + 4 * i
                c0 = first
            c = "0" if c0 else vr(acc, 16)
            return f"v_mfma_f32_32x32x16_bf16 {vr(acc,16)}, {vr(vWF+16*h+4*m,4)}, {vr(b,4)}, {c}"

        dma = list(dma)
        per = (len(dma) + 7) // 8
        D = self.D
        if nxt is not None:
            addr(a, nxt)
        for h in range(2):
            for m in range(4):
                if blk is not None:
                    D.need(self.fid[(h, m)])
                    A(mf(h, m))
                if nxt is not None:
                    D.issue(rd(a, h, m, 0))
                    self.fid[(h, m)] = D.issue(rd(a, h, m, 1))
                self.emit(dma[:per]); dma = dma[per:]
        self.emit(dma)

    def qfinal(self):
        A = self.A
        A(f"s_nop 7\nv_mov_b32 v{vT0}, {sC}\ns_nop 6")
        for i in range(32):
            A(f"v_pk_mul_f32 {vr(vACC+2*i,2)}, {vr(vACC+2*i,2)}, {vr(vT0,2)} op_sel_hi:[1,0]")
            if i:
                A(f"v_cvt_pk_bf16_f32 v{vQ+i-1}, v{vACC+2*i-2}, v{vACC+2*i-1}")
        A(f"v_cvt_pk_bf16_f32 v{vQ+31}, v{vACC+62}, v{vACC+63}")

    def max_atoms(self):
        at = [f"v_max3_f32 v{vT0}, v{vS}, v{vS+1}, v{vS+2}", f"v_max3_f32 v{vT1}, v{vS+3}, v{vS+4}, v{vS+5}"]
        for k, i in enumerate(range(6, 14, 2)):
            t = vT0 if k % 2 == 0 else vT1
            at.append(f"v_max3_f32 v{t}, v{t}, v{vS+i}, v{vS+i+1}")
        at += [f"v_max3_f32 v{vT0}, v{vT0}, v{vS+14}, v{vS+15}", f"v_max_f32 v{vT0}, v{vT0}, v{vT1}"]
        return at

    def qk_mfma(self, s, c0):
        c = c0 if s == 0 else vr(vS, 16)
        return f"v_mfma_f32_32x32x16_bf16 {vr(vS,16)}, {vr(vF0+4*s,4)}, {vr(vQ+4*s,4)}, {c}"

    def pv_mfma(self, k):
        j, m = k >> 2, k & 3
        return f"v_mfma_f32_32x32x16_bf16 {vr(vACC+16*m,16)}, {vr(vF0+4*k,4)}, {vr(vPp+4*j,4)}, {vr(vACC+16*m,16)}"

    def attn_pro(self, buf, base, shifted=False):
        A = self.A
        A(f"v_add_u32 v{vAK}, {base}, v{vPK}")
        A(f"v_add_u32 v{vAV}, {base}, v{vPV}")
        for s in range(1, 8):
            A(f"v_xor_b32 v{vAK+s}, {32*s}, v{vAK}")
        D = self.D
        kid = [D.issue(f"ds_read_b128 {vr(vF0+4*s,4)}, v{vAK+s} offset:{buf*BLK}") for s in range(8)]
        for m in range(1, 4):
            A(f"v_xor_b32 v{vAV+m}, {64*m}, v{vAV}")
        fill = [f"v_mov_b64 {vr(vACC+2*i,2)}, 0" for i in range(32)] + [f"v_mov_b64 {vr(vLA+2*i,2)}, 0" for i in range(2)]
        fill += [f"v_mov_b64 {vr(vPp+2*i,2)}, 0" for i in range(4)]
        fill += [f"v_lshrrev_b32 v{vT0}, 2, v1", f"v_lshrrev_b32 v{vT1}, 4, v1", f"v_xor_b32 v{vT0}, v{vT0}, v{vT1}",
                 f"v_and_b32 v{vT0}, 1, v{vT0}", f"v_and_b32 v{vT1}, 3, v1", f"v_or_b32 v{vT0}, v{vT0}, v{vT1}",
                 f"v_cmp_eq_u32 vcc, 0, v{vT0}", f"v_mov_b32 v{vT1}, 0x3f803f80", "s_nop 0"]
        fill += [f"v_cndmask_b32 v{vOne+i}, 0, v{vT1}, vcc" for i in range(4)]
        for s in range(8):
            D.need(kid[s])
            A(self.qk_mfma(s, "0"))
            self.emit(fill[:5]); fill = fill[5:]
        self.emit(fill)
        A("s_nop 1")
        self.emit(self.max_atoms())
        A(f"""
        v_mov_b32 v{vT1}, v{vT0}
        s_nop 1
        v_permlane32_swap_b32 v{vT0}, v{vT1}
        s_nop 1
        v_max_f32 v{vT0}, v{vT0}, v{vT1}
        """)
        if shifted:
            for i in range(16):
                A(f"v_sub_f32 v{vS+i}, v{vS+i}, v{vT0}")
                A(f"v_sub_f32 v{vNM+i}, 0, v{vT0}")
            return
        for i in range(16):
            A(f"v_sub_f32 v{vX+i}, v{vS+i}, v{vT0}")
            A(f"v_sub_f32 v{vNM+i}, 0, v{vT0}")
        for i in range(16):
            A(f"v_exp_f32 v{vX+i}, v{vX+i}")

    def attn_step(self, buf, last=False, extra={}):
        A = self.A
        D = self.D
        o = buf * BLK

        def vrd(k):
            j, m = k >> 2, k & 3
            D.issue(f"ds_read_b64_tr_b16 {vr(vF0+4*k,2)}, v{vAV+m} offset:{o+8192+4096*j}")
            return D.issue(f"ds_read_b64_tr_b16 {vr(vF0+4*k+2,2)}, v{vAV+m} offset:{o+8192+4096*j+2048}")
        cvt = [f"v_cvt_pk_bf16_f32 v{vPp+i}, v{vX+2*i}, v{vX+2*i+1}" for i in range(8)]
        lsum = [f"v_mfma_f32_16x16x32_bf16 {vr(vLA,4)}, {vr(vOne,4)}, {vr(vPp+4*j,4)}, {vr(vLA,4)}" for j in range(2)]
        vid = {}
        if last:
            for k in range(8):
                vid[k] = vrd(k)
            self.emit(cvt)
            A("s_nop 1")
            self.emit(lsum)
            for k in range(8):
                D.need(vid[k])
                A(self.pv_mfma(k))
            return
        kid = [D.issue(f"ds_read_b128 {vr(vF0+4*s,4)}, v{vAK+s} offset:{o}") for s in range(8)]
        self.emit(cvt)
        for s in range(8):
            D.need(kid[s])
            A(self.qk_mfma(s, vr(vNM, 16)))
            mark = len(A.L)
            vid[s] = vrd(s)
            if s in extra: extra[s]()
        self.emit(lsum)
        lr, lb = A.lab("L_rare"), A.lab("L_back")
        mx = self.max_atoms()
        ex = [f"v_exp_f32 v{vX+i}, v{vS+i}" for i in range(16)]
        fill = [[], [], mx[:5], mx[5:] + [f"v_cmp_lt_f32 vcc, {sT8}, v{vT0}", f"s_cbranch_vccnz {lr}"] + ex[:1],
                ex[1:4], ex[4:7], ex[7:10], ex[10:16]]
        for k in range(8):
            D.need(vid[k])
            A(self.pv_mfma(k))
            if k == 2:
                dist = len(A.L) - mark
                if dist < 12:
                    A(f"s_nop {12 - dist - 1}")
            self.emit(fill[k])
        A(f"{lb}:")
        R = Asm()
        R(f"{lr}:")
        R("s_waitcnt lgkmcnt(0)")
        for k in range(4, 8):
            R(self.pv_mfma(k))
        R(f"""
        v_mov_b32 v{vT1}, v{vT0}
        s_nop 1
        v_permlane32_swap_b32 v{vT0}, v{vT1}
        s_nop 1
        v_max3_f32 v{vT0}, v{vT0}, v{vT1}, 0
        v_sub_f32 v{vT1}, 0, v{vT0}
        v_exp_f32 v{vT1}, v{vT1}
        """)
        for i in range(16):
            R(f"v_sub_f32 v{vX+i}, v{vS+i}, v{vT0}")
            R(f"v_sub_f32 v{vNM+i}, v{vNM+i}, v{vT0}")
        for i in range(16):
            R(f"v_exp_f32 v{vX+i}, v{vX+i}")
        R(f"v_mul_f32 v{vLA}, v{vLA}, v{vT1}")
        for i in range(64):
            R(f"v_mul_f32 v{vACC+i}, v{vACC+i}, v{vT1}")
        R(f"s_branch {lb}")
        self.rare.append(R)

    def attn_step2(self, buf, last=False, extra={}, carry=False):
        A = self.A
        D = self.D
        o = buf * BLK

        def vrd(k):
            j, m = k >> 2, k & 3
            D.issue(f"ds_read_b64_tr_b16 {vr(vF0+4*k,2)}, v{vAV+m} offset:{o+8192+4096*j}")
            return D.issue(f"ds_read_b64_tr_b16 {vr(vF0+4*k+2,2)}, v{vAV+m} offset:{o+8192+4096*j+2048}")

        def krd(k, DD=None):
            t = f"ds_read_b128 {vr(vF0+4*k,4)}, v{vAK+k} offset:{o}"
            return D.issue(t)
        cvt = [f"v_cvt_pk_bf16_f32 v{vPp+i}, v{vX+2*i}, v{vX+2*i+1}" for i in range(8)]
        lsum = [f"v_mfma_f32_16x16x32_bf16 {vr(vLA,4)}, {vr(vOne,4)}, {vr(vPp+4*j,4)}, {vr(vLA,4)}" for j in range(2)]
        lr, lb = A.lab("L_rare"), A.lab("L_back")
        mx = self.max_atoms()
        ex = [f"v_exp_f32 v{vX+i}, v{vS+i}" for i in range(16)]
        fill = [mx[:4], mx[4:] + [f"v_cmp_lt_f32 vcc, {sT8}, v{vT0}", f"s_cbranch_vccnz {lr}"],
                ex[0:2], ex[2:5], ex[5:7], ex[7:10], ex[10:12], ex[12:14]]
        ex_rest = ex[14:]
        nid = {}
        R = Asm()
        R(f"{lr}:")
        R("s_waitcnt lgkmcnt(0)")
        if -1 in extra: extra[-1]()
        A("s_nop 7")
        base = D.n
        D.n += 16
        D.done = base + 1 if carry else D.n
        for k in range(8):
            D.need(base + 2 * k + 1)
            A(self.pv_mfma(k))
            mark = len(A.L)
            nid[k] = vrd(k) if last else krd(k)
            if k >= 2:
                R(self.pv_mfma(k))
                R.L += [l for l in A.L[mark:] if "ds_read" in l]
            self.emit(fill[k])
        self.emit(ex_rest)
        A(f"{lb}:")
        R(f"""
        v_mov_b32 v{vT1}, v{vT0}
        s_nop 1
        v_permlane32_swap_b32 v{vT0}, v{vT1}
        s_nop 1
        v_max3_f32 v{vT0}, v{vT0}, v{vT1}, 0
        v_sub_f32 v{vT1}, 0, v{vT0}
        v_exp_f32 v{vT1}, v{vT1}
        """)
        for i in range(16):
            R(f"v_sub_f32 v{vX+i}, v{vS+i}, v{vT0}")
            R(f"v_sub_f32 v{vNM+i}, v{vNM+i}, v{vT0}")
        for i in range(16):
            R(f"v_exp_f32 v{vX+i}, v{vX+i}")
        R(f"v_mul_f32 v{vLA}, v{vLA}, v{vT1}")
        for i in range(64):
            R(f"v_mul_f32 v{vACC+i}, v{vACC+i}, v{vT1}")
        R("s_waitcnt lgkmcnt(0)")
        R(f"s_branch {lb}")
        self.rare.append(R)
        if last:
            self.emit(cvt)
            A("s_nop 1")
            self.emit(lsum)
            for k in range(8):
                D.need(nid[k])
                A(self.pv_mfma(k))
            return
        fill2 = [cvt[0:3], cvt[3:6], cvt[6:8], [], lsum[:1], [], lsum[1:], []]
        for s_ in range(8):
            D.need(nid[s_])
            A(self.qk_mfma(s_, vr(vNM, 16)))
            vrd(s_)
            self.emit(fill2[s_])
            if s_ in extra: extra[s_]()

    def onorm(self, dma=()):
        A = self.A
        dma = list(dma)
        A(f"""
        s_nop 7
        v_rcp_f32 v{vT0}, v{vLA}
        s_nop 7
        """)
        for i in range(32):
            if dma and i % 2 == 0:
                A(dma.pop(0))
            A(f"v_pk_mul_f32 {vr(vACC+2*i,2)}, {vr(vACC+2*i,2)}, {vr(vT0,2)} op_sel_hi:[1,0]")
            if i:
                A(f"v_cvt_pk_bf16_f32 v{vQ+i-1}, v{vACC+2*i-2}, v{vACC+2*i-1}")
        A(f"v_cvt_pk_bf16_f32 v{vQ+31}, v{vACC+62}, v{vACC+63}")
        self.emit(dma)

    def write_o(self, bb):
        A = self.A
        A(f"v_add_u32 v{vA+8}, {sKVl}, v{vL16}")
        for i in range(8):
            last = self.D.issue(f"ds_write_b128 v{vA+8}, {vr(vQ+4*i,4)} offset:{bb*BLK+1024*i}")
        return last

    def read_o(self, bb, own, partner):
        A = self.A
        A(f"""
        v_add_u32 v{vA+8}, {sKVl}, v{vL16}
        s_cmp_eq_u32 {sHH}, 0
        s_cselect_b32 {sT}, {3*BLK}, 0
        s_lshl_b32 {sT2}, {sQH}, 13
        s_add_u32 {sT}, {sT}, {sT2}
        v_add_u32 v{vA+9}, {sT}, v{vL16}
        """)
        D = self.D
        ids = []
        if own:
            for i in range(8):
                ids.append(D.issue(f"ds_read_b128 {vr(vQ+4*i,4)}, v{vA+8} offset:{bb*BLK+1024*i}"))
        if partner:
            for i in range(8):
                ids.append(D.issue(f"ds_read_b128 {vr(vOP+4*i,4)}, v{vA+9} offset:{bb*BLK+1024*i}"))
        return ids

    def store_partial(self, pol, tmp=vWF, srd=sP, wait=True):
        A = self.A
        A(f"""
        s_nop 7
        s_nop 7
        s_lshl_b32 {sT}, {sI}, 14
        """)
        for nb in range(8):
            for half in range(2):
                k = 2 * nb + half
                d = tmp + 4 * (k & 7)
                for i in range(4):
                    r = vACC + 16 * nb + 8 * half + 2 * i
                    A(f"v_cvt_pk_bf16_f32 v{d+i}, v{r}, v{r+1}")
                if k in (4, 8, 12):
                    A(f"s_add_u32 {sT}, {sT}, 4096")
                off = f" offset:{(k&3)*1024}" if k & 3 else ""
                A(f"buffer_store_dwordx4 {vr(d,4)}, v{vL16}, {srd}, {sT} offen{off}{pol}")
        if wait and (not OPT["fuse"] or OPT["ts"]):
            A("s_waitcnt vmcnt(0)")

    def loop_end(self, lab, end):
        self.A(f"""
        s_add_u32 {sN}, {sN}, 1
        s_cmp_lt_u32 {sN}, {end}
        s_cbranch_scc1 {lab}
        """)


def schedule_w(order, rd, rel, earliest, reserved, can_issue, cap, pref={}):
    res = {b: list(reserved.get(b, [])) for b in range(10)}
    blk, iss = {}, {}
    cnt = {}
    cur = -2
    for st in order:
        s = max(cur, earliest[st])
        while True:
            assert s < rd[st], (st, s, rd[st])
            ok = None
            if can_issue(s, st) and cnt.get(s, 0) < cap(s):
                best = None
                for b in ([pref[st]] if st in pref else range(9, -1, -1)):
                    if all(rel[st] < a or s > e for a, e in res[b]):
                        nx = min([a for a, e in res[b] if a > rel[st]] + [1000])
                        if best is None or nx < best:
                            ok, best = b, nx
            if ok is not None:
                break
            s += 1
        res[ok].append((s, rel[st]))
        blk[st], iss[st] = ok, s
        cnt[s] = cnt.get(s, 0) + 1
        cur = s
    return blk, iss


def setup(A):
    if OPT["ts"]:
        A("s_memrealtime s[100:101]")
    A(f"""
    s_cmp_ge_u32 s2, 256
    s_cbranch_scc1 L_exit
    s_load_dwordx8 s[60:67], s[0:1], 0
    s_load_dwordx2 s[68:69], s[0:1], 32
    s_load_dwordx8 s[72:79], s[0:1], 40
    s_load_dwordx2 s[80:81], s[0:1], 72
    s_load_dwordx2 s[82:83], s[0:1], 96
    v_lshrrev_b32 v1, 6, v0
    s_and_b32 s4, s2, 7
    v_readfirstlane_b32 {sW_ID}, v1
    s_bfe_u32 s5, s2, 0x10003
    s_lshr_b32 s6, s2, 4
    v_and_b32 v1, 63, v0
    v_lshlrev_b32 v{vL16}, 4, v1
    s_and_b32 {sI}, {sW_ID}, 3
    s_bfe_u32 {sHH}, {sW_ID}, 0x10001
    s_and_b32 {sQH}, {sW_ID}, 1
    s_lshl_b32 {sI4k}, {sI}, 12
    s_lshl_b32 {sI8k}, {sI}, 13
    s_lshl_b32 {sI64k}, {sI}, 16
    s_lshl_b32 {sKhd}, {sHH}, 17
    s_add_u32 {sKhd1}, {sKhd}, 0x40000
    s_mul_i32 {sKrot}, s4, {OPT["rotg"]}
    s_mul_i32 {sT}, s6, {OPT["rotb"]}
    s_add_u32 {sKrot}, {sKrot}, {sT}
    s_and_b32 {sKrot}, {sKrot}, 15
    s_xor_b32 {sT}, {sQH}, 1
    s_add_u32 {sKrot}, {sKrot}, {sT}
    s_lshl_b32 {sKrot}, {sKrot}, 13
    s_mov_b32 {sRot}, s6
    s_mul_i32 {sKVl}, {sHH}, {3*BLK}
    s_lshl_b32 {sT}, {sQH}, 13
    s_add_u32 {sKVl}, {sKVl}, {sT}
    s_lshl_b32 {sRotI}, s6, 18
    s_add_u32 {sRotI}, {sRotI}, {sI64k}
    s_mov_b32 {sC}, {f32bits(math.log2(math.e) / math.sqrt(128.0)):#x}
    s_mov_b32 {sT8}, 0x41000000
    s_waitcnt lgkmcnt(0)
    s_cmp_eq_u32 s5, 0
    s_cselect_b32 s60, s60, s72
    s_cselect_b32 s61, s61, s73
    s_cselect_b32 s62, s62, s74
    s_cselect_b32 s63, s63, s75
    s_cselect_b32 s64, s64, s76
    s_cselect_b32 s65, s65, s77
    s_cselect_b32 s66, s66, s78
    s_cselect_b32 s67, s67, s79
    s_cselect_b32 s68, s68, s80
    s_cselect_b32 s69, s69, s81
    s_cselect_b32 s7, 17, 19
    s_lshl_b32 s10, 1, s7
    s_lshl_b32 {sT}, s6, 16
    s_add_u32 s20, s60, {sT}
    s_addc_u32 s21, s61, 0
    s_and_b32 s21, s21, 0xffff
    s_mov_b32 s22, 0x10000
    s_mov_b32 s23, 0x20000
    s_lshl_b32 {sT}, s4, 10
    s_add_u32 s12, s66, {sT}
    s_addc_u32 s13, s67, 0
    s_and_b32 s13, s13, 0xffff
    s_sub_u32 s14, 0x400000, {sT}
    s_mov_b32 s15, 0x20000
    s_lshl_b32 {sT}, s6, 3
    s_add_u32 {sT}, {sT}, s4
    s_lshl_b32 {sT}, {sT}, s7
    s_bitcmp1_b32 {sW_ID}, 0
    s_cselect_b32 s8, s64, s62
    s_cselect_b32 s9, s65, s63
    s_add_u32 s8, s8, {sT}
    s_addc_u32 s9, s9, 0
    s_and_b32 s9, s9, 0xffff
    s_mov_b32 s11, 0x20000
    s_lshl_b32 {sT}, s4, 19
    s_add_u32 s24, s68, {sT}
    s_addc_u32 s25, s69, 0
    s_and_b32 s25, s25, 0xffff
    s_mov_b32 s26, 0x80000
    s_mov_b32 s27, 0x20000
    s_lshl_b32 {sT}, s5, 4
    s_add_u32 {sT}, {sT}, s6
    s_lshl_b32 {sT}, {sT}, 3
    s_add_u32 {sT}, {sT}, s4
    s_lshl_b32 {sT}, {sT}, 16
    s_add_u32 s28, s82, {sT}
    s_addc_u32 s29, s83, 0
    s_and_b32 s29, s29, 0xffff
    s_mov_b32 s30, 0x10000
    s_mov_b32 s31, 0x20000
    """)
    if OPT["ts"]:
        A(f"""
        s_lshl_b32 {sT}, s2, 3
        s_add_u32 {sT}, {sT}, {sW_ID}
        s_lshl_b32 {sT}, {sT}, 6
        s_add_u32 {sT}, {sT}, 0x8000000
        s_add_u32 s54, s82, {sT}
        s_addc_u32 s55, s83, 0
        """)
        for i in range(16):
            A(f"s_mov_b32 s{84+i}, 0")
        A("s_mov_b32 s66, 0\nv_mov_b32 v30, 0\nv_mov_b32 v31, 0")
        if OPT.get("trace"):
            A("v_writelane_b32 v31, s100, 63")


def patterns(A):
    A(f"""
    v_lshrrev_b32 v2, 5, v1
    v_and_b32 v3, 31, v1
    """)
    for p in range(4):
        A(f"""
        v_add_u32 v29, {(2*p)&3}, v2
        v_lshlrev_b32 v29, 2, v29
        v_xor_b32 v29, v29, v3
        v_lshlrev_b32 v29, 4, v29
        v_lshl_add_u32 v29, v2, 13, v29
        v_add_u32 v{vWo+p}, {2*p*8192 - p*1024}, v29
        """)


def patterns2(A):
    A(f"""
    v_lshrrev_b32 v2, 4, v1
    v_and_b32 v3, 15, v1
    v_lshlrev_b32 v19, 2, v2
    s_bitcmp1_b32 {sW_ID}, 0
    s_cselect_b64 vcc, -1, 0
    """)
    for p in range(4):
        A(f"""
        v_add_u32 v29, {4*p}, v2
        v_cndmask_b32 v29, v29, v19, vcc
        v_xor_b32 v29, v29, v3
        v_lshlrev_b32 v29, 4, v29
        v_lshl_add_u32 v{vKVo+p}, v2, 8, v29
        """)
    A(f"""
    v_and_b32 v2, 31, v1
    v_lshrrev_b32 v3, 5, v1
    v_and_b32 v19, 15, v1
    v_xor_b32 v19, v19, v3
    v_lshlrev_b32 v19, 4, v19
    v_lshl_add_u32 v{vPK}, v2, 8, v19
    v_lshl_add_u32 v19, v2, 9, v19
    s_lshl_b32 {sT}, {sQH}, 14
    v_add_u32 v{vPX}, {sT}, v19
    """)
    A(f"""
    v_bfe_u32 v32, v1, 4, 1
    v_bfe_u32 v33, v1, 2, 2
    v_and_b32 v34, 1, v1
    v_bfe_u32 v35, v1, 1, 1
    v_lshlrev_b32 v36, 1, v34
    v_or_b32 v36, v36, v35
    v_lshl_add_u32 v36, v32, 2, v36
    v_lshlrev_b32 v36, 3, v36
    v_lshl_add_u32 v36, v33, 6, v36
    v_lshlrev_b32 v37, 2, v3
    v_add_u32 v37, v37, v33
    v_lshl_add_u32 v{vPV}, v37, 8, v36
    v_lshlrev_b32 v37, 3, v3
    v_add_u32 v37, v37, v33
    v_lshl_add_u32 v38, v37, 9, v36
    s_lshl_b32 {sT}, {sHH}, 8
    v_add_u32 v{vPW}, {sT}, v38
    v_lshlrev_b32 v36, 2, v34
    v_lshl_add_u32 v36, v32, 1, v36
    v_add_u32 v36, v36, v35
    v_lshlrev_b32 v36, 3, v36
    v_lshl_add_u32 v36, v33, 6, v36
    v_lshl_add_u32 v38, v37, 10, v36
    s_lshl_b32 {sT}, {sHH}, 9
    v_add_u32 v{vPO}, {sT}, v38
    """)


def pre_x(S, issue_pre, preread, fine=False, shared=False):
    A = S.A
    stamp(A, 0)
    if fine: stamp(A, 10, True)
    if shared:
        S.rec(4, -1)
    else:
        S.dma_x(0)
        patterns(A)
    issue_pre(-2)
    patterns2(A)
    if fine: stamp(A, 11, True)
    S.endslot(-2, barrier=False)
    if fine: stamp(A, 15, True)
    A("s_barrier")
    stamp(A, 7)
    S.read_x(0)
    issue_pre(-1)
    S.dma_x(1)
    if preread is not None:
        S.wslice("q", 0, None, preread, False)
    S.endslot(-1)
    stamp(A, 1)


def attn_loop(S, first_buf, n0, body_pre=None, tail=None, st=None, shifted=False, carry=False):
    A = S.A
    A(f"s_mov_b32 {sN}, 0")
    l = A.lab("L_attn")
    if int(OPT["lal"]):
        A.L.append(f".p2align {OPT['lal']}")
    A(f"{l}:")
    for k in range(3):
        if st and k == 0:
            cstamp(A, 8, 2); cstamp(A, 13, 0); cstamp(A, 14, 4)
        if st and k == 1:
            cstamp(A, 12, 2)
        S.attn_step2((first_buf + k) % 3, extra=body_pre(k) if body_pre else {}, carry=carry)
        if st and k == 0:
            cstamp(A, 9, 2)
        tail(k)
        S.D.done = S.D.n
    S.drained()
    S.loop_end(l, 5)


def prog_b():
    w1, w2 = int(OPT["w1"]), int(OPT["w2"])
    per = int(OPT["wper"])
    look = int(OPT["look"])
    uq, uo = OPT["uq"], int(OPT["uo"])
    use, rd, rel, early = {}, {}, {}, {}
    for st in range(64):
        k = st & 15
        if st < 16:
            use[st] = st
        elif st < 32:
            use[st] = k if uq else w1 + (k * int(OPT['n1'])) // 16
        elif st < 48 - uo:
            use[st] = w2 + (k * int(OPT['n2'])) // 16
        else:
            use[st] = 49 + st - (48 - uo)
    lw = OPT["latew"] and uo == 16
    la, lb_ = int(OPT["la"]), int(OPT["lb"])
    if lw:
        for st in range(32, 64):
            k = st - 32
            use[st] = 47 if k < la else (48 if k < la + lb_ else 49 + k - la - lb_)
    E0 = use[48]
    NS = use[63] + 1
    for st in range(64):
        k = st & 15
        win = (16 <= st < 32 and not uq) or (32 <= st < 48 - uo)
        rd[st] = use[st] - 1 if (k == 0 or not win) else use[st - 1]
        rel[st] = rd[st] if win else use[st]
        if lw and st >= 32:
            rd[st] = 47 if st == 32 else use[st - 1]
            rel[st] = rd[st] if rd[st] == 47 else use[st]
        early[st] = rd[st] - (2 if win else look)
        if st >= 48 - uo:
            early[st] = max(early[st], int(OPT["estart"]))
    assert use[31] <= 31 and w2 >= 34
    aop = OPT["aop"]
    order = ([x for i in range(16) for x in (i, 16 + i)] if uq else list(range(32))) + list(range(48 if aop else 32, 64))
    kv2 = int(OPT["kv2"])
    kvs = int(OPT["kvstart"])
    reserved = {0: [(-2, -1), (kvs, 46)], 3: [(-2, XH2), (kvs, 46)], 1: [(-2, -1), (kvs + 2, E0)], 4: [(-2, XH2), (kvs + 2, E0)],
                2: [(kv2, 48)], 5: [(kv2, 48)], 8: [(33, 34)], 9: [(33, 34)]}
    blk, iss = schedule_w(order, rd, rel, early, reserved, lambda s, st: True,
                          lambda s: int(OPT["first"]) * (2 if uq else 1) if s < 0 else int(OPT["maxiss"]) + (1 if uq else 0),
                          {} if uq else dict(enumerate([2, 5, 9, 8, 7, 6, 0, 3, 1, 4, 2, 5, 9, 8, 7, 6])))
    by_slot, at_slot = {}, {}
    for st in order:
        by_slot.setdefault(iss[st], []).append(st)
        at_slot.setdefault(use[st], []).append(st)
    if OPT.get("verbose"):
        print("B sched", [(st, iss[st], rd[st], blk[st]) for st in order], file=sys.stderr)
    MB = 8 * BLK
    LB = max(iss[63] + int(OPT['lbd']), E0)
    OPT['lwB'] = min(b for b in range(10) if all(rel[st] <= LB for st in order if blk[st] == b))

    def w_atoms(S, n, G=None):
        at = []
        for st in by_slot.get(n, []):
            if uq and st < 32 and (st >> 4) != G:
                continue
            at += S.dma_w(st, blk[st], min(rd[st], LB + 1))
        return at

    def kv_atoms(S, n):
        beta = n - 15
        if beta < 2 or beta > 31:
            return []
        return S.dma_kv_b(beta, 0, 17 + beta) + S.dma_kv_b(beta, 1, 17 + beta)

    def slices(S, n, lo, hi, kind, at):
        sts = [st for st in at_slot.get(n, []) if lo <= st < hi]
        pre = [st for st in range(lo, hi) if rd[st] == n and not (st > lo and use[st - 1] == n)]
        if not sts and not pre:
            S.emit(at)
            return
        nparts = len(sts) + len(pre)
        chunk = (len(at) + nparts - 1) // nparts
        for st in [p for p in pre if use[p] == n]:
            S.wslice(kind, 0, None, blk[st], False, at[:chunk])
            at = at[chunk:]
        for st in sts:
            nxt = st + 1 if (st + 1 < hi and rd[st + 1] == n and st + 1 not in pre) else None
            S.wslice(kind, st & 15, blk[st], blk[nxt] if nxt is not None else None, st in (0, 16, 48 if aop else 32), at[:chunk])
            at = at[chunk:]
        for st in [p for p in pre if use[p] != n]:
            S.wslice(kind, 0, None, blk[st], False, at[:chunk])
            at = at[chunk:]

    S = G0 = Stream()
    A = S.A
    tail = lambda k: S.A("s_waitcnt vmcnt(0) lgkmcnt(0)\ns_barrier")
    pre_x(S, lambda n: S.emit(w_atoms(S, n, 0)) if uq else None, blk[0], shared=OPT['bsh'])
    A(f"s_mul_i32 {sKU}, {sHH}, {3*BLK}")
    for n in range(16):
        at = w_atoms(S, n, 0) if uq else []
        if kvs <= n < kvs + 4:
            k = n - kvs
            at = at + S.dma_kv_b((k >> 1) - 1, k & 1, 16 + (k >> 1))
        if kv2 <= n < kv2 + 2:
            at = at + S.dma_kv_b(1, n - kv2, 18)
        if n == 8: stamp(A, 10, True)
        if n == 12: stamp(A, 11, True)
        if n == XH2:
            xl = S.read_x(1)
        slices(S, n, 0, 16, "q", at)
        if n == XH2:
            S.D.need(xl)
        S.endslot(n, drain=False)
    stamp(A, 2)
    S.qfinal()
    bs = OPT["bshift"]
    S.attn_pro(0, sKU, bs)
    S.endslot(16)
    attn_loop(S, 1, 17, tail=tail, st=True, shifted=bs)
    count_clear(A)
    S.attn_step2(1, last=True)
    S.endslot(32)
    stamp(A, 3)
    for n in range(33, NS):
        at = []
        must = None
        if n <= 48:
            at = w_atoms(S, n) + kv_atoms(S, n)
        if n == 33:
            S.onorm(at)
            at = []
            A(f"""
            s_add_u32 {sT}, {sI8k}, {MB}
            v_add_u32 v{vA+8}, {sT}, v{vL16}
            v_xor_b32 v{vA+9}, 0x4000, v{vA+8}
            """)
            for i in range(8):
                S.D.issue(f"ds_write_b128 v{vA+8}, {vr(vQ+4*i,4)} offset:{1024*i}")
        if n == 34:
            for i in range(8):
                S.D.issue(f"ds_read_b128 {vr(vOP+4*i,4)}, v{vA+9} offset:{1024*i}")
        if n == 41: stamp(A, 15, True)
        if n == 49:
            stamp(A, 4)
        if n == E0:
            ids = S.read_o(1, True, True)
            S.D.need(ids[0])
            must = ids[-1]
        slices(S, n, 48 if aop else 32, 64, "o", at)
        if must is not None:
            S.D.need(must)
        if n <= LB:
            S.endslot(n, drain=(n < 48))
    stamp(A, 5)
    S.store_partial(OPT['st'])
    stamp(A, 6)
    finish(A)
    S = G1 = Stream()
    A = S.A
    if OPT['prio']:
        A(f"s_setprio {OPT['prio']}")
    pre_x(S, lambda n: S.emit(w_atoms(S, n, 1)), blk[16] if uq else None, shared=OPT['bsh'])
    for n in range(32):
        if n == 16: stamp(A, 2)
        if n == 20: stamp(A, 8, True)
        if n == 21: stamp(A, 9, True)
        if n == 25: stamp(A, 10, True)
        if n == 28: stamp(A, 11, True)
        if n == 29: stamp(A, 12, True)
        at = w_atoms(S, n, 1) + kv_atoms(S, n)
        if n == XH2:
            S.D.need(S.read_x(1))
        slices(S, n, 16, 32, "q", at)
        if n == use[31] + 1:
            S.qfinal()
        S.endslot(n, drain=not (uq and n < 16))
    S.emit(w_atoms(S, 32) + kv_atoms(S, 32))
    if OPT['prio']:
        A('s_setprio 0')
    if use[31] == 31:
        S.qfinal()
    A(f"s_mul_i32 {sKU}, {sHH}, {3*BLK}")
    S.attn_pro(1, sKU, bs)
    S.endslot(32)
    stamp(A, 3)
    attn_loop(S, 2, 33, tail=tail, shifted=bs)
    (S.attn_step2 if bs else S.attn_step)(2, last=True)
    S.onorm()
    S.write_o(1)
    S.endslot(48)
    stamp(A, 4)
    if OPT['prio']:
        A(f"s_setprio {OPT['prio']}")
    for n in range(49, LB + 1):
        S.emit(w_atoms(S, n))
        S.endslot(n)
    stamp(A, 5)
    finish(A)
    return G0, G1


def prog_a():
    aop = OPT["aop"]
    NST = 80 if aop else 64
    use = {st: (st & 15 if st < 32 else st + 1) for st in range(NST)}
    rd = {st: use[st] - 1 for st in range(NST)}
    order = [x for i in range(16) for x in (i, 16 + i)] + list(range(32, NST))
    ks = int(OPT['akvstart'])
    g0s, g1s = int(OPT['ag0']), int(OPT['ag1'])
    AD = int(OPT['ad'])
    pre_slots = [g0s, g0s, g0s, g1s, g1s, g1s]
    seq = [(9, 8), (7, 6), (2, 5), (0, 1)] + [(9, 8), (7, 6), (2, 5), (3, 4), (0, 1)] * 3
    pref = {16 * g + i: seq[i][g] for i in range(16) for g in range(2)}
    reserved = {b: [(pre_slots[b], 30 if b < 3 else 32)] for b in range(6)}
    for b in (0, 1, 3, 4):
        reserved[b].append((-2, -1 if b < 3 else XH2))
    reserved[0].append((33, 34)); reserved[3].append((33, 34)); reserved[1].append((33, 49)); reserved[4].append((33, 49))
    early = {st: -2 if st < 32 else 29 for st in range(NST)}
    blk, iss = schedule_w(order, rd, use, early, reserved, lambda s, st: not (15 < s < 29 or s in (30, 31)),
                          lambda s: int(OPT['afirst']) if s == -2 else 4, pref)
    if OPT.get("verbose"):
        print("A sched", [(st, iss[st], blk[st]) for st in order], file=sys.stderr)
    by_slot = {}
    for st in order:
        by_slot.setdefault(iss[st], []).append(st)
    LB = iss[NST - 1] + int(OPT["lbd"])
    OPT['lwA'] = min(b for b in range(10) if all(use[st] <= LB for st in order if blk[st] == b))

    res = []
    for G in range(2):
        S = Stream()
        A = S.A

        def w_atoms(n):
            at = []
            for st in by_slot.get(n, []):
                owner = (st >> 4) if st < 32 else 1
                if owner == G:
                    at += S.dma_w(st, blk[st], min(rd[st], LB + 1))
            return at

        m1n, m1t = int(OPT["m1n"]), int(OPT["m1t"])
        if m1n:
            A(f"""
            s_lshl_b32 {sT}, s6, 3
            s_add_u32 {sT}, {sT}, s4
            s_lshl_b32 {sT}, {sT}, 19
            s_bitcmp1_b32 {sW_ID}, 0
            s_cselect_b32 s60, s76, s74
            s_cselect_b32 s61, s77, s75
            s_add_u32 s60, s60, {sT}
            s_addc_u32 s61, s61, 0
            s_and_b32 s61, s61, 0xffff
            s_mov_b32 s62, 0x80000
            s_mov_b32 s63, 0x20000
            v_lshlrev_b32 v29, 3, v{vL16}
            """)
            for t in range(m1t + G, m1t + m1n, 2):
                A(f"""
                s_add_u32 {sT}, {sKrot}, {(t & 15) * 8192}
                s_and_b32 {sT}, {sT}, 0x1ffff
                s_add_u32 {sT}, {sT}, {sKhd1 if t >= 16 else sKhd}
                buffer_load_dword v12, v29, {sPF}, {sT} offen{OPT["m1pol"]}
                """)
        pre_x(S, lambda n: S.emit(w_atoms(n)), blk[16 * G], True)
        A(f"""
        s_lshl_b32 {sKoff}, {sHH}, 12
        s_lshl_b32 {sKI}, {sQH}, 13
        s_add_u32 {sKI}, {sKI}, {sKoff}
        s_add_u32 {sKIend}, {sKI}, {6*BLK}
        s_add_u32 {sKoff}, {sKoff}, {sKrot}
        s_add_u32 {sKoff}, {sKoff}, {15*8192}
        """)
        for n in range(17):
            if n == XH2:
                xl = S.read_x(1)
            if n < 16:
                S.wslice("q", n, blk[16 * G + n], blk[16 * G + n + 1] if n < 15 else None, n == 0, w_atoms(n))
            if n == XH2:
                S.D.need(xl)
            if G == 0:
                for j in range(AD + 1 if AD else 6):
                    if pre_slots[j] == n:
                        S.dma_kv_a((16 + j) if AD else (16 if j < 3 else 19), first=(j == 0))
            if n < 16:
                S.endslot(n, drain=False)
        stamp(A, 2)
        if G == 1:
            A(f"""
            s_lshl_b32 {sT}, s4, 19
            s_add_u32 s16, s80, {sT}
            s_addc_u32 s17, s81, 0
            s_and_b32 s17, s17, 0xffff
            s_mov_b32 s18, 0x80000
            s_mov_b32 s19, 0x20000
            s_lshl_b32 s65, {sRot}, 15
            s_add_u32 s65, s65, {sI8k}
            v_lshlrev_b32 v{vTch}, 3, v{vL16}
            s_lshl_b32 {sT}, s6, 3
            s_add_u32 {sT}, {sT}, s4
            s_lshl_b32 {sT}, {sT}, 19
            s_bitcmp1_b32 {sW_ID}, 0
            s_cselect_b32 s60, s76, s74
            s_cselect_b32 s61, s77, s75
            s_add_u32 s60, s60, {sT}
            s_addc_u32 s61, s61, 0
            s_and_b32 s61, s61, 0xffff
            s_mov_b32 s62, 0x80000
            s_mov_b32 s63, 0x20000
            s_lshl_b32 {sPFoff}, {sHH}, 17
            """)
        S.qfinal()
        S.attn_pro(0, 0, True)
        if AD:
            S.endslot(16)
        else:
            A("s_waitcnt lgkmcnt(0)")
        lim = lambda k: (15 - AD - k) // 3 + 1

        def guarded(cond, f):
            def g():
                sk = A.lab("L_sk")
                A(cond + f"\ns_cbranch_scc0 {sk}")
                f()
                A(f"{sk}:")
            return g

        def body_pre(k):
            e = {}
            if G == 0:
                two = lambda p: (lambda: (S.dma_kv_a_part(p), S.dma_kv_a_part(p + 1)))
                if k == 2:
                    c, c3 = f"s_cmp_lt_u32 {sN}, 4", f"s_cmp_lt_u32 {sN}, 3"
                    e = {-1: guarded(c, lambda: (two(0)(), two(2)())), 0: guarded(c, two(0)), 1: guarded(c, two(2)),
                         2: guarded(c3, two(0)), 3: guarded(c3, two(2))}
                if AD:
                    four = lambda: (two(0)(), two(2)())
                    e = {-1: guarded(f"s_cmp_lt_u32 {sN}, {lim(k)}", four) if lim(k) < 5 else four}
                elif OPT["aspread"]:
                    if k == 2:
                        e = {-1: guarded(c, two(0)), 1: guarded(c, two(2)), 4: guarded(c, two(0)), 7: guarded(c, two(2))}
                    if k == 0:
                        c = f"s_sub_u32 {sT}, {sN}, 1\ns_cmp_lt_u32 {sT}, 3"
                        e = {-1: guarded(c, two(0)), 1: guarded(c, two(2))}
            else:
                if OPT["wopf"] and OPT["wosplit"]:
                    it = int(OPT['wopfit'])

                    def tch(srd, hi):
                        return lambda: A(f"s_mov_b32 exec_{'lo' if hi else 'hi'}, 0\n"
                                         f"buffer_load_dword v12, v{vTch}, {srd}, s65 offen\ns_mov_b64 exec, -1")
                    if k < 2:
                        e[5] = guarded(f"s_cmp_eq_u32 {sN}, {it}", tch('s[16:19]', k))
                        e[6] = guarded(f"s_cmp_eq_u32 {sN}, {it + 1}", tch(sWO, k))
                elif OPT["wopf"] and k != 1:
                    e[5] = guarded(f"s_cmp_eq_u32 {sN}, {OPT['wopfit']}",
                                   lambda: A(f"buffer_load_dword v12, v{vTch}, {sWO if k else 's[16:19]'}, s65 offen"))
                if k == 0:
                    e[1] = guarded(f"s_cmp_eq_u32 {sN}, 4", lambda: S.emit(w_atoms(29)))
            return e

        def tail(k):
            if int(OPT["asleep"]):
                A(f"s_sleep {OPT['asleep']}")
            if k == 1:
                for r in range(12):
                    A(f"v_xor_b32 v{vAK+r}, 0xc000, v{vAK+r}")
            if AD:
                if G == 1:
                    if k == 1:
                        guarded(f"s_cmp_eq_u32 {sN}, 4", lambda: A("s_waitcnt vmcnt(0)"))()
                else:
                    if lim(k) < 5 and AD > 1:
                        guarded(f"s_cmp_ge_u32 {sN}, {lim(k)}", lambda: A("s_waitcnt vmcnt(0)"))()
                    A(f"s_waitcnt vmcnt({4 * (AD - 1)})")
                A("s_barrier")
            elif k == 1:
                if G == 1:
                    guarded(f"s_cmp_eq_u32 {sN}, 4", lambda: A("s_waitcnt vmcnt(0)"))()
                    A("s_waitcnt lgkmcnt(0)\ns_barrier")
                else:
                    A("s_waitcnt vmcnt(0) lgkmcnt(0)\ns_barrier")
            elif OPT["abar"]:
                A("s_barrier")
        attn_loop(S, 1, 17, body_pre, tail, st=True, shifted=True, carry=True)
        S.emit(w_atoms(32))
        S.attn_step2(1, last=True, carry=True)
        S.onorm()
        if G == 0:
            S.wslice("o", 0, None, blk[32], False)
        S.endslot(32, drain=(G == 1))
        stamp(A, 3)
        if G == 0:
            count_clear(A)
        must = S.write_o(G)
        if G == 0:
            for n in range(33, NST + 1):
                st = n - 1
                if n == 34:
                    must = S.read_o(0, False, True)[-1]
                if n == 49:
                    stamp(A, 4)
                    ids = S.read_o(1, True, True)
                    S.D.need(ids[0])
                    must = ids[-1]
                if n == 60 and aop:
                    A(f"""
                    s_waitcnt lgkmcnt(0)
                    s_load_dwordx2 s[70:71], s[0:1], 88
                    s_lshl_b32 {sT}, s6, 2
                    s_add_u32 {sT}, {sT}, 128
                    v_mov_b32 v{vA+8}, {sT}
                    s_lshl_b32 {sT}, s6, 3
                    s_add_u32 {sT}, {sT}, s4
                    s_lshl_b32 {sT2}, {sT}, 16
                    s_add_u32 {sT2}, {sT2}, {XP_OFF}
                    s_add_u32 s60, s82, {sT2}
                    s_addc_u32 s61, s83, 0
                    s_and_b32 s61, s61, 0xffff
                    s_mov_b32 s62, 0x10000
                    s_mov_b32 s63, 0x20000
                    s_lshl_b32 {sT}, {sT}, 15
                    s_add_u32 {sT}, {sT}, {HO_OFF}
                    s_add_u32 {sT}, {sT}, {sI8k}
                    v_add_u32 v{vA+4}, {sT}, v{vL16}
                    v_add_u32 v{vA+5}, 0x1000, v{vA+4}
                    v_xor_b32 v{vA+6}, 0x4000, v{vA+4}
                    v_xor_b32 v{vA+7}, 0x4000, v{vA+5}
                    s_mov_b32 s76, 0
                    s_waitcnt lgkmcnt(0)
                    L_a_poll:
                    global_load_dword v{vA+9}, v{vA+8}, s[70:71] sc1
                    s_add_u32 s76, s76, 1
                    s_waitcnt vmcnt(0)
                    v_readfirstlane_b32 s77, v{vA+9}
                    s_cmp_gt_u32 s76, 0x40000
                    s_cbranch_scc1 L_a_go
                    s_lshr_b32 s77, s77, s4
                    s_bitcmp1_b32 s77, 0
                    s_cbranch_scc1 L_a_go
                    s_sleep 8
                    s_branch L_a_poll
                    L_a_go:
                    """)
                    S.D.done = S.D.n
                    for i in range(8):
                        A(f"global_load_dwordx4 {vr(vQ+4*i,4)}, v{vA+4+(i>>2)}, s[82:83] offset:{(i&3)*1024} sc1")
                if n == 65:
                    stamp(A, 5)
                    S.store_partial(OPT['sta'], tmp=vOP, wait=False)
                    A("s_nop 1")
                    for i in range(8):
                        A(f"global_load_dwordx4 {vr(vOP+4*i,4)}, v{vA+6+(i>>2)}, s[82:83] offset:{(i&3)*1024} sc1")
                    A("s_waitcnt vmcnt(24)")
                if n == 73:
                    A("s_waitcnt vmcnt(0)")
                S.wslice("o", st & 15, blk[st], blk[st + 1] if st < NST - 1 else None, n in (33, 65))
                if must is not None:
                    S.D.need(must)
                    must = None
                if n <= LB:
                    S.endslot(n, drain=False)
            if aop:
                S.store_partial(OPT['sta'], srd="s[60:63]")
            else:
                stamp(A, 5)
                S.store_partial(OPT['sta'])
            stamp(A, 6)
        else:
            for n in range(33, LB + 1):
                S.emit(w_atoms(n))
                S.endslot(n)
            stamp(A, 5)
            for t in range(int(OPT["lt0"]), 32):
                A(f"s_add_u32 {sT}, {sPFoff}, {(t >> 4) * 262144 + (t & 15) * 8192}")
                A(f"buffer_load_dword v12, v{vTch}, {sPF}, {sT} offen")
            stamp(A, 6)
        finish(A)
        res.append(S)
    return res


MBX = 0x2000000


def early_clear(A):
    A(f"""
    s_cmp_eq_u32 {sW_ID}, 1
    s_cbranch_scc0 L_noclr
    s_lshl_b32 {sT}, s2, 8
    s_add_u32 {sT}, {sT}, {MBX}
    v_lshlrev_b32 v2, 2, v1
    v_add_u32 v2, {sT}, v2
    v_mov_b32 v3, 0
    s_mov_b64 exec, 0xff
    global_store_dword v2, v3, s[82:83] sc1
    s_mov_b64 exec, -1
    L_noclr:
    s_load_dwordx2 s[70:71], s[0:1], 88
    """)


def count_clear(A):
    l = A.lab("L_cc")
    A(f"""
    s_cmp_eq_u32 {sW_ID}, 1
    s_cbranch_scc0 {l}
    s_lshr_b32 {sT}, s2, 3
    s_lshl_b32 {sT}, {sT}, 2
    v_mov_b32 v2, {sT}
    v_mov_b32 v3, 1
    s_mov_b64 exec, 1
    global_atomic_add v2, v3, s[70:71]{' offset:128' if OPT.get('dbg') else ''}
    s_mov_b64 exec, -1
    {l}:
    """)


def final_reduce(A):
    A(f"""
    L_final:
    s_load_dwordx4 s[68:71], s[0:1], 80
    s_lshr_b32 s72, s2, 3
    s_lshl_b32 {sT}, s5, 4
    s_add_u32 {sT}, {sT}, s6
    s_lshl_b32 {sT}, {sT}, 19
    s_add_u32 s16, s82, {sT}
    s_addc_u32 s17, s83, 0
    s_and_b32 s17, s17, 0xffff
    s_mov_b32 s18, 0x80000
    s_mov_b32 s19, 0x20000
    s_lshl_b32 s73, s4, 3
    s_add_u32 s73, s73, {sW_ID}
    s_lshl_b32 s73, s73, 10
    v_and_b32 v2, 31, v1
    v_lshrrev_b32 v3, 5, v1
    v_lshlrev_b32 v2, 11, v2
    v_lshl_add_u32 v2, v3, 5, v2
    s_lshl_b32 s74, s6, 17
    s_lshl_b32 {sT}, s5, 10
    s_add_u32 s74, s74, {sT}
    s_bfe_u32 {sT}, s4, 0x10001
    s_lshl_b32 {sT}, {sT}, 16
    s_add_u32 s74, s74, {sT}
    s_lshr_b32 {sT}, s4, 2
    s_lshl_b32 {sT}, {sT}, 9
    s_add_u32 s74, s74, {sT}
    s_and_b32 {sT}, s4, 1
    s_lshl_b32 {sT}, {sT}, 8
    s_add_u32 s74, s74, {sT}
    s_lshr_b32 {sT}, {sW_ID}, 1
    s_lshl_b32 {sT}, {sT}, 6
    s_add_u32 s74, s74, {sT}
    s_lshl_b32 {sT}, {sQH}, 4
    s_add_u32 s74, s74, {sT}
    s_mov_b32 s75, 0xffff0000
    s_lshl_b32 s76, s72, 11
    s_lshl_b32 {sT}, s4, 2
    s_add_u32 s76, s76, {sT}
    s_add_u32 s76, s76, {MBX}
    v_lshlrev_b32 v7, 8, v1
    v_add_u32 v7, s76, v7
    s_lshl_b32 s76, s2, 8
    s_add_u32 s76, s76, {MBX}
    v_and_b32 v8, 7, v1
    v_lshlrev_b32 v8, 2, v8
    v_add_u32 v8, s76, v8
    s_lshl_b32 s72, s72, 2
    v_mov_b32 v4, s72
    v_mov_b32 v5, 1
    s_mov_b32 s76, 0
    s_waitcnt lgkmcnt(0)
    s_mov_b32 s20, s68
    s_and_b32 s21, s69, 0xffff
    s_mov_b32 s22, 0x200000
    s_mov_b32 s23, 0x20000
    s_cmp_eq_u32 {sW_ID}, 5
    s_cbranch_scc0 L_fin_t1
    L_fin_clr:
    global_load_dword v6, v4, s[70:71]{' offset:128' if OPT.get('dbg') else ''} sc1
    s_add_u32 s76, s76, 1
    s_waitcnt vmcnt(0)
    v_readfirstlane_b32 s77, v6
    s_cmp_gt_u32 s76, 0x40000
    s_cbranch_scc1 L_fin_t1
    s_cmp_ge_u32 s77, 8
    s_cbranch_scc1 L_fin_t1
    s_sleep 16
    s_branch L_fin_clr
    L_fin_t1:
    s_cmp_eq_u32 s5, 0
    s_cselect_b32 {sT}, {OPT["lwA"]}, {OPT["lwB"]}
    s_lshl_b32 {sT}, {sT}, 14
    v_mov_b32 v9, {sT}
    v_mov_b32 v6, 0
    s_cmp_eq_u32 {sW_ID}, 7
    s_cbranch_scc0 L_fin_nz
    ds_write_b32 v9, v6
    L_fin_nz:
    s_waitcnt vmcnt(0) lgkmcnt(0)
    s_barrier
    s_cmp_eq_u32 {sW_ID}, 0
    s_cbranch_scc0 L_fin_nosig
    s_mov_b64 exec, 0xff
    global_store_dword v7, v5, s[82:83] sc1
    s_mov_b64 exec, -1
    L_fin_nosig:
    s_mov_b32 s76, 0
    s_mov_b32 s78, 0
    L_fin_poll:
    s_cmp_eq_u32 {sW_ID}, 7
    s_cbranch_scc1 L_fin_pg
    s_sleep 1
    ds_read_b32 v6, v9
    s_waitcnt lgkmcnt(0)
    v_readfirstlane_b32 s77, v6
    s_branch L_fin_pj
    L_fin_pg:
    global_load_dword v6, v8, s[82:83] sc1
    s_add_u32 s76, s76, 1
    s_waitcnt vmcnt(0)
    v_cmp_eq_u32 vcc, 1, v6
    s_cmp_gt_u32 s76, 0x40000
    s_cselect_b32 s77, 0xff, 0
    s_or_b32 s77, s77, vcc_lo
    s_and_b32 s77, s77, 0xff
    v_mov_b32 v6, s77
    ds_write_b32 v9, v6
    L_fin_pj:
    s_andn2_b32 s79, s77, s78
    s_or_b32 s78, s78, s77
    """)
    for j in range(8):
        A(f"""
        s_bitcmp1_b32 s79, {j}
        s_cbranch_scc0 L_fin_s{j}
        s_add_u32 {sT}, s73, {j*0x10000}
        buffer_load_dwordx4 {vr(80+4*j,4)}, v{vL16}, s[16:19], {sT} offen sc1
        L_fin_s{j}:
        """)
    A("""
    s_cmp_eq_u32 s78, 0xff
    s_cbranch_scc0 L_fin_poll
    s_waitcnt vmcnt(0)
    """)
    for j in range(8):
        for i in range(4):
            r = 80 + 4 * j + i
            if j == 0:
                A(f"v_lshlrev_b32 v{64+2*i}, 16, v{r}")
                A(f"v_and_b32 v{65+2*i}, s75, v{r}")
            else:
                A(f"v_lshlrev_b32 v72, 16, v{r}")
                A(f"v_and_b32 v73, s75, v{r}")
                A(f"v_add_f32 v{64+2*i}, v{64+2*i}, v72")
                A(f"v_add_f32 v{65+2*i}, v{65+2*i}, v73")
    for i in range(4):
        A(f"v_cvt_pk_bf16_f32 v{76+i}, v{64+2*i}, v{65+2*i}")
    A("buffer_store_dwordx4 v[76:79], v2, s[20:23], s74 offen")
    if OPT["ts"]:
        A("s_waitcnt vmcnt(0)")
        stamp(A, 1)
    stamps_out(A)
    A("s_endpgm")


def finish(A):
    if OPT["fuse"]:
        A("s_branch L_final")
    else:
        stamps_out(A)
        A("s_endpgm")


def reduce_kernel(A):
    A(f"""
    s_cmp_ge_u32 s2, 512
    s_cbranch_scc1 L_exit2
    {"s_memrealtime s[24:25]" if OPT["ts"] else ""}
    s_load_dwordx2 s[4:5], s[0:1], 96
    s_load_dwordx2 s[6:7], s[0:1], 80
    v_lshlrev_b32 v1, 4, v0
    s_lshr_b32 s16, s2, 4
    s_lshl_b32 s17, s16, 19
    s_and_b32 s18, s2, 15
    s_lshl_b32 s18, s18, 12
    s_add_u32 s17, s17, s18
    s_waitcnt lgkmcnt(0)
    s_mov_b32 s8, s4
    s_and_b32 s9, s5, 0xffff
    s_mov_b32 s10, 0x1000000
    s_mov_b32 s11, 0x20000
    s_mov_b32 s12, s6
    s_and_b32 s13, s7, 0xffff
    s_mov_b32 s14, 0x200000
    s_mov_b32 s15, 0x20000
    """)
    for j in range(8):
        A(f"buffer_load_dwordx4 {vr(8+4*j,4)}, v1, s[8:11], s17 offen")
        if j < 7:
            A("s_add_u32 s17, s17, 0x10000")
    A(f"""
    v_and_b32 v2, 31, v0
    v_bfe_u32 v3, v0, 5, 1
    v_bfe_u32 v4, v0, 6, 1
    v_bfe_u32 v5, v0, 7, 1
    v_lshlrev_b32 v2, 11, v2
    v_lshl_add_u32 v2, v3, 5, v2
    v_lshl_add_u32 v2, v4, 4, v2
    v_lshl_add_u32 v2, v5, 6, v2
    s_and_b32 s18, s16, 15
    s_lshl_b32 s18, s18, 17
    s_lshr_b32 s19, s16, 4
    s_lshl_b32 s19, s19, 10
    s_add_u32 s18, s18, s19
    s_bfe_u32 s19, s2, 0x10002
    s_lshl_b32 s19, s19, 16
    s_add_u32 s18, s18, s19
    s_bfe_u32 s19, s2, 0x10003
    s_lshl_b32 s19, s19, 9
    s_add_u32 s18, s18, s19
    s_and_b32 s19, s2, 3
    s_lshl_b32 s19, s19, 7
    s_add_u32 s18, s18, s19
    s_mov_b32 s20, 0xffff0000
    s_waitcnt vmcnt(7)
    """)
    for i in range(4):
        A(f"v_lshlrev_b32 v{40+2*i}, 16, v{8+i}")
        A(f"v_and_b32 v{41+2*i}, s20, v{8+i}")
    for j in range(1, 8):
        A(f"s_waitcnt vmcnt({7-j})")
        for i in range(4):
            A(f"v_lshlrev_b32 v48, 16, v{8+4*j+i}")
            A(f"v_and_b32 v49, s20, v{8+4*j+i}")
            A(f"v_add_f32 v{40+2*i}, v{40+2*i}, v48")
            A(f"v_add_f32 v{41+2*i}, v{41+2*i}, v49")
    for i in range(4):
        A(f"v_cvt_pk_bf16_f32 v{52+i}, v{40+2*i}, v{41+2*i}")
    A("buffer_store_dwordx4 v[52:55], v2, s[12:15], s18 offen")
    if OPT["ts"]:
        A("""
        s_waitcnt vmcnt(0)
        s_memrealtime s[26:27]
        s_lshl_b32 s18, s2, 3
        s_add_u32 s18, s18, 0x8100000
        v_mov_b32 v2, s18
        s_waitcnt lgkmcnt(0)
        v_mov_b32 v4, s24
        v_mov_b32 v5, s26
        global_store_dwordx2 v2, v[4:5], s[4:5]
        """)
    A("L_exit2:")
    A("s_endpgm")


def kd(name, vg, sg):
    return f""".amdhsa_kernel {name}
  .amdhsa_next_free_vgpr {vg}
  .amdhsa_next_free_sgpr {sg}
  .amdhsa_accum_offset {vg}
  .amdhsa_group_segment_fixed_size 0
  .amdhsa_kernarg_size 104
  .amdhsa_user_sgpr_count 2
  .amdhsa_user_sgpr_kernarg_segment_ptr 1
  .amdhsa_system_sgpr_workgroup_id_x 1
.end_amdhsa_kernel
"""


def build(code_slice=1024):
    Asm.nlab = 0
    out = HEADER
    kn = NAME + "_kernel" if OPT["fuse"] else "attn_kernel"
    if OPT["fuse"]:
        out += f"; @launch grid=(256,1,1) block=(512,1,1) lds={LDS_BYTES}\n"
    else:
        out += f"; @launch kernel=attn_kernel grid=(256,1,1) block=(512,1,1) lds={LDS_BYTES}\n"
        out += "; @launch kernel=reduce_kernel grid=(512,1,1) block=(256,1,1) lds=0\n"
    out += '.amdgcn_target "amdgcn-amd-amdhsa--gfx950"\n.text\n'
    A = Asm()
    A.L.append(f".globl {kn}\n.p2align 8\n.type {kn},@function\n{kn}:")
    setup(A)

    def misc():
        if OPT["codepf"]:
            l = A.lab("L_nopf")
            A(f"""
            s_cmp_eq_u32 {sW_ID}, 0
            s_cbranch_scc0 {l}
            s_getpc_b64 s[58:59]
            s_lshr_b32 {sT}, s2, 3
            s_mul_i32 {sT}, {sT}, {code_slice}
            v_lshlrev_b32 v3, 3, v{vL16}
            v_add_u32 v3, {sT}, v3
            v_cmp_gt_u32 vcc, {code_slice//128}, v1
            s_and_saveexec_b64 s[70:71], vcc
            global_load_dword v12, v3, s[58:59]
            s_mov_b64 exec, -1
            {l}:
            """)
        early_clear(A)
    a0, a1 = prog_a()
    b0, b1 = prog_b()
    if OPT["bsh"]:
        misc()
        A(f"s_cmp_eq_u32 s5, 0\ns_cbranch_scc1 L_A")
        T = Stream(); T.A = A
        T.dma_x(0)
        patterns(A)
        A(f"s_cmp_lt_u32 {sW_ID}, 4\ns_cbranch_scc1 L_BG0")
        seq = (("L_BG1", b1), ("L_BG0", b0), ("L_A", None), ("L_AG0", a0), ("L_AG1", a1))
    else:
        misc()
        A(f"""
        s_lshr_b32 {sT}, {sW_ID}, 2
        s_lshl_b32 {sT2}, s5, 1
        s_or_b32 {sT}, {sT}, {sT2}
        s_cmp_eq_u32 {sT}, 1
        s_cbranch_scc1 L_AG1
        s_cmp_eq_u32 {sT}, 2
        s_cbranch_scc1 L_BG0
        s_cmp_eq_u32 {sT}, 3
        s_cbranch_scc1 L_BG1
        """)
        seq = (("L_AG0", a0), ("L_AG1", a1), ("L_BG0", b0), ("L_BG1", b1))
    A("L_code0:")
    for lab, S in seq:
        if int(OPT["sal"]) and lab != seq[0][0] and lab != "L_AG0":
            A.L.append(f".p2align {OPT['sal']}")
        A(f"{lab}:")
        if S is None:
            A(f"s_cmp_ge_u32 {sW_ID}, 4\ns_cbranch_scc1 L_AG1")
            continue
        A.L += S.A.L
        for R in S.rare:
            A.L += R.L
    if OPT["fuse"]:
        final_reduce(A)
    A("L_exit:")
    A("s_endpgm")
    if not OPT["fuse"]:
        A.L.append(".globl reduce_kernel\n.p2align 8\n.type reduce_kernel,@function\nreduce_kernel:")
        reduce_kernel(A)
    out += A.text()
    out += '.section .rodata,"a"\n.p2align 6\n' + kd(kn, 256, 102)
    if not OPT["fuse"]:
        out += ".p2align 6\n" + kd("reduce_kernel", 56, 32)
    return out


if __name__ == "__main__":
    path = sys.argv[1]
    for kv in sys.argv[2:]:
        k, v = kv.split("=")
        if k in ("ts", "kv_nt", "w_nt", "verbose", "wopf", "codepf", "bshift", "ashift", "clk", "uq", "trace", "fuse", "aop", "abar", "aspread", "wosplit", "latew", "bsh", "dbg"):
            OPT[k] = v == "1"
        else:
            OPT[k] = v.replace("_", " ")
    import subprocess, tempfile, os
    txt = build()
    with tempfile.TemporaryDirectory() as d:
        open(d + "/a.s", "w").write(txt)
        subprocess.check_call(["clang", "-x", "assembler", "-target", "amdgcn-amd-amdhsa", "-mcpu=gfx950", "-c", d + "/a.s", "-o", d + "/a.o"])
        nm = subprocess.check_output(["llvm-objdump", "-t", d + "/a.o"], text=True)
    sym = {l.split()[-1]: int(l.split()[0], 16) for l in nm.splitlines() if ".text" in l and len(l.split()) >= 4}
    size = sym["L_exit"] - sym["L_code0"]
    OPT["verbose"] = False
    open(path, "w").write(build(size // 32 // 128 * 128))
```

```python
import sys, math, struct

NAME = "concat_heads__gqa_block_cached__mha_block_cached__near_ridge"
HEADER = open("cdna_kernels/" + NAME + ".s.ref").read().split("; Override")[0]


def f32bits(x):
    return struct.unpack("<I", struct.pack("<f", x))[0]


class Asm:
    nlab = 0

    def __init__(self):
        self.L = []

    def __call__(self, s):
        for line in s.strip("\n").split("\n"):
            t = line.strip()
            if t:
                self.L.append(t if t.endswith(":") else "  " + t)
                if t == "s_barrier" and OPT.get("trace"):
                    n = Asm.nlab = Asm.nlab + 1
                    self.L += ["  s_memrealtime s[56:57]", "  s_mov_b32 m0, s66", "  s_waitcnt lgkmcnt(0)", "  s_cmp_lt_u32 s66, 64",
                               f"  s_cbranch_scc0 L_tr{n}", "  v_writelane_b32 v30, s56, m0", f"  s_branch L_tr{n}b", f"L_tr{n}:",
                               "  v_writelane_b32 v31, s56, m0", f"L_tr{n}b:", "  s_add_u32 s66, s66, 1"]

    def lab(self, base="L"):
        Asm.nlab += 1
        return f"{base}_{Asm.nlab}"

    def text(self):
        return "\n".join(self.L) + "\n"


class DS:
    def __init__(self, A, pending=0):
        self.A = A
        self.n = pending
        self.done = 0

    def issue(self, text):
        if self.n - self.done >= 15:
            self.need(self.n - 15)
        self.A(text)
        self.n += 1
        return self.n - 1

    def need(self, idx):
        if idx < self.done:
            return
        self.A(f"s_waitcnt lgkmcnt({self.n - 1 - idx})")
        self.done = idx + 1


def vr(a, n):
    return f"v[{a}:{a+n-1}]"


BLK = 16384
XH2 = 3
XP_OFF = 0x1000000
HO_OFF = 0x1800000
LDS_BYTES = 163840

sW_ID = "s3"
sKV = "s[8:11]"
sWQ = "s[12:15]"
sX = "s[20:23]"
sWO = "s[24:27]"
sP = "s[28:31]"
sN = "s32"
sI4k = "s33"
sI8k = "s34"
sI64k = "s35"
sKU = "s36"
sKhd = "s37"
sKI = "s38"
sKoff = "s40"
sC = "s41"
sInvC = "s42"
sT = "s43"
sT2 = "s44"
sI = "s45"
sHH = "s46"
sQH = "s47"
sRotI = "s48"
sRot = "s49"
sKVl = "s39"
sKmax = "s50"
sKhd1 = "s52"
sKrot = "s42"
sKcur = "s36"
sPF = "s[60:63]"
sPFoff = "s64"
sKIend = "s51"
sKUend = "s52"
sT8 = "s53"
sTSb = "s[54:55]"
sTS = 56

vKVo = 4
vWo = 8
vPK, vPV, vPW, vPX, vPO, vL16 = 13, 14, 15, 16, 17, 18
vA = 20
vM, vThr, vL0, vL1, vT0, vT1, vT2, vT3 = 32, 33, 34, 35, 36, 37, 38, 39
vS = 40
vPp = 56
vACC = 64
vF0 = 128
vF1 = 160
vQ = 192
vOP = 224
vWF = 32
vXF = 128
vX = 224
vAK = 240
vAV = 248
vTch = 19
vLA = 252
vNM = 160
vOne = 176

OPT = dict(ts=False, kv_nt=True, w_nt=False, st=" sc1", sta=" sc1", look=10, maxiss=4, lead=12, kvstart=8, kv2=12, w1=18, w2=36, wper=2, estart=46, m1a=0, m1b=0, awo=31, adist=4, uq=False, fuse=True, lbd=1, rotg=0, rotb=1, aop=False, asleep=0, tlb=False, lal=0, sal=0, bsh=True, xpol='', prio=2, latew=True, la=3, lb=2, n1=8, n2=12, wosplit=True, ad=1, abar=False, aspread=False, ag0=14, ag1=15, m1n=4, m1t=3, m1pol='', lt0=32, uo=16, afirst=4, wopfit=0, akvstart=12, wopf=True, bshift=True, ashift=True, first=2, pf0=3, pfP=2, pfR=0, pfO=2, pfmax=32, codepf=True)


def stamp(A, idx, cyc=False):
    if not OPT["ts"]:
        return
    if OPT.get("clk"):
        if cyc:
            return
        A(f"s_memtime s[{sTS}:{sTS+1}]\ns_waitcnt lgkmcnt(0)\ns_mov_b32 s{84+8+idx}, s{sTS}")
    A(f"""
    {'s_memtime' if cyc else 's_memrealtime'} s[{sTS}:{sTS+1}]
    s_waitcnt lgkmcnt(0)
    s_mov_b32 s{84+idx}, s{sTS}
    """)


def cstamp(A, idx, n):
    if not OPT["ts"]:
        return
    l = A.lab("L_st")
    A(f"s_cmp_eq_u32 {sN}, {n}\ns_cbranch_scc0 {l}")
    stamp(A, idx, True)
    A(f"{l}:")


def stamps_out(A):
    if not OPT["ts"]:
        return
    if OPT.get("trace"):
        A(f"""
        s_lshl_b32 {sT}, s2, 3
        s_add_u32 {sT}, {sT}, {sW_ID}
        s_lshl_b32 {sT}, {sT}, 9
        s_add_u32 {sT}, {sT}, 0x8200000
        v_lshlrev_b32 v3, 2, v1
        v_add_u32 v3, {sT}, v3
        global_store_dword v3, v30, s[82:83]
        global_store_dword v3, v31, s[82:83] offset:256
        """)
    if OPT.get("dbg"):
        A(f"""
        s_and_b32 {sT}, s2, 0xf7
        s_or_b32 {sT}, {sT}, {sW_ID}
        s_cmp_eq_u32 {sT}, 0
        s_cbranch_scc0 L_nodbg
        s_xor_b32 {sT}, s2, 8
        s_lshl_b32 {sT}, {sT}, 2
        v_mov_b32 v3, {sT}
        """)
        for i in range(8):
            A(f"s_sub_u32 {sT}, s{84+i}, s100\nv_mov_b32 v2, {sT}\nglobal_store_dword v3, v2, s[70:71] offset:{i*4}")
        A("L_nodbg:")
    A("v_mov_b32 v3, 0")
    for i in range(16):
        A(f"v_mov_b32 v2, s{84+i}")
        A(f"global_store_dword v3, v2, {sTSb} offset:{i*4}")
    A("s_waitcnt vmcnt(0)")


def ring_adv(A, reg, step, end, span):
    A(f"""
    s_add_u32 {reg}, {reg}, {step}
    s_cmp_ge_u32 {reg}, {end}
    s_cselect_b32 {sT}, {span}, 0
    s_sub_u32 {reg}, {reg}, {sT}
    """)


class Stream:
    def __init__(self):
        self.A = Asm()
        self.out = []
        self.wmode = "q"
        self.rare = []
        self.par = 0
        self.D = DS(self.A)
        self.fid = {}

    def rec(self, n, deadline):
        self.out.append((n, deadline))

    def vm_for(self, slot):
        last = -1
        for i, (n, d) in enumerate(self.out):
            if d <= slot:
                last = i
        if last < 0:
            return None
        rest = self.out[last + 1:]
        self.out = rest
        return sum(n for n, _ in rest)

    def endslot(self, slot, barrier=True, drain=True):
        vm = self.vm_for(slot + 1)
        w = []
        if vm is not None:
            assert vm <= 63
            w.append(f"vmcnt({vm})")
        if drain:
            w.append("lgkmcnt(0)")
            self.D.done = self.D.n
        if w:
            self.A("s_waitcnt " + " ".join(w))
        if barrier:
            self.A("s_barrier")

    def drained(self):
        self.out = []

    def dma_x(self, half):
        A = self.A
        if half == 0:
            A(f"""
            v_lshrrev_b32 v2, 5, v1
            v_and_b32 v3, 31, v1
            s_and_b32 {sT2}, {sW_ID}, 1
            s_lshl_b32 {sT2}, {sT2}, 3
            v_or_b32 v{vA+8}, {sT2}, v2
            v_xor_b32 v{vA+8}, v{vA+8}, v3
            v_lshlrev_b32 v{vA+9}, 10, v2
            s_lshl_b32 {sT2}, {sRot}, 2
            """)
            for j in range(4):
                A(f"""
                v_xor_b32 v{vA+j}, {2*j}, v{vA+8}
                v_add_u32 v{vA+j}, {sT2}, v{vA+j}
                v_and_b32 v{vA+j}, 63, v{vA+j}
                v_lshl_add_u32 v{vA+j}, v{vA+j}, 4, v{vA+9}
                """)
                if j:
                    A(f"v_add_u32 v{vA+j}, {j*1024}, v{vA+j}")
        else:
            for j in range(4):
                A(f"v_xor_b32 v{vA+j}, 0x200, v{vA+j}")
        A(f"""
        s_lshl_b32 {sT}, {sW_ID}, 12
        s_add_u32 m0, {sT}, {half*3*BLK}
        s_lshl_b32 {sT}, {sW_ID}, 13
        """)
        for j in range(4):
            off = f" offset:{j*1024}" if j else ""
            A(f"buffer_load_dwordx4 v{vA+j}, {sX}, {sT} offen{off}{OPT['xpol']} lds")
        self.rec(4, -1 if half == 0 else XH2)

    def set_wmode(self, mode):
        A = self.A
        if self.wmode == mode:
            return
        if self.wmode == "q":
            A(f"""
            v_lshrrev_b32 v2, 9, v{vL16}
            v_lshlrev_b32 v2, 17, v2
            """)
            for p in range(4):
                A(f"v_xor_b32 v3, {p<<6}, v{vL16}")
                A(f"v_add_u32 v{vWo+p}, v3, v2")
            self.wmode = 0
        if self.wmode != mode:
            for p in range(4):
                A(f"v_xor_b32 v{vWo+p}, 0x20000, v{vWo+p}")
            self.wmode = mode

    def dma_w(self, stage, blk, deadline):
        nt = " nt" if OPT["w_nt"] else ""
        if stage < 32:
            assert self.wmode == "q"
            G, i = stage >> 4, stage & 15
            pre = (f"s_add_u32 {sT}, {sRotI}, {i*262144 + G*512}\n"
                   f"s_add_u32 m0, {sI4k}, {blk*BLK}\n"
                   f"s_and_b32 {sT}, {sT}, 0x3fffff\n")
            srd = sWQ
        else:
            ps, s = ((stage - 32) >> 4) & 1, stage & 15
            keep, self.A = self.A, Asm()
            self.set_wmode(s >> 3)
            pre = "\n".join(self.A.L) + "\n"
            self.A = keep
            pre += (f"s_add_u32 m0, {sI4k}, {blk*BLK}\n"
                    f"s_add_u32 {sT}, {sI4k}, {(s&7)*16384 + ps*262144}\n")
            srd = sWO if stage < 64 else "s[16:19]"
        at = []
        for p in range(4):
            off = f" offset:{p*1024}" if p else ""
            at.append((pre if p == 0 else "") + f"buffer_load_dwordx4 v{vWo+p}, {srd}, {sT} offen{off}{nt} lds")
        self.rec(4, deadline)
        return at

    def dma_kv_b(self, beta, half, deadline):
        nt = " nt" if OPT["kv_nt"] else ""
        buf = (beta + 1) % 3

        m0 = f"s_add_u32 m0, {sKVl}, {buf*BLK + half*4096}\n"
        post = ""
        pre = (f"s_add_u32 {sT}, {sKrot}, {((beta & 15) * 8192 + half * 4096)}\n"
               f"s_and_b32 {sT}, {sT}, 0x1ffff\n")
        pk, pv = max(0, min(31, beta + 1)) >> 4, max(0, beta) >> 4
        if pk == pv:
            pre += f"s_add_u32 {sT}, {sT}, {sKhd if pk == 0 else sKhd1}\n"
        else:
            pre += (f"s_cmp_eq_u32 {sQH}, 0\n"
                    f"s_cselect_b32 {sT2}, {sKhd1}, {sKhd}\n"
                    f"s_add_u32 {sT}, {sT}, {sT2}\n")
        if beta in (-1, 31):
            pre += (f"s_cmp_eq_u32 {sQH}, 0\n"
                    f"s_cselect_b64 exec, {'-1, 1' if beta == -1 else '1, -1'}\n")
            post = "\ns_mov_b64 exec, -1"
        at = []
        for p in range(4):
            off = f" offset:{p*1024}" if p else ""
            at.append((m0 + pre if p == 0 else "") + f"buffer_load_dwordx4 v{vKVo+p}, {sKV}, {sT} offen{off}{nt} lds")
        if post:
            at = ["\n".join(at) + post]
        self.rec(4, deadline)
        return at

    def dma_kv_a_part(self, part, first=False):
        A = self.A
        nt = " nt" if OPT["kv_nt"] else ""
        if part == 0:
            A(f"s_mov_b32 m0, {sKI}")
            if first:
                A(f"s_cmp_eq_u32 {sQH}, 0\ns_cselect_b64 exec, -1, 1")
            A(f"s_and_b32 {sKcur}, {sKoff}, 0x1ffff")
        off = f" offset:{part*1024}" if part else ""
        A(f"buffer_load_dwordx4 v{vKVo+part}, {sKV}, {sKcur} offen{off}{nt} lds")
        if part == 3:
            if first:
                A(f"s_mov_b64 exec, -1")
            A(f"s_add_u32 {sKoff}, {sKoff}, 8192")
            ring_adv(A, sKI, BLK, sKIend, 6 * BLK)

    def dma_kv_a(self, deadline, first=False):
        for p in range(4):
            self.dma_kv_a_part(p, first)
        self.rec(4, deadline)

    def pf_round(self, rec=True):
        A = self.A
        A(f"buffer_load_dword v12, v{vTch}, {sPF}, {sPFoff} offen")
        A(f"s_add_u32 {sPFoff}, {sPFoff}, 4096")
        if rec:
            self.rec(1, 1000)

    def emit(self, atoms):
        for a in atoms:
            self.A(a)

    def read_x(self, half):
        A = self.A
        regs = [vPX, 2, 3, vA + 4, vA + 5, vA + 6, vA + 7, vA + 8]
        for s in range(1, 8):
            A(f"v_xor_b32 v{regs[s]}, {32*s}, v{vPX}")
        D = self.D
        for s in range(16):
            ad = regs[s & 7]
            last = D.issue(f"ds_read_b128 {vr(vXF+64*half+4*s,4)}, v{ad} offset:{half*3*BLK+(s>>3)*256}")
        return last

    def wslice(self, kind, i, blk, nxt, first, dma=()):
        A = self.A
        a = vA
        pat = vPW if kind == "q" else vPO

        def addr(base, b):
            A(f"v_add_u32 v{base}, {b*BLK}, v{pat}")
            for m in range(1, 4):
                A(f"v_xor_b32 v{base+m}, {64*m}, v{base}")

        def rd(base, h, m, u):
            off = (16 * h + 4 * u) * 512 if kind == "q" else h * 256 + u * 4096
            return f"ds_read_b64_tr_b16 {vr(vWF+16*h+4*m+2*u,2)}, v{base+m} offset:{off}"

        def mf(h, m):
            if kind == "q":
                acc, b = vACC + 16 * m, vXF + 4 * (2 * i + h)
                c0 = first and h == 0
            else:
                acc, b = vACC + 16 * (4 * h + m), vQ + 4 * i
                c0 = first
            c = "0" if c0 else vr(acc, 16)
            return f"v_mfma_f32_32x32x16_bf16 {vr(acc,16)}, {vr(vWF+16*h+4*m,4)}, {vr(b,4)}, {c}"

        dma = list(dma)
        per = (len(dma) + 7) // 8
        D = self.D
        if nxt is not None:
            addr(a, nxt)
        for h in range(2):
            for m in range(4):
                if blk is not None:
                    D.need(self.fid[(h, m)])
                    A(mf(h, m))
                if nxt is not None:
                    D.issue(rd(a, h, m, 0))
                    self.fid[(h, m)] = D.issue(rd(a, h, m, 1))
                self.emit(dma[:per]); dma = dma[per:]
        self.emit(dma)

    def qfinal(self):
        A = self.A
        A(f"s_nop 7\nv_mov_b32 v{vT0}, {sC}\ns_nop 6")
        for i in range(32):
            A(f"v_pk_mul_f32 {vr(vACC+2*i,2)}, {vr(vACC+2*i,2)}, {vr(vT0,2)} op_sel_hi:[1,0]")
            if i:
                A(f"v_cvt_pk_bf16_f32 v{vQ+i-1}, v{vACC+2*i-2}, v{vACC+2*i-1}")
        A(f"v_cvt_pk_bf16_f32 v{vQ+31}, v{vACC+62}, v{vACC+63}")

    def max_atoms(self):
        at = [f"v_max3_f32 v{vT0}, v{vS}, v{vS+1}, v{vS+2}", f"v_max3_f32 v{vT1}, v{vS+3}, v{vS+4}, v{vS+5}"]
        for k, i in enumerate(range(6, 14, 2)):
            t = vT0 if k % 2 == 0 else vT1
            at.append(f"v_max3_f32 v{t}, v{t}, v{vS+i}, v{vS+i+1}")
        at += [f"v_max3_f32 v{vT0}, v{vT0}, v{vS+14}, v{vS+15}", f"v_max_f32 v{vT0}, v{vT0}, v{vT1}"]
        return at

    def qk_mfma(self, s, c0):
        c = c0 if s == 0 else vr(vS, 16)
        return f"v_mfma_f32_32x32x16_bf16 {vr(vS,16)}, {vr(vF0+4*s,4)}, {vr(vQ+4*s,4)}, {c}"

    def pv_mfma(self, k):
        j, m = k >> 2, k & 3
        return f"v_mfma_f32_32x32x16_bf16 {vr(vACC+16*m,16)}, {vr(vF0+4*k,4)}, {vr(vPp+4*j,4)}, {vr(vACC+16*m,16)}"

    def attn_pro(self, buf, base, shifted=False):
        A = self.A
        A(f"v_add_u32 v{vAK}, {base}, v{vPK}")
        A(f"v_add_u32 v{vAV}, {base}, v{vPV}")
        for s in range(1, 8):
            A(f"v_xor_b32 v{vAK+s}, {32*s}, v{vAK}")
        D = self.D
        kid = [D.issue(f"ds_read_b128 {vr(vF0+4*s,4)}, v{vAK+s} offset:{buf*BLK}") for s in range(8)]
        for m in range(1, 4):
            A(f"v_xor_b32 v{vAV+m}, {64*m}, v{vAV}")
        fill = [f"v_mov_b64 {vr(vACC+2*i,2)}, 0" for i in range(32)] + [f"v_mov_b64 {vr(vLA+2*i,2)}, 0" for i in range(2)]
        fill += [f"v_mov_b64 {vr(vPp+2*i,2)}, 0" for i in range(4)]
        fill += [f"v_lshrrev_b32 v{vT0}, 2, v1", f"v_lshrrev_b32 v{vT1}, 4, v1", f"v_xor_b32 v{vT0}, v{vT0}, v{vT1}",
                 f"v_and_b32 v{vT0}, 1, v{vT0}", f"v_and_b32 v{vT1}, 3, v1", f"v_or_b32 v{vT0}, v{vT0}, v{vT1}",
                 f"v_cmp_eq_u32 vcc, 0, v{vT0}", f"v_mov_b32 v{vT1}, 0x3f803f80", "s_nop 0"]
        fill += [f"v_cndmask_b32 v{vOne+i}, 0, v{vT1}, vcc" for i in range(4)]
        for s in range(8):
            D.need(kid[s])
            A(self.qk_mfma(s, "0"))
            self.emit(fill[:5]); fill = fill[5:]
        self.emit(fill)
        A("s_nop 1")
        self.emit(self.max_atoms())
        A(f"""
        v_mov_b32 v{vT1}, v{vT0}
        s_nop 1
        v_permlane32_swap_b32 v{vT0}, v{vT1}
        s_nop 1
        v_max_f32 v{vT0}, v{vT0}, v{vT1}
        """)
        if shifted:
            for i in range(16):
                A(f"v_sub_f32 v{vS+i}, v{vS+i}, v{vT0}")
                A(f"v_sub_f32 v{vNM+i}, 0, v{vT0}")
            return
        for i in range(16):
            A(f"v_sub_f32 v{vX+i}, v{vS+i}, v{vT0}")
            A(f"v_sub_f32 v{vNM+i}, 0, v{vT0}")
        for i in range(16):
            A(f"v_exp_f32 v{vX+i}, v{vX+i}")

    def attn_step(self, buf, last=False, extra={}):
        A = self.A
        D = self.D
        o = buf * BLK

        def vrd(k):
            j, m = k >> 2, k & 3
            D.issue(f"ds_read_b64_tr_b16 {vr(vF0+4*k,2)}, v{vAV+m} offset:{o+8192+4096*j}")
            return D.issue(f"ds_read_b64_tr_b16 {vr(vF0+4*k+2,2)}, v{vAV+m} offset:{o+8192+4096*j+2048}")
        cvt = [f"v_cvt_pk_bf16_f32 v{vPp+i}, v{vX+2*i}, v{vX+2*i+1}" for i in range(8)]
        lsum = [f"v_mfma_f32_16x16x32_bf16 {vr(vLA,4)}, {vr(vOne,4)}, {vr(vPp+4*j,4)}, {vr(vLA,4)}" for j in range(2)]
        vid = {}
        if last:
            for k in range(8):
                vid[k] = vrd(k)
            self.emit(cvt)
            A("s_nop 1")
            self.emit(lsum)
            for k in range(8):
                D.need(vid[k])
                A(self.pv_mfma(k))
            return
        kid = [D.issue(f"ds_read_b128 {vr(vF0+4*s,4)}, v{vAK+s} offset:{o}") for s in range(8)]
        self.emit(cvt)
        for s in range(8):
            D.need(kid[s])
            A(self.qk_mfma(s, vr(vNM, 16)))
            mark = len(A.L)
            vid[s] = vrd(s)
            if s in extra: extra[s]()
        self.emit(lsum)
        lr, lb = A.lab("L_rare"), A.lab("L_back")
        mx = self.max_atoms()
        ex = [f"v_exp_f32 v{vX+i}, v{vS+i}" for i in range(16)]
        fill = [[], [], mx[:5], mx[5:] + [f"v_cmp_lt_f32 vcc, {sT8}, v{vT0}", f"s_cbranch_vccnz {lr}"] + ex[:1],
                ex[1:4], ex[4:7], ex[7:10], ex[10:16]]
        for k in range(8):
            D.need(vid[k])
            A(self.pv_mfma(k))
            if k == 2:
                dist = len(A.L) - mark
                if dist < 12:
                    A(f"s_nop {12 - dist - 1}")
            self.emit(fill[k])
        A(f"{lb}:")
        R = Asm()
        R(f"{lr}:")
        R("s_waitcnt lgkmcnt(0)")
        for k in range(4, 8):
            R(self.pv_mfma(k))
        R(f"""
        v_mov_b32 v{vT1}, v{vT0}
        s_nop 1
        v_permlane32_swap_b32 v{vT0}, v{vT1}
        s_nop 1
        v_max3_f32 v{vT0}, v{vT0}, v{vT1}, 0
        v_sub_f32 v{vT1}, 0, v{vT0}
        v_exp_f32 v{vT1}, v{vT1}
        """)
        for i in range(16):
            R(f"v_sub_f32 v{vX+i}, v{vS+i}, v{vT0}")
            R(f"v_sub_f32 v{vNM+i}, v{vNM+i}, v{vT0}")
        for i in range(16):
            R(f"v_exp_f32 v{vX+i}, v{vX+i}")
        R(f"v_mul_f32 v{vLA}, v{vLA}, v{vT1}")
        for i in range(64):
            R(f"v_mul_f32 v{vACC+i}, v{vACC+i}, v{vT1}")
        R(f"s_branch {lb}")
        self.rare.append(R)

    def attn_step2(self, buf, last=False, extra={}, carry=False):
        A = self.A
        D = self.D
        o = buf * BLK

        def vrd(k):
            j, m = k >> 2, k & 3
            D.issue(f"ds_read_b64_tr_b16 {vr(vF0+4*k,2)}, v{vAV+m} offset:{o+8192+4096*j}")
            return D.issue(f"ds_read_b64_tr_b16 {vr(vF0+4*k+2,2)}, v{vAV+m} offset:{o+8192+4096*j+2048}")

        def krd(k, DD=None):
            t = f"ds_read_b128 {vr(vF0+4*k,4)}, v{vAK+k} offset:{o}"
            return D.issue(t)
        cvt = [f"v_cvt_pk_bf16_f32 v{vPp+i}, v{vX+2*i}, v{vX+2*i+1}" for i in range(8)]
        lsum = [f"v_mfma_f32_16x16x32_bf16 {vr(vLA,4)}, {vr(vOne,4)}, {vr(vPp+4*j,4)}, {vr(vLA,4)}" for j in range(2)]
        lr, lb = A.lab("L_rare"), A.lab("L_back")
        mx = self.max_atoms()
        ex = [f"v_exp_f32 v{vX+i}, v{vS+i}" for i in range(16)]
        fill = [mx[:4], mx[4:] + [f"v_cmp_lt_f32 vcc, {sT8}, v{vT0}", f"s_cbranch_vccnz {lr}"],
                ex[0:2], ex[2:5], ex[5:7], ex[7:10], ex[10:12], ex[12:14]]
        ex_rest = ex[14:]
        nid = {}
        R = Asm()
        R(f"{lr}:")
        R("s_waitcnt lgkmcnt(0)")
        if -1 in extra: extra[-1]()
        A("s_nop 7")
        base = D.n
        D.n += 16
        D.done = base + 1 if carry else D.n
        for k in range(8):
            D.need(base + 2 * k + 1)
            A(self.pv_mfma(k))
            mark = len(A.L)
            nid[k] = vrd(k) if last else krd(k)
            if k >= 2:
                R(self.pv_mfma(k))
                R.L += [l for l in A.L[mark:] if "ds_read" in l]
            self.emit(fill[k])
        self.emit(ex_rest)
        A(f"{lb}:")
        R(f"""
        v_mov_b32 v{vT1}, v{vT0}
        s_nop 1
        v_permlane32_swap_b32 v{vT0}, v{vT1}
        s_nop 1
        v_max3_f32 v{vT0}, v{vT0}, v{vT1}, 0
        v_sub_f32 v{vT1}, 0, v{vT0}
        v_exp_f32 v{vT1}, v{vT1}
        """)
        for i in range(16):
            R(f"v_sub_f32 v{vX+i}, v{vS+i}, v{vT0}")
            R(f"v_sub_f32 v{vNM+i}, v{vNM+i}, v{vT0}")
        for i in range(16):
            R(f"v_exp_f32 v{vX+i}, v{vX+i}")
        R(f"v_mul_f32 v{vLA}, v{vLA}, v{vT1}")
        for i in range(64):
            R(f"v_mul_f32 v{vACC+i}, v{vACC+i}, v{vT1}")
        R("s_waitcnt lgkmcnt(0)")
        R(f"s_branch {lb}")
        self.rare.append(R)
        if last:
            self.emit(cvt)
            A("s_nop 1")
            self.emit(lsum)
            for k in range(8):
                D.need(nid[k])
                A(self.pv_mfma(k))
            return
        fill2 = [cvt[0:3], cvt[3:6], cvt[6:8], [], lsum[:1], [], lsum[1:], []]
        for s_ in range(8):
            D.need(nid[s_])
            A(self.qk_mfma(s_, vr(vNM, 16)))
            vrd(s_)
            self.emit(fill2[s_])
            if s_ in extra: extra[s_]()

    def onorm(self, dma=()):
        A = self.A
        dma = list(dma)
        A(f"""
        s_nop 7
        v_rcp_f32 v{vT0}, v{vLA}
        s_nop 7
        """)
        for i in range(32):
            if dma and i % 2 == 0:
                A(dma.pop(0))
            A(f"v_pk_mul_f32 {vr(vACC+2*i,2)}, {vr(vACC+2*i,2)}, {vr(vT0,2)} op_sel_hi:[1,0]")
            if i:
                A(f"v_cvt_pk_bf16_f32 v{vQ+i-1}, v{vACC+2*i-2}, v{vACC+2*i-1}")
        A(f"v_cvt_pk_bf16_f32 v{vQ+31}, v{vACC+62}, v{vACC+63}")
        self.emit(dma)

    def write_o(self, bb):
        A = self.A
        A(f"v_add_u32 v{vA+8}, {sKVl}, v{vL16}")
        for i in range(8):
            last = self.D.issue(f"ds_write_b128 v{vA+8}, {vr(vQ+4*i,4)} offset:{bb*BLK+1024*i}")
        return last

    def read_o(self, bb, own, partner):
        A = self.A
        A(f"""
        v_add_u32 v{vA+8}, {sKVl}, v{vL16}
        s_cmp_eq_u32 {sHH}, 0
        s_cselect_b32 {sT}, {3*BLK}, 0
        s_lshl_b32 {sT2}, {sQH}, 13
        s_add_u32 {sT}, {sT}, {sT2}
        v_add_u32 v{vA+9}, {sT}, v{vL16}
        """)
        D = self.D
        ids = []
        if own:
            for i in range(8):
                ids.append(D.issue(f"ds_read_b128 {vr(vQ+4*i,4)}, v{vA+8} offset:{bb*BLK+1024*i}"))
        if partner:
            for i in range(8):
                ids.append(D.issue(f"ds_read_b128 {vr(vOP+4*i,4)}, v{vA+9} offset:{bb*BLK+1024*i}"))
        return ids

    def store_partial(self, pol, tmp=vWF, srd=sP, wait=True):
        A = self.A
        A(f"""
        s_nop 7
        s_nop 7
        s_lshl_b32 {sT}, {sI}, 14
        """)
        for nb in range(8):
            for half in range(2):
                k = 2 * nb + half
                d = tmp + 4 * (k & 7)
                for i in range(4):
                    r = vACC + 16 * nb + 8 * half + 2 * i
                    A(f"v_cvt_pk_bf16_f32 v{d+i}, v{r}, v{r+1}")
                if k in (4, 8, 12):
                    A(f"s_add_u32 {sT}, {sT}, 4096")
                off = f" offset:{(k&3)*1024}" if k & 3 else ""
                A(f"buffer_store_dwordx4 {vr(d,4)}, v{vL16}, {srd}, {sT} offen{off}{pol}")
        if wait and (not OPT["fuse"] or OPT["ts"]):
            A("s_waitcnt vmcnt(0)")

    def loop_end(self, lab, end):
        self.A(f"""
        s_add_u32 {sN}, {sN}, 1
        s_cmp_lt_u32 {sN}, {end}
        s_cbranch_scc1 {lab}
        """)


def schedule_w(order, rd, rel, earliest, reserved, can_issue, cap, pref={}):
    res = {b: list(reserved.get(b, [])) for b in range(10)}
    blk, iss = {}, {}
    cnt = {}
    cur = -2
    for st in order:
        s = max(cur, earliest[st])
        while True:
            assert s < rd[st], (st, s, rd[st])
            ok = None
            if can_issue(s, st) and cnt.get(s, 0) < cap(s):
                best = None
                for b in ([pref[st]] if st in pref else range(9, -1, -1)):
                    if all(rel[st] < a or s > e for a, e in res[b]):
                        nx = min([a for a, e in res[b] if a > rel[st]] + [1000])
                        if best is None or nx < best:
                            ok, best = b, nx
            if ok is not None:
                break
            s += 1
        res[ok].append((s, rel[st]))
        blk[st], iss[st] = ok, s
        cnt[s] = cnt.get(s, 0) + 1
        cur = s
    return blk, iss


def setup(A):
    if OPT["ts"]:
        A("s_memrealtime s[100:101]")
    A(f"""
    s_cmp_ge_u32 s2, 256
    s_cbranch_scc1 L_exit
    s_load_dwordx8 s[60:67], s[0:1], 0
    s_load_dwordx2 s[68:69], s[0:1], 32
    s_load_dwordx8 s[72:79], s[0:1], 40
    s_load_dwordx2 s[80:81], s[0:1], 72
    s_load_dwordx2 s[82:83], s[0:1], 96
    v_lshrrev_b32 v1, 6, v0
    s_and_b32 s4, s2, 7
    v_readfirstlane_b32 {sW_ID}, v1
    s_bfe_u32 s5, s2, 0x10003
    s_lshr_b32 s6, s2, 4
    v_and_b32 v1, 63, v0
    v_lshlrev_b32 v{vL16}, 4, v1
    s_and_b32 {sI}, {sW_ID}, 3
    s_bfe_u32 {sHH}, {sW_ID}, 0x10001
    s_and_b32 {sQH}, {sW_ID}, 1
    s_lshl_b32 {sI4k}, {sI}, 12
    s_lshl_b32 {sI8k}, {sI}, 13
    s_lshl_b32 {sI64k}, {sI}, 16
    s_lshl_b32 {sKhd}, {sHH}, 17
    s_add_u32 {sKhd1}, {sKhd}, 0x40000
    s_mul_i32 {sKrot}, s4, {OPT["rotg"]}
    s_mul_i32 {sT}, s6, {OPT["rotb"]}
    s_add_u32 {sKrot}, {sKrot}, {sT}
    s_and_b32 {sKrot}, {sKrot}, 15
    s_xor_b32 {sT}, {sQH}, 1
    s_add_u32 {sKrot}, {sKrot}, {sT}
    s_lshl_b32 {sKrot}, {sKrot}, 13
    s_mov_b32 {sRot}, s6
    s_mul_i32 {sKVl}, {sHH}, {3*BLK}
    s_lshl_b32 {sT}, {sQH}, 13
    s_add_u32 {sKVl}, {sKVl}, {sT}
    s_lshl_b32 {sRotI}, s6, 18
    s_add_u32 {sRotI}, {sRotI}, {sI64k}
    s_mov_b32 {sC}, {f32bits(math.log2(math.e) / math.sqrt(128.0)):#x}
    s_mov_b32 {sT8}, 0x41000000
    s_waitcnt lgkmcnt(0)
    s_cmp_eq_u32 s5, 0
    s_cselect_b32 s60, s60, s72
    s_cselect_b32 s61, s61, s73
    s_cselect_b32 s62, s62, s74
    s_cselect_b32 s63, s63, s75
    s_cselect_b32 s64, s64, s76
    s_cselect_b32 s65, s65, s77
    s_cselect_b32 s66, s66, s78
    s_cselect_b32 s67, s67, s79
    s_cselect_b32 s68, s68, s80
    s_cselect_b32 s69, s69, s81
    s_cselect_b32 s7, 17, 19
    s_lshl_b32 s10, 1, s7
    s_lshl_b32 {sT}, s6, 16
    s_add_u32 s20, s60, {sT}
    s_addc_u32 s21, s61, 0
    s_and_b32 s21, s21, 0xffff
    s_mov_b32 s22, 0x10000
    s_mov_b32 s23, 0x20000
    s_lshl_b32 {sT}, s4, 10
    s_add_u32 s12, s66, {sT}
    s_addc_u32 s13, s67, 0
    s_and_b32 s13, s13, 0xffff
    s_sub_u32 s14, 0x400000, {sT}
    s_mov_b32 s15, 0x20000
    s_lshl_b32 {sT}, s6, 3
    s_add_u32 {sT}, {sT}, s4
    s_lshl_b32 {sT}, {sT}, s7
    s_bitcmp1_b32 {sW_ID}, 0
    s_cselect_b32 s8, s64, s62
    s_cselect_b32 s9, s65, s63
    s_add_u32 s8, s8, {sT}
    s_addc_u32 s9, s9, 0
    s_and_b32 s9, s9, 0xffff
    s_mov_b32 s11, 0x20000
    s_lshl_b32 {sT}, s4, 19
    s_add_u32 s24, s68, {sT}
    s_addc_u32 s25, s69, 0
    s_and_b32 s25, s25, 0xffff
    s_mov_b32 s26, 0x80000
    s_mov_b32 s27, 0x20000
    s_lshl_b32 {sT}, s5, 4
    s_add_u32 {sT}, {sT}, s6
    s_lshl_b32 {sT}, {sT}, 3
    s_add_u32 {sT}, {sT}, s4
    s_lshl_b32 {sT}, {sT}, 16
    s_add_u32 s28, s82, {sT}
    s_addc_u32 s29, s83, 0
    s_and_b32 s29, s29, 0xffff
    s_mov_b32 s30, 0x10000
    s_mov_b32 s31, 0x20000
    """)
    if OPT["ts"]:
        A(f"""
        s_lshl_b32 {sT}, s2, 3
        s_add_u32 {sT}, {sT}, {sW_ID}
        s_lshl_b32 {sT}, {sT}, 6
        s_add_u32 {sT}, {sT}, 0x8000000
        s_add_u32 s54, s82, {sT}
        s_addc_u32 s55, s83, 0
        """)
        for i in range(16):
            A(f"s_mov_b32 s{84+i}, 0")
        A("s_mov_b32 s66, 0\nv_mov_b32 v30, 0\nv_mov_b32 v31, 0")
        if OPT.get("trace"):
            A("v_writelane_b32 v31, s100, 63")


def patterns(A):
    A(f"""
    v_lshrrev_b32 v2, 5, v1
    v_and_b32 v3, 31, v1
    """)
    for p in range(4):
        A(f"""
        v_add_u32 v29, {(2*p)&3}, v2
        v_lshlrev_b32 v29, 2, v29
        v_xor_b32 v29, v29, v3
        v_lshlrev_b32 v29, 4, v29
        v_lshl_add_u32 v29, v2, 13, v29
        v_add_u32 v{vWo+p}, {2*p*8192 - p*1024}, v29
        """)


def patterns2(A):
    A(f"""
    v_lshrrev_b32 v2, 4, v1
    v_and_b32 v3, 15, v1
    v_lshlrev_b32 v19, 2, v2
    s_bitcmp1_b32 {sW_ID}, 0
    s_cselect_b64 vcc, -1, 0
    """)
    for p in range(4):
        A(f"""
        v_add_u32 v29, {4*p}, v2
        v_cndmask_b32 v29, v29, v19, vcc
        v_xor_b32 v29, v29, v3
        v_lshlrev_b32 v29, 4, v29
        v_lshl_add_u32 v{vKVo+p}, v2, 8, v29
        """)
    A(f"""
    v_and_b32 v2, 31, v1
    v_lshrrev_b32 v3, 5, v1
    v_and_b32 v19, 15, v1
    v_xor_b32 v19, v19, v3
    v_lshlrev_b32 v19, 4, v19
    v_lshl_add_u32 v{vPK}, v2, 8, v19
    v_lshl_add_u32 v19, v2, 9, v19
    s_lshl_b32 {sT}, {sQH}, 14
    v_add_u32 v{vPX}, {sT}, v19
    """)
    A(f"""
    v_bfe_u32 v32, v1, 4, 1
    v_bfe_u32 v33, v1, 2, 2
    v_and_b32 v34, 1, v1
    v_bfe_u32 v35, v1, 1, 1
    v_lshlrev_b32 v36, 1, v34
    v_or_b32 v36, v36, v35
    v_lshl_add_u32 v36, v32, 2, v36
    v_lshlrev_b32 v36, 3, v36
    v_lshl_add_u32 v36, v33, 6, v36
    v_lshlrev_b32 v37, 2, v3
    v_add_u32 v37, v37, v33
    v_lshl_add_u32 v{vPV}, v37, 8, v36
    v_lshlrev_b32 v37, 3, v3
    v_add_u32 v37, v37, v33
    v_lshl_add_u32 v38, v37, 9, v36
    s_lshl_b32 {sT}, {sHH}, 8
    v_add_u32 v{vPW}, {sT}, v38
    v_lshlrev_b32 v36, 2, v34
    v_lshl_add_u32 v36, v32, 1, v36
    v_add_u32 v36, v36, v35
    v_lshlrev_b32 v36, 3, v36
    v_lshl_add_u32 v36, v33, 6, v36
    v_lshl_add_u32 v38, v37, 10, v36
    s_lshl_b32 {sT}, {sHH}, 9
    v_add_u32 v{vPO}, {sT}, v38
    """)


def pre_x(S, issue_pre, preread, fine=False, shared=False, G0=False):
    A = S.A
    stamp(A, 0)
    if fine: stamp(A, 10, True)
    if shared:
        S.rec(4, -1)
    else:
        S.dma_x(0)
        patterns(A)
    issue_pre(-2)
    if OPT["tlb"] and G0:
        A(f"""
        s_load_dwordx2 s[58:59], s[0:1], 80
        v_mov_b32 v2, 0
        s_mov_b64 exec, 1
        s_sub_u32 {sT}, s10, 4
        buffer_load_dword v12, v2, {sKV}, 0 offen
        buffer_load_dword v12, v2, {sKV}, {sT} offen
        s_lshl_b32 {sT}, {sI}, 17
        buffer_load_dword v12, v2, {sWO}, {sT} offen
        buffer_load_dword v12, v2, {sP}, 0 offen
        s_lshl_b32 {sT}, s6, 17
        v_mov_b32 v3, {sT}
        s_waitcnt lgkmcnt(0)
        global_load_dword v12, v3, s[58:59]
        s_mov_b64 exec, -1
        """)
        S.rec(5, 1000)
    patterns2(A)
    if fine: stamp(A, 11, True)
    S.endslot(-2, barrier=False)
    if fine: stamp(A, 15, True)
    A("s_barrier")
    stamp(A, 7)
    S.read_x(0)
    issue_pre(-1)
    S.dma_x(1)
    if preread is not None:
        S.wslice("q", 0, None, preread, False)
    S.endslot(-1)
    stamp(A, 1)


def attn_loop(S, first_buf, n0, body_pre=None, tail=None, st=None, shifted=False, carry=False):
    A = S.A
    A(f"s_mov_b32 {sN}, 0")
    l = A.lab("L_attn")
    if int(OPT["lal"]):
        A.L.append(f".p2align {OPT['lal']}")
    A(f"{l}:")
    for k in range(3):
        if st and k == 0:
            cstamp(A, 8, 2); cstamp(A, 13, 0); cstamp(A, 14, 4)
        if st and k == 1:
            cstamp(A, 12, 2)
        S.attn_step2((first_buf + k) % 3, extra=body_pre(k) if body_pre else {}, carry=carry)
        if st and k == 0:
            cstamp(A, 9, 2)
        tail(k)
        S.D.done = S.D.n
    S.drained()
    S.loop_end(l, 5)


def prog_b():
    w1, w2 = int(OPT["w1"]), int(OPT["w2"])
    per = int(OPT["wper"])
    look = int(OPT["look"])
    uq, uo = OPT["uq"], int(OPT["uo"])
    use, rd, rel, early = {}, {}, {}, {}
    for st in range(64):
        k = st & 15
        if st < 16:
            use[st] = st
        elif st < 32:
            use[st] = k if uq else w1 + (k * int(OPT['n1'])) // 16
        elif st < 48 - uo:
            use[st] = w2 + (k * int(OPT['n2'])) // 16
        else:
            use[st] = 49 + st - (48 - uo)
    lw = OPT["latew"] and uo == 16
    la, lb_ = int(OPT["la"]), int(OPT["lb"])
    if lw:
        for st in range(32, 64):
            k = st - 32
            use[st] = 47 if k < la else (48 if k < la + lb_ else 49 + k - la - lb_)
    E0 = use[48]
    NS = use[63] + 1
    for st in range(64):
        k = st & 15
        win = (16 <= st < 32 and not uq) or (32 <= st < 48 - uo)
        rd[st] = use[st] - 1 if (k == 0 or not win) else use[st - 1]
        rel[st] = rd[st] if win else use[st]
        if lw and st >= 32:
            rd[st] = 47 if st == 32 else use[st - 1]
            rel[st] = rd[st] if rd[st] == 47 else use[st]
        early[st] = rd[st] - (2 if win else look)
        if st >= 48 - uo:
            early[st] = max(early[st], int(OPT["estart"]))
    assert use[31] <= 31 and w2 >= 34
    aop = OPT["aop"]
    order = ([x for i in range(16) for x in (i, 16 + i)] if uq else list(range(32))) + list(range(48 if aop else 32, 64))
    kv2 = int(OPT["kv2"])
    kvs = int(OPT["kvstart"])
    reserved = {0: [(-2, -1), (kvs, 46)], 3: [(-2, XH2), (kvs, 46)], 1: [(-2, -1), (kvs + 2, E0)], 4: [(-2, XH2), (kvs + 2, E0)],
                2: [(kv2, 48)], 5: [(kv2, 48)], 8: [(33, 34)], 9: [(33, 34)]}
    blk, iss = schedule_w(order, rd, rel, early, reserved, lambda s, st: True,
                          lambda s: int(OPT["first"]) * (2 if uq else 1) if s < 0 else int(OPT["maxiss"]) + (1 if uq else 0),
                          {} if uq else dict(enumerate([2, 5, 9, 8, 7, 6, 0, 3, 1, 4, 2, 5, 9, 8, 7, 6])))
    by_slot, at_slot = {}, {}
    for st in order:
        by_slot.setdefault(iss[st], []).append(st)
        at_slot.setdefault(use[st], []).append(st)
    if OPT.get("verbose"):
        print("B sched", [(st, iss[st], rd[st], blk[st]) for st in order], file=sys.stderr)
    MB = 8 * BLK
    LB = max(iss[63] + int(OPT['lbd']), E0)
    OPT['lwB'] = min(b for b in range(10) if all(rel[st] <= LB for st in order if blk[st] == b))

    def w_atoms(S, n, G=None):
        at = []
        for st in by_slot.get(n, []):
            if uq and st < 32 and (st >> 4) != G:
                continue
            at += S.dma_w(st, blk[st], min(rd[st], LB + 1))
        return at

    def kv_atoms(S, n):
        beta = n - 15
        if beta < 2 or beta > 31:
            return []
        return S.dma_kv_b(beta, 0, 17 + beta) + S.dma_kv_b(beta, 1, 17 + beta)

    def slices(S, n, lo, hi, kind, at):
        sts = [st for st in at_slot.get(n, []) if lo <= st < hi]
        pre = [st for st in range(lo, hi) if rd[st] == n and not (st > lo and use[st - 1] == n)]
        if not sts and not pre:
            S.emit(at)
            return
        nparts = len(sts) + len(pre)
        chunk = (len(at) + nparts - 1) // nparts
        for st in [p for p in pre if use[p] == n]:
            S.wslice(kind, 0, None, blk[st], False, at[:chunk])
            at = at[chunk:]
        for st in sts:
            nxt = st + 1 if (st + 1 < hi and rd[st + 1] == n and st + 1 not in pre) else None
            S.wslice(kind, st & 15, blk[st], blk[nxt] if nxt is not None else None, st in (0, 16, 48 if aop else 32), at[:chunk])
            at = at[chunk:]
        for st in [p for p in pre if use[p] != n]:
            S.wslice(kind, 0, None, blk[st], False, at[:chunk])
            at = at[chunk:]

    S = G0 = Stream()
    A = S.A
    tail = lambda k: S.A("s_waitcnt vmcnt(0) lgkmcnt(0)\ns_barrier")
    pre_x(S, lambda n: S.emit(w_atoms(S, n, 0)) if uq else None, blk[0], shared=OPT['bsh'], G0=True)
    A(f"s_mul_i32 {sKU}, {sHH}, {3*BLK}")
    for n in range(16):
        at = w_atoms(S, n, 0) if uq else []
        if kvs <= n < kvs + 4:
            k = n - kvs
            at = at + S.dma_kv_b((k >> 1) - 1, k & 1, 16 + (k >> 1))
        if kv2 <= n < kv2 + 2:
            at = at + S.dma_kv_b(1, n - kv2, 18)
        if n == 8: stamp(A, 10, True)
        if n == 12: stamp(A, 11, True)
        if n == XH2:
            xl = S.read_x(1)
        slices(S, n, 0, 16, "q", at)
        if n == XH2:
            S.D.need(xl)
        S.endslot(n, drain=False)
    stamp(A, 2)
    S.qfinal()
    bs = OPT["bshift"]
    S.attn_pro(0, sKU, bs)
    S.endslot(16)
    attn_loop(S, 1, 17, tail=tail, st=True, shifted=bs)
    count_clear(A)
    S.attn_step2(1, last=True)
    S.endslot(32)
    stamp(A, 3)
    for n in range(33, NS):
        at = []
        must = None
        if n <= 48:
            at = w_atoms(S, n) + kv_atoms(S, n)
        if n == 33:
            S.onorm(at)
            at = []
            A(f"""
            s_add_u32 {sT}, {sI8k}, {MB}
            v_add_u32 v{vA+8}, {sT}, v{vL16}
            v_xor_b32 v{vA+9}, 0x4000, v{vA+8}
            """)
            for i in range(8):
                S.D.issue(f"ds_write_b128 v{vA+8}, {vr(vQ+4*i,4)} offset:{1024*i}")
        if n == 34:
            for i in range(8):
                S.D.issue(f"ds_read_b128 {vr(vOP+4*i,4)}, v{vA+9} offset:{1024*i}")
        if n == 41: stamp(A, 15, True)
        if n == 49:
            stamp(A, 4)
        if n == E0:
            ids = S.read_o(1, True, True)
            S.D.need(ids[0])
            must = ids[-1]
        slices(S, n, 48 if aop else 32, 64, "o", at)
        if must is not None:
            S.D.need(must)
        if n <= LB:
            S.endslot(n, drain=(n < 48))
    stamp(A, 5)
    S.store_partial(OPT['st'])
    stamp(A, 6)
    finish(A)
    S = G1 = Stream()
    A = S.A
    if OPT['prio']:
        A(f"s_setprio {OPT['prio']}")
    pre_x(S, lambda n: S.emit(w_atoms(S, n, 1)), blk[16] if uq else None, shared=OPT['bsh'])
    for n in range(32):
        if n == 16: stamp(A, 2)
        if n == 20: stamp(A, 8, True)
        if n == 21: stamp(A, 9, True)
        if n == 25: stamp(A, 10, True)
        if n == 28: stamp(A, 11, True)
        if n == 29: stamp(A, 12, True)
        at = w_atoms(S, n, 1) + kv_atoms(S, n)
        if n == XH2:
            S.D.need(S.read_x(1))
        slices(S, n, 16, 32, "q", at)
        if n == use[31] + 1:
            S.qfinal()
        S.endslot(n, drain=not (uq and n < 16))
    S.emit(w_atoms(S, 32) + kv_atoms(S, 32))
    if OPT['prio']:
        A('s_setprio 0')
    if use[31] == 31:
        S.qfinal()
    A(f"s_mul_i32 {sKU}, {sHH}, {3*BLK}")
    S.attn_pro(1, sKU, bs)
    S.endslot(32)
    stamp(A, 3)
    attn_loop(S, 2, 33, tail=tail, shifted=bs)
    (S.attn_step2 if bs else S.attn_step)(2, last=True)
    S.onorm()
    S.write_o(1)
    S.endslot(48)
    stamp(A, 4)
    if OPT['prio']:
        A(f"s_setprio {OPT['prio']}")
    for n in range(49, LB + 1):
        S.emit(w_atoms(S, n))
        S.endslot(n)
    stamp(A, 5)
    finish(A)
    return G0, G1


def prog_a():
    aop = OPT["aop"]
    NST = 80 if aop else 64
    use = {st: (st & 15 if st < 32 else st + 1) for st in range(NST)}
    rd = {st: use[st] - 1 for st in range(NST)}
    order = [x for i in range(16) for x in (i, 16 + i)] + list(range(32, NST))
    ks = int(OPT['akvstart'])
    g0s, g1s = int(OPT['ag0']), int(OPT['ag1'])
    AD = int(OPT['ad'])
    pre_slots = [g0s, g0s, g0s, g1s, g1s, g1s]
    seq = [(9, 8), (7, 6), (2, 5), (0, 1)] + [(9, 8), (7, 6), (2, 5), (3, 4), (0, 1)] * 3
    pref = {16 * g + i: seq[i][g] for i in range(16) for g in range(2)}
    reserved = {b: [(pre_slots[b], 30 if b < 3 else 32)] for b in range(6)}
    for b in (0, 1, 3, 4):
        reserved[b].append((-2, -1 if b < 3 else XH2))
    reserved[0].append((33, 34)); reserved[3].append((33, 34)); reserved[1].append((33, 49)); reserved[4].append((33, 49))
    early = {st: -2 if st < 32 else 29 for st in range(NST)}
    blk, iss = schedule_w(order, rd, use, early, reserved, lambda s, st: not (15 < s < 29 or s in (30, 31)),
                          lambda s: int(OPT['afirst']) if s == -2 else 4, pref)
    if OPT.get("verbose"):
        print("A sched", [(st, iss[st], blk[st]) for st in order], file=sys.stderr)
    by_slot = {}
    for st in order:
        by_slot.setdefault(iss[st], []).append(st)
    LB = iss[NST - 1] + int(OPT["lbd"])
    OPT['lwA'] = min(b for b in range(10) if all(use[st] <= LB for st in order if blk[st] == b))

    res = []
    for G in range(2):
        S = Stream()
        A = S.A

        def w_atoms(n):
            at = []
            for st in by_slot.get(n, []):
                owner = (st >> 4) if st < 32 else 1
                if owner == G:
                    at += S.dma_w(st, blk[st], min(rd[st], LB + 1))
            return at

        m1n, m1t = int(OPT["m1n"]), int(OPT["m1t"])
        if m1n:
            A(f"""
            s_lshl_b32 {sT}, s6, 3
            s_add_u32 {sT}, {sT}, s4
            s_lshl_b32 {sT}, {sT}, 19
            s_bitcmp1_b32 {sW_ID}, 0
            s_cselect_b32 s60, s76, s74
            s_cselect_b32 s61, s77, s75
            s_add_u32 s60, s60, {sT}
            s_addc_u32 s61, s61, 0
            s_and_b32 s61, s61, 0xffff
            s_mov_b32 s62, 0x80000
            s_mov_b32 s63, 0x20000
            v_lshlrev_b32 v29, 3, v{vL16}
            """)
            for t in range(m1t + G, m1t + m1n, 2):
                A(f"""
                s_add_u32 {sT}, {sKrot}, {(t & 15) * 8192}
                s_and_b32 {sT}, {sT}, 0x1ffff
                s_add_u32 {sT}, {sT}, {sKhd1 if t >= 16 else sKhd}
                buffer_load_dword v12, v29, {sPF}, {sT} offen{OPT["m1pol"]}
                """)
        pre_x(S, lambda n: S.emit(w_atoms(n)), blk[16 * G], True, G0=(G == 0))
        A(f"""
        s_lshl_b32 {sKoff}, {sHH}, 12
        s_lshl_b32 {sKI}, {sQH}, 13
        s_add_u32 {sKI}, {sKI}, {sKoff}
        s_add_u32 {sKIend}, {sKI}, {6*BLK}
        s_add_u32 {sKoff}, {sKoff}, {sKrot}
        s_add_u32 {sKoff}, {sKoff}, {15*8192}
        """)
        for n in range(17):
            if n == XH2:
                xl = S.read_x(1)
            if n < 16:
                S.wslice("q", n, blk[16 * G + n], blk[16 * G + n + 1] if n < 15 else None, n == 0, w_atoms(n))
            if n == XH2:
                S.D.need(xl)
            if G == 0:
                for j in range(AD + 1 if AD else 6):
                    if pre_slots[j] == n:
                        S.dma_kv_a((16 + j) if AD else (16 if j < 3 else 19), first=(j == 0))
            if n < 16:
                S.endslot(n, drain=False)
        stamp(A, 2)
        if G == 1:
            A(f"""
            s_lshl_b32 {sT}, s4, 19
            s_add_u32 s16, s80, {sT}
            s_addc_u32 s17, s81, 0
            s_and_b32 s17, s17, 0xffff
            s_mov_b32 s18, 0x80000
            s_mov_b32 s19, 0x20000
            s_lshl_b32 s65, {sRot}, 15
            s_add_u32 s65, s65, {sI8k}
            v_lshlrev_b32 v{vTch}, 3, v{vL16}
            s_lshl_b32 {sT}, s6, 3
            s_add_u32 {sT}, {sT}, s4
            s_lshl_b32 {sT}, {sT}, 19
            s_bitcmp1_b32 {sW_ID}, 0
            s_cselect_b32 s60, s76, s74
            s_cselect_b32 s61, s77, s75
            s_add_u32 s60, s60, {sT}
            s_addc_u32 s61, s61, 0
            s_and_b32 s61, s61, 0xffff
            s_mov_b32 s62, 0x80000
            s_mov_b32 s63, 0x20000
            s_lshl_b32 {sPFoff}, {sHH}, 17
            """)
        S.qfinal()
        S.attn_pro(0, 0, True)
        if AD:
            S.endslot(16)
        else:
            A("s_waitcnt lgkmcnt(0)")
        lim = lambda k: (15 - AD - k) // 3 + 1

        def guarded(cond, f):
            def g():
                sk = A.lab("L_sk")
                A(cond + f"\ns_cbranch_scc0 {sk}")
                f()
                A(f"{sk}:")
            return g

        def body_pre(k):
            e = {}
            if G == 0:
                two = lambda p: (lambda: (S.dma_kv_a_part(p), S.dma_kv_a_part(p + 1)))
                if k == 2:
                    c, c3 = f"s_cmp_lt_u32 {sN}, 4", f"s_cmp_lt_u32 {sN}, 3"
                    e = {-1: guarded(c, lambda: (two(0)(), two(2)())), 0: guarded(c, two(0)), 1: guarded(c, two(2)),
                         2: guarded(c3, two(0)), 3: guarded(c3, two(2))}
                if AD:
                    four = lambda: (two(0)(), two(2)())
                    e = {-1: guarded(f"s_cmp_lt_u32 {sN}, {lim(k)}", four) if lim(k) < 5 else four}
                elif OPT["aspread"]:
                    if k == 2:
                        e = {-1: guarded(c, two(0)), 1: guarded(c, two(2)), 4: guarded(c, two(0)), 7: guarded(c, two(2))}
                    if k == 0:
                        c = f"s_sub_u32 {sT}, {sN}, 1\ns_cmp_lt_u32 {sT}, 3"
                        e = {-1: guarded(c, two(0)), 1: guarded(c, two(2))}
            else:
                if OPT["wopf"] and OPT["wosplit"]:
                    it = int(OPT['wopfit'])

                    def tch(srd, hi):
                        return lambda: A(f"s_mov_b32 exec_{'lo' if hi else 'hi'}, 0\n"
                                         f"buffer_load_dword v12, v{vTch}, {srd}, s65 offen\ns_mov_b64 exec, -1")
                    if k < 2:
                        e[5] = guarded(f"s_cmp_eq_u32 {sN}, {it}", tch('s[16:19]', k))
                        e[6] = guarded(f"s_cmp_eq_u32 {sN}, {it + 1}", tch(sWO, k))
                elif OPT["wopf"] and k != 1:
                    e[5] = guarded(f"s_cmp_eq_u32 {sN}, {OPT['wopfit']}",
                                   lambda: A(f"buffer_load_dword v12, v{vTch}, {sWO if k else 's[16:19]'}, s65 offen"))
                if k == 0:
                    e[1] = guarded(f"s_cmp_eq_u32 {sN}, 4", lambda: S.emit(w_atoms(29)))
            return e

        def tail(k):
            if int(OPT["asleep"]):
                A(f"s_sleep {OPT['asleep']}")
            if k == 1:
                for r in range(12):
                    A(f"v_xor_b32 v{vAK+r}, 0xc000, v{vAK+r}")
            if AD:
                if G == 1:
                    if k == 1:
                        guarded(f"s_cmp_eq_u32 {sN}, 4", lambda: A("s_waitcnt vmcnt(0)"))()
                else:
                    if lim(k) < 5 and AD > 1:
                        guarded(f"s_cmp_ge_u32 {sN}, {lim(k)}", lambda: A("s_waitcnt vmcnt(0)"))()
                    A(f"s_waitcnt vmcnt({4 * (AD - 1)})")
                A("s_barrier")
            elif k == 1:
                if G == 1:
                    guarded(f"s_cmp_eq_u32 {sN}, 4", lambda: A("s_waitcnt vmcnt(0)"))()
                    A("s_waitcnt lgkmcnt(0)\ns_barrier")
                else:
                    A("s_waitcnt vmcnt(0) lgkmcnt(0)\ns_barrier")
            elif OPT["abar"]:
                A("s_barrier")
        attn_loop(S, 1, 17, body_pre, tail, st=True, shifted=True, carry=True)
        S.emit(w_atoms(32))
        S.attn_step2(1, last=True, carry=True)
        S.onorm()
        if G == 0:
            S.wslice("o", 0, None, blk[32], False)
        S.endslot(32, drain=(G == 1))
        stamp(A, 3)
        if G == 0:
            count_clear(A)
        must = S.write_o(G)
        if G == 0:
            for n in range(33, NST + 1):
                st = n - 1
                if n == 34:
                    must = S.read_o(0, False, True)[-1]
                if n == 49:
                    stamp(A, 4)
                    ids = S.read_o(1, True, True)
                    S.D.need(ids[0])
                    must = ids[-1]
                if n == 60 and aop:
                    A(f"""
                    s_waitcnt lgkmcnt(0)
                    s_load_dwordx2 s[70:71], s[0:1], 88
                    s_lshl_b32 {sT}, s6, 2
                    s_add_u32 {sT}, {sT}, 128
                    v_mov_b32 v{vA+8}, {sT}
                    s_lshl_b32 {sT}, s6, 3
                    s_add_u32 {sT}, {sT}, s4
                    s_lshl_b32 {sT2}, {sT}, 16
                    s_add_u32 {sT2}, {sT2}, {XP_OFF}
                    s_add_u32 s60, s82, {sT2}
                    s_addc_u32 s61, s83, 0
                    s_and_b32 s61, s61, 0xffff
                    s_mov_b32 s62, 0x10000
                    s_mov_b32 s63, 0x20000
                    s_lshl_b32 {sT}, {sT}, 15
                    s_add_u32 {sT}, {sT}, {HO_OFF}
                    s_add_u32 {sT}, {sT}, {sI8k}
                    v_add_u32 v{vA+4}, {sT}, v{vL16}
                    v_add_u32 v{vA+5}, 0x1000, v{vA+4}
                    v_xor_b32 v{vA+6}, 0x4000, v{vA+4}
                    v_xor_b32 v{vA+7}, 0x4000, v{vA+5}
                    s_mov_b32 s76, 0
                    s_waitcnt lgkmcnt(0)
                    L_a_poll:
                    global_load_dword v{vA+9}, v{vA+8}, s[70:71] sc1
                    s_add_u32 s76, s76, 1
                    s_waitcnt vmcnt(0)
                    v_readfirstlane_b32 s77, v{vA+9}
                    s_cmp_gt_u32 s76, 0x40000
                    s_cbranch_scc1 L_a_go
                    s_lshr_b32 s77, s77, s4
                    s_bitcmp1_b32 s77, 0
                    s_cbranch_scc1 L_a_go
                    s_sleep 8
                    s_branch L_a_poll
                    L_a_go:
                    """)
                    S.D.done = S.D.n
                    for i in range(8):
                        A(f"global_load_dwordx4 {vr(vQ+4*i,4)}, v{vA+4+(i>>2)}, s[82:83] offset:{(i&3)*1024} sc1")
                if n == 65:
                    stamp(A, 5)
                    S.store_partial(OPT['sta'], tmp=vOP, wait=False)
                    A("s_nop 1")
                    for i in range(8):
                        A(f"global_load_dwordx4 {vr(vOP+4*i,4)}, v{vA+6+(i>>2)}, s[82:83] offset:{(i&3)*1024} sc1")
                    A("s_waitcnt vmcnt(24)")
                if n == 73:
                    A("s_waitcnt vmcnt(0)")
                S.wslice("o", st & 15, blk[st], blk[st + 1] if st < NST - 1 else None, n in (33, 65))
                if must is not None:
                    S.D.need(must)
                    must = None
                if n <= LB:
                    S.endslot(n, drain=False)
            if aop:
                S.store_partial(OPT['sta'], srd="s[60:63]")
            else:
                stamp(A, 5)
                S.store_partial(OPT['sta'])
            stamp(A, 6)
        else:
            for n in range(33, LB + 1):
                S.emit(w_atoms(n))
                S.endslot(n)
            stamp(A, 5)
            for t in range(int(OPT["lt0"]), 32):
                A(f"s_add_u32 {sT}, {sPFoff}, {(t >> 4) * 262144 + (t & 15) * 8192}")
                A(f"buffer_load_dword v12, v{vTch}, {sPF}, {sT} offen")
            stamp(A, 6)
        finish(A)
        res.append(S)
    return res


MBX = 0x2000000


def early_clear(A):
    A(f"""
    s_cmp_eq_u32 {sW_ID}, 1
    s_cbranch_scc0 L_noclr
    s_lshl_b32 {sT}, s2, 8
    s_add_u32 {sT}, {sT}, {MBX}
    v_lshlrev_b32 v2, 2, v1
    v_add_u32 v2, {sT}, v2
    v_mov_b32 v3, 0
    s_mov_b64 exec, 0xff
    global_store_dword v2, v3, s[82:83] sc1
    s_mov_b64 exec, -1
    L_noclr:
    s_load_dwordx2 s[70:71], s[0:1], 88
    """)


def count_clear(A):
    l = A.lab("L_cc")
    A(f"""
    s_cmp_eq_u32 {sW_ID}, 1
    s_cbranch_scc0 {l}
    s_lshr_b32 {sT}, s2, 3
    s_lshl_b32 {sT}, {sT}, 2
    v_mov_b32 v2, {sT}
    v_mov_b32 v3, 1
    s_mov_b64 exec, 1
    global_atomic_add v2, v3, s[70:71]{' offset:128' if OPT.get('dbg') else ''}
    s_mov_b64 exec, -1
    {l}:
    """)


def final_reduce(A):
    A(f"""
    L_final:
    s_load_dwordx4 s[68:71], s[0:1], 80
    s_lshr_b32 s72, s2, 3
    s_lshl_b32 {sT}, s5, 4
    s_add_u32 {sT}, {sT}, s6
    s_lshl_b32 {sT}, {sT}, 19
    s_add_u32 s16, s82, {sT}
    s_addc_u32 s17, s83, 0
    s_and_b32 s17, s17, 0xffff
    s_mov_b32 s18, 0x80000
    s_mov_b32 s19, 0x20000
    s_lshl_b32 s73, s4, 3
    s_add_u32 s73, s73, {sW_ID}
    s_lshl_b32 s73, s73, 10
    v_and_b32 v2, 31, v1
    v_lshrrev_b32 v3, 5, v1
    v_lshlrev_b32 v2, 11, v2
    v_lshl_add_u32 v2, v3, 5, v2
    s_lshl_b32 s74, s6, 17
    s_lshl_b32 {sT}, s5, 10
    s_add_u32 s74, s74, {sT}
    s_bfe_u32 {sT}, s4, 0x10001
    s_lshl_b32 {sT}, {sT}, 16
    s_add_u32 s74, s74, {sT}
    s_lshr_b32 {sT}, s4, 2
    s_lshl_b32 {sT}, {sT}, 9
    s_add_u32 s74, s74, {sT}
    s_and_b32 {sT}, s4, 1
    s_lshl_b32 {sT}, {sT}, 8
    s_add_u32 s74, s74, {sT}
    s_lshr_b32 {sT}, {sW_ID}, 1
    s_lshl_b32 {sT}, {sT}, 6
    s_add_u32 s74, s74, {sT}
    s_lshl_b32 {sT}, {sQH}, 4
    s_add_u32 s74, s74, {sT}
    s_mov_b32 s75, 0xffff0000
    s_lshl_b32 s76, s72, 11
    s_lshl_b32 {sT}, s4, 2
    s_add_u32 s76, s76, {sT}
    s_add_u32 s76, s76, {MBX}
    v_lshlrev_b32 v7, 8, v1
    v_add_u32 v7, s76, v7
    s_lshl_b32 s76, s2, 8
    s_add_u32 s76, s76, {MBX}
    v_and_b32 v8, 7, v1
    v_lshlrev_b32 v8, 2, v8
    v_add_u32 v8, s76, v8
    s_lshl_b32 s72, s72, 2
    v_mov_b32 v4, s72
    v_mov_b32 v5, 1
    s_mov_b32 s76, 0
    s_waitcnt lgkmcnt(0)
    s_mov_b32 s20, s68
    s_and_b32 s21, s69, 0xffff
    s_mov_b32 s22, 0x200000
    s_mov_b32 s23, 0x20000
    s_cmp_eq_u32 {sW_ID}, 5
    s_cbranch_scc0 L_fin_t1
    L_fin_clr:
    global_load_dword v6, v4, s[70:71]{' offset:128' if OPT.get('dbg') else ''} sc1
    s_add_u32 s76, s76, 1
    s_waitcnt vmcnt(0)
    v_readfirstlane_b32 s77, v6
    s_cmp_gt_u32 s76, 0x40000
    s_cbranch_scc1 L_fin_t1
    s_cmp_ge_u32 s77, 8
    s_cbranch_scc1 L_fin_t1
    s_sleep 16
    s_branch L_fin_clr
    L_fin_t1:
    s_cmp_eq_u32 s5, 0
    s_cselect_b32 {sT}, {OPT["lwA"]}, {OPT["lwB"]}
    s_lshl_b32 {sT}, {sT}, 14
    v_mov_b32 v9, {sT}
    v_mov_b32 v6, 0
    s_cmp_eq_u32 {sW_ID}, 7
    s_cbranch_scc0 L_fin_nz
    ds_write_b32 v9, v6
    L_fin_nz:
    s_waitcnt vmcnt(0) lgkmcnt(0)
    s_barrier
    s_cmp_eq_u32 {sW_ID}, 0
    s_cbranch_scc0 L_fin_nosig
    s_mov_b64 exec, 0xff
    global_store_dword v7, v5, s[82:83] sc1
    s_mov_b64 exec, -1
    L_fin_nosig:
    s_mov_b32 s76, 0
    s_mov_b32 s78, 0
    L_fin_poll:
    s_cmp_eq_u32 {sW_ID}, 7
    s_cbranch_scc1 L_fin_pg
    s_sleep 1
    ds_read_b32 v6, v9
    s_waitcnt lgkmcnt(0)
    v_readfirstlane_b32 s77, v6
    s_branch L_fin_pj
    L_fin_pg:
    global_load_dword v6, v8, s[82:83] sc1
    s_add_u32 s76, s76, 1
    s_waitcnt vmcnt(0)
    v_cmp_eq_u32 vcc, 1, v6
    s_cmp_gt_u32 s76, 0x40000
    s_cselect_b32 s77, 0xff, 0
    s_or_b32 s77, s77, vcc_lo
    s_and_b32 s77, s77, 0xff
    v_mov_b32 v6, s77
    ds_write_b32 v9, v6
    L_fin_pj:
    s_andn2_b32 s79, s77, s78
    s_or_b32 s78, s78, s77
    """)
    for j in range(8):
        A(f"""
        s_bitcmp1_b32 s79, {j}
        s_cbranch_scc0 L_fin_s{j}
        s_add_u32 {sT}, s73, {j*0x10000}
        buffer_load_dwordx4 {vr(80+4*j,4)}, v{vL16}, s[16:19], {sT} offen sc1
        L_fin_s{j}:
        """)
    A("""
    s_cmp_eq_u32 s78, 0xff
    s_cbranch_scc0 L_fin_poll
    s_waitcnt vmcnt(0)
    """)
    for j in range(8):
        for i in range(4):
            r = 80 + 4 * j + i
            if j == 0:
                A(f"v_lshlrev_b32 v{64+2*i}, 16, v{r}")
                A(f"v_and_b32 v{65+2*i}, s75, v{r}")
            else:
                A(f"v_lshlrev_b32 v72, 16, v{r}")
                A(f"v_and_b32 v73, s75, v{r}")
                A(f"v_add_f32 v{64+2*i}, v{64+2*i}, v72")
                A(f"v_add_f32 v{65+2*i}, v{65+2*i}, v73")
    for i in range(4):
        A(f"v_cvt_pk_bf16_f32 v{76+i}, v{64+2*i}, v{65+2*i}")
    A("buffer_store_dwordx4 v[76:79], v2, s[20:23], s74 offen")
    if OPT["ts"]:
        A("s_waitcnt vmcnt(0)")
        stamp(A, 1)
    stamps_out(A)
    A("s_endpgm")


def finish(A):
    if OPT["fuse"]:
        A("s_branch L_final")
    else:
        stamps_out(A)
        A("s_endpgm")


def reduce_kernel(A):
    A(f"""
    s_cmp_ge_u32 s2, 512
    s_cbranch_scc1 L_exit2
    {"s_memrealtime s[24:25]" if OPT["ts"] else ""}
    s_load_dwordx2 s[4:5], s[0:1], 96
    s_load_dwordx2 s[6:7], s[0:1], 80
    v_lshlrev_b32 v1, 4, v0
    s_lshr_b32 s16, s2, 4
    s_lshl_b32 s17, s16, 19
    s_and_b32 s18, s2, 15
    s_lshl_b32 s18, s18, 12
    s_add_u32 s17, s17, s18
    s_waitcnt lgkmcnt(0)
    s_mov_b32 s8, s4
    s_and_b32 s9, s5, 0xffff
    s_mov_b32 s10, 0x1000000
    s_mov_b32 s11, 0x20000
    s_mov_b32 s12, s6
    s_and_b32 s13, s7, 0xffff
    s_mov_b32 s14, 0x200000
    s_mov_b32 s15, 0x20000
    """)
    for j in range(8):
        A(f"buffer_load_dwordx4 {vr(8+4*j,4)}, v1, s[8:11], s17 offen")
        if j < 7:
            A("s_add_u32 s17, s17, 0x10000")
    A(f"""
    v_and_b32 v2, 31, v0
    v_bfe_u32 v3, v0, 5, 1
    v_bfe_u32 v4, v0, 6, 1
    v_bfe_u32 v5, v0, 7, 1
    v_lshlrev_b32 v2, 11, v2
    v_lshl_add_u32 v2, v3, 5, v2
    v_lshl_add_u32 v2, v4, 4, v2
    v_lshl_add_u32 v2, v5, 6, v2
    s_and_b32 s18, s16, 15
    s_lshl_b32 s18, s18, 17
    s_lshr_b32 s19, s16, 4
    s_lshl_b32 s19, s19, 10
    s_add_u32 s18, s18, s19
    s_bfe_u32 s19, s2, 0x10002
    s_lshl_b32 s19, s19, 16
    s_add_u32 s18, s18, s19
    s_bfe_u32 s19, s2, 0x10003
    s_lshl_b32 s19, s19, 9
    s_add_u32 s18, s18, s19
    s_and_b32 s19, s2, 3
    s_lshl_b32 s19, s19, 7
    s_add_u32 s18, s18, s19
    s_mov_b32 s20, 0xffff0000
    s_waitcnt vmcnt(7)
    """)
    for i in range(4):
        A(f"v_lshlrev_b32 v{40+2*i}, 16, v{8+i}")
        A(f"v_and_b32 v{41+2*i}, s20, v{8+i}")
    for j in range(1, 8):
        A(f"s_waitcnt vmcnt({7-j})")
        for i in range(4):
            A(f"v_lshlrev_b32 v48, 16, v{8+4*j+i}")
            A(f"v_and_b32 v49, s20, v{8+4*j+i}")
            A(f"v_add_f32 v{40+2*i}, v{40+2*i}, v48")
            A(f"v_add_f32 v{41+2*i}, v{41+2*i}, v49")
    for i in range(4):
        A(f"v_cvt_pk_bf16_f32 v{52+i}, v{40+2*i}, v{41+2*i}")
    A("buffer_store_dwordx4 v[52:55], v2, s[12:15], s18 offen")
    if OPT["ts"]:
        A("""
        s_waitcnt vmcnt(0)
        s_memrealtime s[26:27]
        s_lshl_b32 s18, s2, 3
        s_add_u32 s18, s18, 0x8100000
        v_mov_b32 v2, s18
        s_waitcnt lgkmcnt(0)
        v_mov_b32 v4, s24
        v_mov_b32 v5, s26
        global_store_dwordx2 v2, v[4:5], s[4:5]
        """)
    A("L_exit2:")
    A("s_endpgm")


def kd(name, vg, sg):
    return f""".amdhsa_kernel {name}
  .amdhsa_next_free_vgpr {vg}
  .amdhsa_next_free_sgpr {sg}
  .amdhsa_accum_offset {vg}
  .amdhsa_group_segment_fixed_size 0
  .amdhsa_kernarg_size 104
  .amdhsa_user_sgpr_count 2
  .amdhsa_user_sgpr_kernarg_segment_ptr 1
  .amdhsa_system_sgpr_workgroup_id_x 1
.end_amdhsa_kernel
"""


def build(code_slice=1024):
    Asm.nlab = 0
    out = HEADER
    kn = NAME + "_kernel" if OPT["fuse"] else "attn_kernel"
    if OPT["fuse"]:
        out += f"; @launch grid=(256,1,1) block=(512,1,1) lds={LDS_BYTES}\n"
    else:
        out += f"; @launch kernel=attn_kernel grid=(256,1,1) block=(512,1,1) lds={LDS_BYTES}\n"
        out += "; @launch kernel=reduce_kernel grid=(512,1,1) block=(256,1,1) lds=0\n"
    out += '.amdgcn_target "amdgcn-amd-amdhsa--gfx950"\n.text\n'
    A = Asm()
    A.L.append(f".globl {kn}\n.p2align 8\n.type {kn},@function\n{kn}:")
    setup(A)

    def misc():
        if OPT["codepf"]:
            l = A.lab("L_nopf")
            A(f"""
            s_cmp_eq_u32 {sW_ID}, 0
            s_cbranch_scc0 {l}
            s_getpc_b64 s[58:59]
            s_lshr_b32 {sT}, s2, 3
            s_mul_i32 {sT}, {sT}, {code_slice}
            v_lshlrev_b32 v3, 3, v{vL16}
            v_add_u32 v3, {sT}, v3
            v_cmp_gt_u32 vcc, {code_slice//128}, v1
            s_and_saveexec_b64 s[70:71], vcc
            global_load_dword v12, v3, s[58:59]
            s_mov_b64 exec, -1
            {l}:
            """)
        early_clear(A)
    a0, a1 = prog_a()
    b0, b1 = prog_b()
    if OPT["bsh"]:
        misc()
        A(f"s_cmp_eq_u32 s5, 0\ns_cbranch_scc1 L_A")
        T = Stream(); T.A = A
        T.dma_x(0)
        patterns(A)
        A(f"s_cmp_lt_u32 {sW_ID}, 4\ns_cbranch_scc1 L_BG0")
        seq = (("L_BG1", b1), ("L_BG0", b0), ("L_A", None), ("L_AG0", a0), ("L_AG1", a1))
    else:
        misc()
        A(f"""
        s_lshr_b32 {sT}, {sW_ID}, 2
        s_lshl_b32 {sT2}, s5, 1
        s_or_b32 {sT}, {sT}, {sT2}
        s_cmp_eq_u32 {sT}, 1
        s_cbranch_scc1 L_AG1
        s_cmp_eq_u32 {sT}, 2
        s_cbranch_scc1 L_BG0
        s_cmp_eq_u32 {sT}, 3
        s_cbranch_scc1 L_BG1
        """)
        seq = (("L_AG0", a0), ("L_AG1", a1), ("L_BG0", b0), ("L_BG1", b1))
    A("L_code0:")
    for lab, S in seq:
        if int(OPT["sal"]) and lab != seq[0][0] and lab != "L_AG0":
            A.L.append(f".p2align {OPT['sal']}")
        A(f"{lab}:")
        if S is None:
            A(f"s_cmp_ge_u32 {sW_ID}, 4\ns_cbranch_scc1 L_AG1")
            continue
        A.L += S.A.L
        for R in S.rare:
            A.L += R.L
    if OPT["fuse"]:
        final_reduce(A)
    A("L_exit:")
    A("s_endpgm")
    if not OPT["fuse"]:
        A.L.append(".globl reduce_kernel\n.p2align 8\n.type reduce_kernel,@function\nreduce_kernel:")
        reduce_kernel(A)
    out += A.text()
    out += '.section .rodata,"a"\n.p2align 6\n' + kd(kn, 256, 102)
    if not OPT["fuse"]:
        out += ".p2align 6\n" + kd("reduce_kernel", 56, 32)
    return out


if __name__ == "__main__":
    path = sys.argv[1]
    for kv in sys.argv[2:]:
        k, v = kv.split("=")
        if k in ("ts", "kv_nt", "w_nt", "verbose", "wopf", "codepf", "bshift", "ashift", "clk", "uq", "trace", "fuse", "aop", "abar", "aspread", "wosplit", "latew", "bsh", "dbg", "tlb"):
            OPT[k] = v == "1"
        else:
            OPT[k] = v.replace("_", " ")
    import subprocess, tempfile, os
    txt = build()
    with tempfile.TemporaryDirectory() as d:
        open(d + "/a.s", "w").write(txt)
        subprocess.check_call(["clang", "-x", "assembler", "-target", "amdgcn-amd-amdhsa", "-mcpu=gfx950", "-c", d + "/a.s", "-o", d + "/a.o"])
        nm = subprocess.check_output(["llvm-objdump", "-t", d + "/a.o"], text=True)
    sym = {l.split()[-1]: int(l.split()[0], 16) for l in nm.splitlines() if ".text" in l and len(l.split()) >= 4}
    size = sym["L_exit"] - sym["L_code0"]
    OPT["verbose"] = False
    open(path, "w").write(build(size // 32 // 128 * 128))
```

```python
import sys, math, struct

NAME = "concat_heads__gqa_block_cached__mha_block_cached__near_ridge"
HEADER = open("cdna_kernels/" + NAME + ".s.ref").read().split("; Override")[0]


def f32bits(x):
    return struct.unpack("<I", struct.pack("<f", x))[0]


class Asm:
    nlab = 0

    def __init__(self):
        self.L = []

    def __call__(self, s):
        for line in s.strip("\n").split("\n"):
            t = line.strip()
            if t:
                self.L.append(t if t.endswith(":") else "  " + t)
                if t == "s_barrier" and OPT.get("trace"):
                    n = Asm.nlab = Asm.nlab + 1
                    self.L += ["  s_memrealtime s[56:57]", "  s_mov_b32 m0, s66", "  s_waitcnt lgkmcnt(0)", "  s_cmp_lt_u32 s66, 64",
                               f"  s_cbranch_scc0 L_tr{n}", "  v_writelane_b32 v30, s56, m0", f"  s_branch L_tr{n}b", f"L_tr{n}:",
                               "  v_writelane_b32 v31, s56, m0", f"L_tr{n}b:", "  s_add_u32 s66, s66, 1"]

    def lab(self, base="L"):
        Asm.nlab += 1
        return f"{base}_{Asm.nlab}"

    def text(self):
        return "\n".join(self.L) + "\n"


class DS:
    def __init__(self, A, pending=0):
        self.A = A
        self.n = pending
        self.done = 0

    def issue(self, text):
        if self.n - self.done >= 15:
            self.need(self.n - 15)
        self.A(text)
        self.n += 1
        return self.n - 1

    def need(self, idx):
        if idx < self.done:
            return
        self.A(f"s_waitcnt lgkmcnt({self.n - 1 - idx})")
        self.done = idx + 1


def vr(a, n):
    return f"v[{a}:{a+n-1}]"


BLK = 16384
XH2 = 3
XP_OFF = 0x1000000
HO_OFF = 0x1800000
LDS_BYTES = 163840

sW_ID = "s3"
sKV = "s[8:11]"
sWQ = "s[12:15]"
sX = "s[20:23]"
sWO = "s[24:27]"
sP = "s[28:31]"
sN = "s32"
sI4k = "s33"
sI8k = "s34"
sI64k = "s35"
sKU = "s36"
sKhd = "s37"
sKI = "s38"
sKoff = "s40"
sC = "s41"
sInvC = "s42"
sT = "s43"
sT2 = "s44"
sI = "s45"
sHH = "s46"
sQH = "s47"
sRotI = "s48"
sRot = "s49"
sKVl = "s39"
sKmax = "s50"
sKhd1 = "s52"
sKrot = "s42"
sKcur = "s36"
sPF = "s[60:63]"
sPFoff = "s64"
sKIend = "s51"
sKUend = "s52"
sT8 = "s53"
sTSb = "s[54:55]"
sTS = 56

vKVo = 4
vWo = 8
vPK, vPV, vPW, vPX, vPO, vL16 = 13, 14, 15, 16, 17, 18
vA = 20
vM, vThr, vL0, vL1, vT0, vT1, vT2, vT3 = 32, 33, 34, 35, 36, 37, 38, 39
vS = 40
vPp = 56
vACC = 64
vF0 = 128
vF1 = 160
vQ = 192
vOP = 224
vWF = 32
vXF = 128
vX = 224
vAK = 240
vAV = 248
vTch = 19
vLA = 252
vNM = 160
vOne = 176

OPT = dict(ts=False, kv_nt=True, w_nt=False, st=" sc1", sta=" sc1", look=10, maxiss=4, lead=12, kvstart=8, kv2=12, w1=18, w2=36, wper=2, estart=46, m1a=0, m1b=0, awo=31, adist=4, uq=False, fuse=True, lbd=1, rotg=0, rotb=1, aop=False, asleep=0, tlb=1, lal=0, sal=0, bsh=True, xpol='', prio=2, latew=True, la=3, lb=2, n1=8, n2=12, wosplit=True, ad=1, abar=False, aspread=False, ag0=14, ag1=15, m1n=4, m1t=3, m1pol='', lt0=32, uo=16, afirst=4, wopfit=0, akvstart=12, wopf=True, bshift=True, ashift=True, first=2, pf0=3, pfP=2, pfR=0, pfO=2, pfmax=32, codepf=True)


def stamp(A, idx, cyc=False):
    if not OPT["ts"]:
        return
    if OPT.get("clk"):
        if cyc:
            return
        A(f"s_memtime s[{sTS}:{sTS+1}]\ns_waitcnt lgkmcnt(0)\ns_mov_b32 s{84+8+idx}, s{sTS}")
    A(f"""
    {'s_memtime' if cyc else 's_memrealtime'} s[{sTS}:{sTS+1}]
    s_waitcnt lgkmcnt(0)
    s_mov_b32 s{84+idx}, s{sTS}
    """)


def cstamp(A, idx, n):
    if not OPT["ts"]:
        return
    l = A.lab("L_st")
    A(f"s_cmp_eq_u32 {sN}, {n}\ns_cbranch_scc0 {l}")
    stamp(A, idx, True)
    A(f"{l}:")


def stamps_out(A):
    if not OPT["ts"]:
        return
    if OPT.get("trace"):
        A(f"""
        s_lshl_b32 {sT}, s2, 3
        s_add_u32 {sT}, {sT}, {sW_ID}
        s_lshl_b32 {sT}, {sT}, 9
        s_add_u32 {sT}, {sT}, 0x8200000
        v_lshlrev_b32 v3, 2, v1
        v_add_u32 v3, {sT}, v3
        global_store_dword v3, v30, s[82:83]
        global_store_dword v3, v31, s[82:83] offset:256
        """)
    if OPT.get("dbg"):
        A(f"""
        s_and_b32 {sT}, s2, 0xf7
        s_or_b32 {sT}, {sT}, {sW_ID}
        s_cmp_eq_u32 {sT}, 0
        s_cbranch_scc0 L_nodbg
        s_xor_b32 {sT}, s2, 8
        s_lshl_b32 {sT}, {sT}, 2
        v_mov_b32 v3, {sT}
        """)
        for i in range(8):
            A(f"s_sub_u32 {sT}, s{84+i}, s100\nv_mov_b32 v2, {sT}\nglobal_store_dword v3, v2, s[70:71] offset:{i*4}")
        A("L_nodbg:")
    A("v_mov_b32 v3, 0")
    for i in range(16):
        A(f"v_mov_b32 v2, s{84+i}")
        A(f"global_store_dword v3, v2, {sTSb} offset:{i*4}")
    A("s_waitcnt vmcnt(0)")


def ring_adv(A, reg, step, end, span):
    A(f"""
    s_add_u32 {reg}, {reg}, {step}
    s_cmp_ge_u32 {reg}, {end}
    s_cselect_b32 {sT}, {span}, 0
    s_sub_u32 {reg}, {reg}, {sT}
    """)


class Stream:
    def __init__(self):
        self.A = Asm()
        self.out = []
        self.wmode = "q"
        self.rare = []
        self.par = 0
        self.D = DS(self.A)
        self.fid = {}

    def rec(self, n, deadline):
        self.out.append((n, deadline))

    def vm_for(self, slot):
        last = -1
        for i, (n, d) in enumerate(self.out):
            if d <= slot:
                last = i
        if last < 0:
            return None
        rest = self.out[last + 1:]
        self.out = rest
        return sum(n for n, _ in rest)

    def endslot(self, slot, barrier=True, drain=True):
        vm = self.vm_for(slot + 1)
        w = []
        if vm is not None:
            assert vm <= 63
            w.append(f"vmcnt({vm})")
        if drain:
            w.append("lgkmcnt(0)")
            self.D.done = self.D.n
        if w:
            self.A("s_waitcnt " + " ".join(w))
        if barrier:
            self.A("s_barrier")

    def drained(self):
        self.out = []

    def dma_x(self, half):
        A = self.A
        if half == 0:
            A(f"""
            v_lshrrev_b32 v2, 5, v1
            v_and_b32 v3, 31, v1
            s_and_b32 {sT2}, {sW_ID}, 1
            s_lshl_b32 {sT2}, {sT2}, 3
            v_or_b32 v{vA+8}, {sT2}, v2
            v_xor_b32 v{vA+8}, v{vA+8}, v3
            v_lshlrev_b32 v{vA+9}, 10, v2
            s_lshl_b32 {sT2}, {sRot}, 2
            """)
            for j in range(4):
                A(f"""
                v_xor_b32 v{vA+j}, {2*j}, v{vA+8}
                v_add_u32 v{vA+j}, {sT2}, v{vA+j}
                v_and_b32 v{vA+j}, 63, v{vA+j}
                v_lshl_add_u32 v{vA+j}, v{vA+j}, 4, v{vA+9}
                """)
                if j:
                    A(f"v_add_u32 v{vA+j}, {j*1024}, v{vA+j}")
        else:
            for j in range(4):
                A(f"v_xor_b32 v{vA+j}, 0x200, v{vA+j}")
        A(f"""
        s_lshl_b32 {sT}, {sW_ID}, 12
        s_add_u32 m0, {sT}, {half*3*BLK}
        s_lshl_b32 {sT}, {sW_ID}, 13
        """)
        for j in range(4):
            off = f" offset:{j*1024}" if j else ""
            A(f"buffer_load_dwordx4 v{vA+j}, {sX}, {sT} offen{off}{OPT['xpol']} lds")
        self.rec(4, -1 if half == 0 else XH2)

    def set_wmode(self, mode):
        A = self.A
        if self.wmode == mode:
            return
        if self.wmode == "q":
            A(f"""
            v_lshrrev_b32 v2, 9, v{vL16}
            v_lshlrev_b32 v2, 17, v2
            """)
            for p in range(4):
                A(f"v_xor_b32 v3, {p<<6}, v{vL16}")
                A(f"v_add_u32 v{vWo+p}, v3, v2")
            self.wmode = 0
        if self.wmode != mode:
            for p in range(4):
                A(f"v_xor_b32 v{vWo+p}, 0x20000, v{vWo+p}")
            self.wmode = mode

    def dma_w(self, stage, blk, deadline):
        nt = " nt" if OPT["w_nt"] else ""
        if stage < 32:
            assert self.wmode == "q"
            G, i = stage >> 4, stage & 15
            pre = (f"s_add_u32 {sT}, {sRotI}, {i*262144 + G*512}\n"
                   f"s_add_u32 m0, {sI4k}, {blk*BLK}\n"
                   f"s_and_b32 {sT}, {sT}, 0x3fffff\n")
            srd = sWQ
        else:
            ps, s = ((stage - 32) >> 4) & 1, stage & 15
            keep, self.A = self.A, Asm()
            self.set_wmode(s >> 3)
            pre = "\n".join(self.A.L) + "\n"
            self.A = keep
            pre += (f"s_add_u32 m0, {sI4k}, {blk*BLK}\n"
                    f"s_add_u32 {sT}, {sI4k}, {(s&7)*16384 + ps*262144}\n")
            srd = sWO if stage < 64 else "s[16:19]"
        at = []
        for p in range(4):
            off = f" offset:{p*1024}" if p else ""
            at.append((pre if p == 0 else "") + f"buffer_load_dwordx4 v{vWo+p}, {srd}, {sT} offen{off}{nt} lds")
        self.rec(4, deadline)
        return at

    def dma_kv_b(self, beta, half, deadline):
        nt = " nt" if OPT["kv_nt"] else ""
        buf = (beta + 1) % 3

        m0 = f"s_add_u32 m0, {sKVl}, {buf*BLK + half*4096}\n"
        post = ""
        pre = (f"s_add_u32 {sT}, {sKrot}, {((beta & 15) * 8192 + half * 4096)}\n"
               f"s_and_b32 {sT}, {sT}, 0x1ffff\n")
        pk, pv = max(0, min(31, beta + 1)) >> 4, max(0, beta) >> 4
        if pk == pv:
            pre += f"s_add_u32 {sT}, {sT}, {sKhd if pk == 0 else sKhd1}\n"
        else:
            pre += (f"s_cmp_eq_u32 {sQH}, 0\n"
                    f"s_cselect_b32 {sT2}, {sKhd1}, {sKhd}\n"
                    f"s_add_u32 {sT}, {sT}, {sT2}\n")
        if beta in (-1, 31):
            pre += (f"s_cmp_eq_u32 {sQH}, 0\n"
                    f"s_cselect_b64 exec, {'-1, 1' if beta == -1 else '1, -1'}\n")
            post = "\ns_mov_b64 exec, -1"
        at = []
        for p in range(4):
            off = f" offset:{p*1024}" if p else ""
            at.append((m0 + pre if p == 0 else "") + f"buffer_load_dwordx4 v{vKVo+p}, {sKV}, {sT} offen{off}{nt} lds")
        if post:
            at = ["\n".join(at) + post]
        self.rec(4, deadline)
        return at

    def dma_kv_a_part(self, part, first=False):
        A = self.A
        nt = " nt" if OPT["kv_nt"] else ""
        if part == 0:
            A(f"s_mov_b32 m0, {sKI}")
            if first:
                A(f"s_cmp_eq_u32 {sQH}, 0\ns_cselect_b64 exec, -1, 1")
            A(f"s_and_b32 {sKcur}, {sKoff}, 0x1ffff")
        off = f" offset:{part*1024}" if part else ""
        A(f"buffer_load_dwordx4 v{vKVo+part}, {sKV}, {sKcur} offen{off}{nt} lds")
        if part == 3:
            if first:
                A(f"s_mov_b64 exec, -1")
            A(f"s_add_u32 {sKoff}, {sKoff}, 8192")
            ring_adv(A, sKI, BLK, sKIend, 6 * BLK)

    def dma_kv_a(self, deadline, first=False):
        for p in range(4):
            self.dma_kv_a_part(p, first)
        self.rec(4, deadline)

    def pf_round(self, rec=True):
        A = self.A
        A(f"buffer_load_dword v12, v{vTch}, {sPF}, {sPFoff} offen")
        A(f"s_add_u32 {sPFoff}, {sPFoff}, 4096")
        if rec:
            self.rec(1, 1000)

    def emit(self, atoms):
        for a in atoms:
            self.A(a)

    def read_x(self, half):
        A = self.A
        regs = [vPX, 2, 3, vA + 4, vA + 5, vA + 6, vA + 7, vA + 8]
        for s in range(1, 8):
            A(f"v_xor_b32 v{regs[s]}, {32*s}, v{vPX}")
        D = self.D
        for s in range(16):
            ad = regs[s & 7]
            last = D.issue(f"ds_read_b128 {vr(vXF+64*half+4*s,4)}, v{ad} offset:{half*3*BLK+(s>>3)*256}")
        return last

    def wslice(self, kind, i, blk, nxt, first, dma=()):
        A = self.A
        a = vA
        pat = vPW if kind == "q" else vPO

        def addr(base, b):
            A(f"v_add_u32 v{base}, {b*BLK}, v{pat}")
            for m in range(1, 4):
                A(f"v_xor_b32 v{base+m}, {64*m}, v{base}")

        def rd(base, h, m, u):
            off = (16 * h + 4 * u) * 512 if kind == "q" else h * 256 + u * 4096
            return f"ds_read_b64_tr_b16 {vr(vWF+16*h+4*m+2*u,2)}, v{base+m} offset:{off}"

        def mf(h, m):
            if kind == "q":
                acc, b = vACC + 16 * m, vXF + 4 * (2 * i + h)
                c0 = first and h == 0
            else:
                acc, b = vACC + 16 * (4 * h + m), vQ + 4 * i
                c0 = first
            c = "0" if c0 else vr(acc, 16)
            return f"v_mfma_f32_32x32x16_bf16 {vr(acc,16)}, {vr(vWF+16*h+4*m,4)}, {vr(b,4)}, {c}"

        dma = list(dma)
        per = (len(dma) + 7) // 8
        D = self.D
        if nxt is not None:
            addr(a, nxt)
        for h in range(2):
            for m in range(4):
                if blk is not None:
                    D.need(self.fid[(h, m)])
                    A(mf(h, m))
                if nxt is not None:
                    D.issue(rd(a, h, m, 0))
                    self.fid[(h, m)] = D.issue(rd(a, h, m, 1))
                self.emit(dma[:per]); dma = dma[per:]
        self.emit(dma)

    def qfinal(self):
        A = self.A
        A(f"s_nop 7\nv_mov_b32 v{vT0}, {sC}\ns_nop 6")
        for i in range(32):
            A(f"v_pk_mul_f32 {vr(vACC+2*i,2)}, {vr(vACC+2*i,2)}, {vr(vT0,2)} op_sel_hi:[1,0]")
            if i:
                A(f"v_cvt_pk_bf16_f32 v{vQ+i-1}, v{vACC+2*i-2}, v{vACC+2*i-1}")
        A(f"v_cvt_pk_bf16_f32 v{vQ+31}, v{vACC+62}, v{vACC+63}")

    def max_atoms(self):
        at = [f"v_max3_f32 v{vT0}, v{vS}, v{vS+1}, v{vS+2}", f"v_max3_f32 v{vT1}, v{vS+3}, v{vS+4}, v{vS+5}"]
        for k, i in enumerate(range(6, 14, 2)):
            t = vT0 if k % 2 == 0 else vT1
            at.append(f"v_max3_f32 v{t}, v{t}, v{vS+i}, v{vS+i+1}")
        at += [f"v_max3_f32 v{vT0}, v{vT0}, v{vS+14}, v{vS+15}", f"v_max_f32 v{vT0}, v{vT0}, v{vT1}"]
        return at

    def qk_mfma(self, s, c0):
        c = c0 if s == 0 else vr(vS, 16)
        return f"v_mfma_f32_32x32x16_bf16 {vr(vS,16)}, {vr(vF0+4*s,4)}, {vr(vQ+4*s,4)}, {c}"

    def pv_mfma(self, k):
        j, m = k >> 2, k & 3
        return f"v_mfma_f32_32x32x16_bf16 {vr(vACC+16*m,16)}, {vr(vF0+4*k,4)}, {vr(vPp+4*j,4)}, {vr(vACC+16*m,16)}"

    def attn_pro(self, buf, base, shifted=False):
        A = self.A
        A(f"v_add_u32 v{vAK}, {base}, v{vPK}")
        A(f"v_add_u32 v{vAV}, {base}, v{vPV}")
        for s in range(1, 8):
            A(f"v_xor_b32 v{vAK+s}, {32*s}, v{vAK}")
        D = self.D
        kid = [D.issue(f"ds_read_b128 {vr(vF0+4*s,4)}, v{vAK+s} offset:{buf*BLK}") for s in range(8)]
        for m in range(1, 4):
            A(f"v_xor_b32 v{vAV+m}, {64*m}, v{vAV}")
        fill = [f"v_mov_b64 {vr(vACC+2*i,2)}, 0" for i in range(32)] + [f"v_mov_b64 {vr(vLA+2*i,2)}, 0" for i in range(2)]
        fill += [f"v_mov_b64 {vr(vPp+2*i,2)}, 0" for i in range(4)]
        fill += [f"v_lshrrev_b32 v{vT0}, 2, v1", f"v_lshrrev_b32 v{vT1}, 4, v1", f"v_xor_b32 v{vT0}, v{vT0}, v{vT1}",
                 f"v_and_b32 v{vT0}, 1, v{vT0}", f"v_and_b32 v{vT1}, 3, v1", f"v_or_b32 v{vT0}, v{vT0}, v{vT1}",
                 f"v_cmp_eq_u32 vcc, 0, v{vT0}", f"v_mov_b32 v{vT1}, 0x3f803f80", "s_nop 0"]
        fill += [f"v_cndmask_b32 v{vOne+i}, 0, v{vT1}, vcc" for i in range(4)]
        for s in range(8):
            D.need(kid[s])
            A(self.qk_mfma(s, "0"))
            self.emit(fill[:5]); fill = fill[5:]
        self.emit(fill)
        A("s_nop 1")
        self.emit(self.max_atoms())
        A(f"""
        v_mov_b32 v{vT1}, v{vT0}
        s_nop 1
        v_permlane32_swap_b32 v{vT0}, v{vT1}
        s_nop 1
        v_max_f32 v{vT0}, v{vT0}, v{vT1}
        """)
        if shifted:
            for i in range(16):
                A(f"v_sub_f32 v{vS+i}, v{vS+i}, v{vT0}")
                A(f"v_sub_f32 v{vNM+i}, 0, v{vT0}")
            return
        for i in range(16):
            A(f"v_sub_f32 v{vX+i}, v{vS+i}, v{vT0}")
            A(f"v_sub_f32 v{vNM+i}, 0, v{vT0}")
        for i in range(16):
            A(f"v_exp_f32 v{vX+i}, v{vX+i}")

    def attn_step(self, buf, last=False, extra={}):
        A = self.A
        D = self.D
        o = buf * BLK

        def vrd(k):
            j, m = k >> 2, k & 3
            D.issue(f"ds_read_b64_tr_b16 {vr(vF0+4*k,2)}, v{vAV+m} offset:{o+8192+4096*j}")
            return D.issue(f"ds_read_b64_tr_b16 {vr(vF0+4*k+2,2)}, v{vAV+m} offset:{o+8192+4096*j+2048}")
        cvt = [f"v_cvt_pk_bf16_f32 v{vPp+i}, v{vX+2*i}, v{vX+2*i+1}" for i in range(8)]
        lsum = [f"v_mfma_f32_16x16x32_bf16 {vr(vLA,4)}, {vr(vOne,4)}, {vr(vPp+4*j,4)}, {vr(vLA,4)}" for j in range(2)]
        vid = {}
        if last:
            for k in range(8):
                vid[k] = vrd(k)
            self.emit(cvt)
            A("s_nop 1")
            self.emit(lsum)
            for k in range(8):
                D.need(vid[k])
                A(self.pv_mfma(k))
            return
        kid = [D.issue(f"ds_read_b128 {vr(vF0+4*s,4)}, v{vAK+s} offset:{o}") for s in range(8)]
        self.emit(cvt)
        for s in range(8):
            D.need(kid[s])
            A(self.qk_mfma(s, vr(vNM, 16)))
            mark = len(A.L)
            vid[s] = vrd(s)
            if s in extra: extra[s]()
        self.emit(lsum)
        lr, lb = A.lab("L_rare"), A.lab("L_back")
        mx = self.max_atoms()
        ex = [f"v_exp_f32 v{vX+i}, v{vS+i}" for i in range(16)]
        fill = [[], [], mx[:5], mx[5:] + [f"v_cmp_lt_f32 vcc, {sT8}, v{vT0}", f"s_cbranch_vccnz {lr}"] + ex[:1],
                ex[1:4], ex[4:7], ex[7:10], ex[10:16]]
        for k in range(8):
            D.need(vid[k])
            A(self.pv_mfma(k))
            if k == 2:
                dist = len(A.L) - mark
                if dist < 12:
                    A(f"s_nop {12 - dist - 1}")
            self.emit(fill[k])
        A(f"{lb}:")
        R = Asm()
        R(f"{lr}:")
        R("s_waitcnt lgkmcnt(0)")
        for k in range(4, 8):
            R(self.pv_mfma(k))
        R(f"""
        v_mov_b32 v{vT1}, v{vT0}
        s_nop 1
        v_permlane32_swap_b32 v{vT0}, v{vT1}
        s_nop 1
        v_max3_f32 v{vT0}, v{vT0}, v{vT1}, 0
        v_sub_f32 v{vT1}, 0, v{vT0}
        v_exp_f32 v{vT1}, v{vT1}
        """)
        for i in range(16):
            R(f"v_sub_f32 v{vX+i}, v{vS+i}, v{vT0}")
            R(f"v_sub_f32 v{vNM+i}, v{vNM+i}, v{vT0}")
        for i in range(16):
            R(f"v_exp_f32 v{vX+i}, v{vX+i}")
        R(f"v_mul_f32 v{vLA}, v{vLA}, v{vT1}")
        for i in range(64):
            R(f"v_mul_f32 v{vACC+i}, v{vACC+i}, v{vT1}")
        R(f"s_branch {lb}")
        self.rare.append(R)

    def attn_step2(self, buf, last=False, extra={}, carry=False):
        A = self.A
        D = self.D
        o = buf * BLK

        def vrd(k):
            j, m = k >> 2, k & 3
            D.issue(f"ds_read_b64_tr_b16 {vr(vF0+4*k,2)}, v{vAV+m} offset:{o+8192+4096*j}")
            return D.issue(f"ds_read_b64_tr_b16 {vr(vF0+4*k+2,2)}, v{vAV+m} offset:{o+8192+4096*j+2048}")

        def krd(k, DD=None):
            t = f"ds_read_b128 {vr(vF0+4*k,4)}, v{vAK+k} offset:{o}"
            return D.issue(t)
        cvt = [f"v_cvt_pk_bf16_f32 v{vPp+i}, v{vX+2*i}, v{vX+2*i+1}" for i in range(8)]
        lsum = [f"v_mfma_f32_16x16x32_bf16 {vr(vLA,4)}, {vr(vOne,4)}, {vr(vPp+4*j,4)}, {vr(vLA,4)}" for j in range(2)]
        lr, lb = A.lab("L_rare"), A.lab("L_back")
        mx = self.max_atoms()
        ex = [f"v_exp_f32 v{vX+i}, v{vS+i}" for i in range(16)]
        fill = [mx[:4], mx[4:] + [f"v_cmp_lt_f32 vcc, {sT8}, v{vT0}", f"s_cbranch_vccnz {lr}"],
                ex[0:2], ex[2:5], ex[5:7], ex[7:10], ex[10:12], ex[12:14]]
        ex_rest = ex[14:]
        nid = {}
        R = Asm()
        R(f"{lr}:")
        R("s_waitcnt lgkmcnt(0)")
        if -1 in extra: extra[-1]()
        A("s_nop 7")
        base = D.n
        D.n += 16
        D.done = base + 1 if carry else D.n
        for k in range(8):
            D.need(base + 2 * k + 1)
            A(self.pv_mfma(k))
            mark = len(A.L)
            nid[k] = vrd(k) if last else krd(k)
            if k >= 2:
                R(self.pv_mfma(k))
                R.L += [l for l in A.L[mark:] if "ds_read" in l]
            self.emit(fill[k])
        self.emit(ex_rest)
        A(f"{lb}:")
        R(f"""
        v_mov_b32 v{vT1}, v{vT0}
        s_nop 1
        v_permlane32_swap_b32 v{vT0}, v{vT1}
        s_nop 1
        v_max3_f32 v{vT0}, v{vT0}, v{vT1}, 0
        v_sub_f32 v{vT1}, 0, v{vT0}
        v_exp_f32 v{vT1}, v{vT1}
        """)
        for i in range(16):
            R(f"v_sub_f32 v{vX+i}, v{vS+i}, v{vT0}")
            R(f"v_sub_f32 v{vNM+i}, v{vNM+i}, v{vT0}")
        for i in range(16):
            R(f"v_exp_f32 v{vX+i}, v{vX+i}")
        R(f"v_mul_f32 v{vLA}, v{vLA}, v{vT1}")
        for i in range(64):
            R(f"v_mul_f32 v{vACC+i}, v{vACC+i}, v{vT1}")
        R("s_waitcnt lgkmcnt(0)")
        R(f"s_branch {lb}")
        self.rare.append(R)
        if last:
            self.emit(cvt)
            A("s_nop 1")
            self.emit(lsum)
            for k in range(8):
                D.need(nid[k])
                A(self.pv_mfma(k))
            return
        fill2 = [cvt[0:3], cvt[3:6], cvt[6:8], [], lsum[:1], [], lsum[1:], []]
        for s_ in range(8):
            D.need(nid[s_])
            A(self.qk_mfma(s_, vr(vNM, 16)))
            vrd(s_)
            self.emit(fill2[s_])
            if s_ in extra: extra[s_]()

    def onorm(self, dma=()):
        A = self.A
        dma = list(dma)
        A(f"""
        s_nop 7
        v_rcp_f32 v{vT0}, v{vLA}
        s_nop 7
        """)
        for i in range(32):
            if dma and i % 2 == 0:
                A(dma.pop(0))
            A(f"v_pk_mul_f32 {vr(vACC+2*i,2)}, {vr(vACC+2*i,2)}, {vr(vT0,2)} op_sel_hi:[1,0]")
            if i:
                A(f"v_cvt_pk_bf16_f32 v{vQ+i-1}, v{vACC+2*i-2}, v{vACC+2*i-1}")
        A(f"v_cvt_pk_bf16_f32 v{vQ+31}, v{vACC+62}, v{vACC+63}")
        self.emit(dma)

    def write_o(self, bb):
        A = self.A
        A(f"v_add_u32 v{vA+8}, {sKVl}, v{vL16}")
        for i in range(8):
            last = self.D.issue(f"ds_write_b128 v{vA+8}, {vr(vQ+4*i,4)} offset:{bb*BLK+1024*i}")
        return last

    def read_o(self, bb, own, partner):
        A = self.A
        A(f"""
        v_add_u32 v{vA+8}, {sKVl}, v{vL16}
        s_cmp_eq_u32 {sHH}, 0
        s_cselect_b32 {sT}, {3*BLK}, 0
        s_lshl_b32 {sT2}, {sQH}, 13
        s_add_u32 {sT}, {sT}, {sT2}
        v_add_u32 v{vA+9}, {sT}, v{vL16}
        """)
        D = self.D
        ids = []
        if own:
            for i in range(8):
                ids.append(D.issue(f"ds_read_b128 {vr(vQ+4*i,4)}, v{vA+8} offset:{bb*BLK+1024*i}"))
        if partner:
            for i in range(8):
                ids.append(D.issue(f"ds_read_b128 {vr(vOP+4*i,4)}, v{vA+9} offset:{bb*BLK+1024*i}"))
        return ids

    def store_partial(self, pol, tmp=vWF, srd=sP, wait=True):
        A = self.A
        A(f"""
        s_nop 7
        s_nop 7
        s_lshl_b32 {sT}, {sI}, 14
        """)
        for nb in range(8):
            for half in range(2):
                k = 2 * nb + half
                d = tmp + 4 * (k & 7)
                for i in range(4):
                    r = vACC + 16 * nb + 8 * half + 2 * i
                    A(f"v_cvt_pk_bf16_f32 v{d+i}, v{r}, v{r+1}")
                if k in (4, 8, 12):
                    A(f"s_add_u32 {sT}, {sT}, 4096")
                off = f" offset:{(k&3)*1024}" if k & 3 else ""
                A(f"buffer_store_dwordx4 {vr(d,4)}, v{vL16}, {srd}, {sT} offen{off}{pol}")
        if wait and (not OPT["fuse"] or OPT["ts"]):
            A("s_waitcnt vmcnt(0)")

    def loop_end(self, lab, end):
        self.A(f"""
        s_add_u32 {sN}, {sN}, 1
        s_cmp_lt_u32 {sN}, {end}
        s_cbranch_scc1 {lab}
        """)


def schedule_w(order, rd, rel, earliest, reserved, can_issue, cap, pref={}):
    res = {b: list(reserved.get(b, [])) for b in range(10)}
    blk, iss = {}, {}
    cnt = {}
    cur = -2
    for st in order:
        s = max(cur, earliest[st])
        while True:
            assert s < rd[st], (st, s, rd[st])
            ok = None
            if can_issue(s, st) and cnt.get(s, 0) < cap(s):
                best = None
                for b in ([pref[st]] if st in pref else range(9, -1, -1)):
                    if all(rel[st] < a or s > e for a, e in res[b]):
                        nx = min([a for a, e in res[b] if a > rel[st]] + [1000])
                        if best is None or nx < best:
                            ok, best = b, nx
            if ok is not None:
                break
            s += 1
        res[ok].append((s, rel[st]))
        blk[st], iss[st] = ok, s
        cnt[s] = cnt.get(s, 0) + 1
        cur = s
    return blk, iss


def setup(A):
    if OPT["ts"]:
        A("s_memrealtime s[100:101]")
    A(f"""
    s_cmp_ge_u32 s2, 256
    s_cbranch_scc1 L_exit
    s_load_dwordx8 s[60:67], s[0:1], 0
    s_load_dwordx2 s[68:69], s[0:1], 32
    s_load_dwordx8 s[72:79], s[0:1], 40
    s_load_dwordx2 s[80:81], s[0:1], 72
    s_load_dwordx2 s[82:83], s[0:1], 96
    v_lshrrev_b32 v1, 6, v0
    s_and_b32 s4, s2, 7
    v_readfirstlane_b32 {sW_ID}, v1
    s_bfe_u32 s5, s2, 0x10003
    s_lshr_b32 s6, s2, 4
    v_and_b32 v1, 63, v0
    v_lshlrev_b32 v{vL16}, 4, v1
    s_and_b32 {sI}, {sW_ID}, 3
    s_bfe_u32 {sHH}, {sW_ID}, 0x10001
    s_and_b32 {sQH}, {sW_ID}, 1
    s_lshl_b32 {sI4k}, {sI}, 12
    s_lshl_b32 {sI8k}, {sI}, 13
    s_lshl_b32 {sI64k}, {sI}, 16
    s_lshl_b32 {sKhd}, {sHH}, 17
    s_add_u32 {sKhd1}, {sKhd}, 0x40000
    s_mul_i32 {sKrot}, s4, {OPT["rotg"]}
    s_mul_i32 {sT}, s6, {OPT["rotb"]}
    s_add_u32 {sKrot}, {sKrot}, {sT}
    s_and_b32 {sKrot}, {sKrot}, 15
    s_xor_b32 {sT}, {sQH}, 1
    s_add_u32 {sKrot}, {sKrot}, {sT}
    s_lshl_b32 {sKrot}, {sKrot}, 13
    s_mov_b32 {sRot}, s6
    s_mul_i32 {sKVl}, {sHH}, {3*BLK}
    s_lshl_b32 {sT}, {sQH}, 13
    s_add_u32 {sKVl}, {sKVl}, {sT}
    s_lshl_b32 {sRotI}, s6, 18
    s_add_u32 {sRotI}, {sRotI}, {sI64k}
    s_mov_b32 {sC}, {f32bits(math.log2(math.e) / math.sqrt(128.0)):#x}
    s_mov_b32 {sT8}, 0x41000000
    s_waitcnt lgkmcnt(0)
    s_cmp_eq_u32 s5, 0
    s_cselect_b32 s60, s60, s72
    s_cselect_b32 s61, s61, s73
    s_cselect_b32 s62, s62, s74
    s_cselect_b32 s63, s63, s75
    s_cselect_b32 s64, s64, s76
    s_cselect_b32 s65, s65, s77
    s_cselect_b32 s66, s66, s78
    s_cselect_b32 s67, s67, s79
    s_cselect_b32 s68, s68, s80
    s_cselect_b32 s69, s69, s81
    s_cselect_b32 s7, 17, 19
    s_lshl_b32 s10, 1, s7
    s_lshl_b32 {sT}, s6, 16
    s_add_u32 s20, s60, {sT}
    s_addc_u32 s21, s61, 0
    s_and_b32 s21, s21, 0xffff
    s_mov_b32 s22, 0x10000
    s_mov_b32 s23, 0x20000
    s_lshl_b32 {sT}, s4, 10
    s_add_u32 s12, s66, {sT}
    s_addc_u32 s13, s67, 0
    s_and_b32 s13, s13, 0xffff
    s_sub_u32 s14, 0x400000, {sT}
    s_mov_b32 s15, 0x20000
    s_lshl_b32 {sT}, s6, 3
    s_add_u32 {sT}, {sT}, s4
    s_lshl_b32 {sT}, {sT}, s7
    s_bitcmp1_b32 {sW_ID}, 0
    s_cselect_b32 s8, s64, s62
    s_cselect_b32 s9, s65, s63
    s_add_u32 s8, s8, {sT}
    s_addc_u32 s9, s9, 0
    s_and_b32 s9, s9, 0xffff
    s_mov_b32 s11, 0x20000
    s_lshl_b32 {sT}, s4, 19
    s_add_u32 s24, s68, {sT}
    s_addc_u32 s25, s69, 0
    s_and_b32 s25, s25, 0xffff
    s_mov_b32 s26, 0x80000
    s_mov_b32 s27, 0x20000
    s_lshl_b32 {sT}, s5, 4
    s_add_u32 {sT}, {sT}, s6
    s_lshl_b32 {sT}, {sT}, 3
    s_add_u32 {sT}, {sT}, s4
    s_lshl_b32 {sT}, {sT}, 16
    s_add_u32 s28, s82, {sT}
    s_addc_u32 s29, s83, 0
    s_and_b32 s29, s29, 0xffff
    s_mov_b32 s30, 0x10000
    s_mov_b32 s31, 0x20000
    """)
    if OPT["ts"]:
        A(f"""
        s_lshl_b32 {sT}, s2, 3
        s_add_u32 {sT}, {sT}, {sW_ID}
        s_lshl_b32 {sT}, {sT}, 6
        s_add_u32 {sT}, {sT}, 0x8000000
        s_add_u32 s54, s82, {sT}
        s_addc_u32 s55, s83, 0
        """)
        for i in range(16):
            A(f"s_mov_b32 s{84+i}, 0")
        A("s_mov_b32 s66, 0\nv_mov_b32 v30, 0\nv_mov_b32 v31, 0")
        if OPT.get("trace"):
            A("v_writelane_b32 v31, s100, 63")


def patterns(A):
    A(f"""
    v_lshrrev_b32 v2, 5, v1
    v_and_b32 v3, 31, v1
    """)
    for p in range(4):
        A(f"""
        v_add_u32 v29, {(2*p)&3}, v2
        v_lshlrev_b32 v29, 2, v29
        v_xor_b32 v29, v29, v3
        v_lshlrev_b32 v29, 4, v29
        v_lshl_add_u32 v29, v2, 13, v29
        v_add_u32 v{vWo+p}, {2*p*8192 - p*1024}, v29
        """)


def patterns2(A):
    A(f"""
    v_lshrrev_b32 v2, 4, v1
    v_and_b32 v3, 15, v1
    v_lshlrev_b32 v19, 2, v2
    s_bitcmp1_b32 {sW_ID}, 0
    s_cselect_b64 vcc, -1, 0
    """)
    for p in range(4):
        A(f"""
        v_add_u32 v29, {4*p}, v2
        v_cndmask_b32 v29, v29, v19, vcc
        v_xor_b32 v29, v29, v3
        v_lshlrev_b32 v29, 4, v29
        v_lshl_add_u32 v{vKVo+p}, v2, 8, v29
        """)
    A(f"""
    v_and_b32 v2, 31, v1
    v_lshrrev_b32 v3, 5, v1
    v_and_b32 v19, 15, v1
    v_xor_b32 v19, v19, v3
    v_lshlrev_b32 v19, 4, v19
    v_lshl_add_u32 v{vPK}, v2, 8, v19
    v_lshl_add_u32 v19, v2, 9, v19
    s_lshl_b32 {sT}, {sQH}, 14
    v_add_u32 v{vPX}, {sT}, v19
    """)
    A(f"""
    v_bfe_u32 v32, v1, 4, 1
    v_bfe_u32 v33, v1, 2, 2
    v_and_b32 v34, 1, v1
    v_bfe_u32 v35, v1, 1, 1
    v_lshlrev_b32 v36, 1, v34
    v_or_b32 v36, v36, v35
    v_lshl_add_u32 v36, v32, 2, v36
    v_lshlrev_b32 v36, 3, v36
    v_lshl_add_u32 v36, v33, 6, v36
    v_lshlrev_b32 v37, 2, v3
    v_add_u32 v37, v37, v33
    v_lshl_add_u32 v{vPV}, v37, 8, v36
    v_lshlrev_b32 v37, 3, v3
    v_add_u32 v37, v37, v33
    v_lshl_add_u32 v38, v37, 9, v36
    s_lshl_b32 {sT}, {sHH}, 8
    v_add_u32 v{vPW}, {sT}, v38
    v_lshlrev_b32 v36, 2, v34
    v_lshl_add_u32 v36, v32, 1, v36
    v_add_u32 v36, v36, v35
    v_lshlrev_b32 v36, 3, v36
    v_lshl_add_u32 v36, v33, 6, v36
    v_lshl_add_u32 v38, v37, 10, v36
    s_lshl_b32 {sT}, {sHH}, 9
    v_add_u32 v{vPO}, {sT}, v38
    """)


def pre_x(S, issue_pre, preread, fine=False, shared=False, G0=False):
    A = S.A
    stamp(A, 0)
    if fine: stamp(A, 10, True)
    if shared:
        S.rec(4, -1)
    else:
        S.dma_x(0)
        patterns(A)
    issue_pre(-2)
    if int(OPT["tlb"]) == 1 and G0:
        A(f"""
        s_load_dwordx2 s[58:59], s[0:1], 80
        v_mov_b32 v2, 0
        s_mov_b64 exec, 1
        s_sub_u32 {sT}, s10, 4
        buffer_load_dword v12, v2, {sKV}, 0 offen
        buffer_load_dword v12, v2, {sKV}, {sT} offen
        s_lshl_b32 {sT}, {sI}, 17
        buffer_load_dword v12, v2, {sWO}, {sT} offen
        buffer_load_dword v12, v2, {sP}, 0 offen sc1
        s_lshl_b32 {sT}, s6, 17
        v_mov_b32 v3, {sT}
        s_waitcnt lgkmcnt(0)
        global_load_dword v12, v3, s[58:59]
        s_mov_b64 exec, -1
        """)
        S.rec(5, 1000)
    if int(OPT["tlb"]) >= 2 and G0:
        sh = int(OPT["tlb"])
        A(f"""
        s_load_dwordx2 s[58:59], s[0:1], 80
        v_lshlrev_b32 v2, {sh}, v1
        s_mov_b64 exec, {(1 << min(63, (1 << 19) >> sh)) - 1}
        buffer_load_dword v12, v2, {sKV}, 0 offen
        buffer_load_dword v12, v2, {sWO}, 0 offen
        s_lshl_b32 {sT}, s5, 4
        s_add_u32 {sT}, {sT}, s6
        s_lshl_b32 {sT}, {sT}, 19
        v_add_u32 v3, {sT}, v2
        global_load_dword v12, v3, s[82:83]
        s_lshl_b32 {sT}, {sI}, 20
        buffer_load_dword v12, v2, {sWQ}, {sT} offen
        s_add_u32 {sT}, {sT}, 0x80000
        buffer_load_dword v12, v2, {sWQ}, {sT} offen
        s_mov_b64 exec, {(1 << max(1, (1 << 17) >> sh)) - 1}
        s_lshl_b32 {sT}, s6, 17
        v_add_u32 v3, {sT}, v2
        s_waitcnt lgkmcnt(0)
        global_load_dword v12, v3, s[58:59]
        s_mov_b64 exec, 1
        v_mov_b32 v3, 0
        global_load_dword v12, v3, s[70:71] sc1
        s_mov_b64 exec, -1
        """)
        S.rec(7, 1000)
    patterns2(A)
    if fine: stamp(A, 11, True)
    S.endslot(-2, barrier=False)
    if fine: stamp(A, 15, True)
    A("s_barrier")
    stamp(A, 7)
    S.read_x(0)
    issue_pre(-1)
    S.dma_x(1)
    if preread is not None:
        S.wslice("q", 0, None, preread, False)
    S.endslot(-1)
    stamp(A, 1)


def attn_loop(S, first_buf, n0, body_pre=None, tail=None, st=None, shifted=False, carry=False):
    A = S.A
    A(f"s_mov_b32 {sN}, 0")
    l = A.lab("L_attn")
    if int(OPT["lal"]):
        A.L.append(f".p2align {OPT['lal']}")
    A(f"{l}:")
    for k in range(3):
        if st and k == 0:
            cstamp(A, 8, 2); cstamp(A, 13, 0); cstamp(A, 14, 4)
        if st and k == 1:
            cstamp(A, 12, 2)
        S.attn_step2((first_buf + k) % 3, extra=body_pre(k) if body_pre else {}, carry=carry)
        if st and k == 0:
            cstamp(A, 9, 2)
        tail(k)
        S.D.done = S.D.n
    S.drained()
    S.loop_end(l, 5)


def prog_b():
    w1, w2 = int(OPT["w1"]), int(OPT["w2"])
    per = int(OPT["wper"])
    look = int(OPT["look"])
    uq, uo = OPT["uq"], int(OPT["uo"])
    use, rd, rel, early = {}, {}, {}, {}
    for st in range(64):
        k = st & 15
        if st < 16:
            use[st] = st
        elif st < 32:
            use[st] = k if uq else w1 + (k * int(OPT['n1'])) // 16
        elif st < 48 - uo:
            use[st] = w2 + (k * int(OPT['n2'])) // 16
        else:
            use[st] = 49 + st - (48 - uo)
    lw = OPT["latew"] and uo == 16
    la, lb_ = int(OPT["la"]), int(OPT["lb"])
    if lw:
        for st in range(32, 64):
            k = st - 32
            use[st] = 47 if k < la else (48 if k < la + lb_ else 49 + k - la - lb_)
    E0 = use[48]
    NS = use[63] + 1
    for st in range(64):
        k = st & 15
        win = (16 <= st < 32 and not uq) or (32 <= st < 48 - uo)
        rd[st] = use[st] - 1 if (k == 0 or not win) else use[st - 1]
        rel[st] = rd[st] if win else use[st]
        if lw and st >= 32:
            rd[st] = 47 if st == 32 else use[st - 1]
            rel[st] = rd[st] if rd[st] == 47 else use[st]
        early[st] = rd[st] - (2 if win else look)
        if st >= 48 - uo:
            early[st] = max(early[st], int(OPT["estart"]))
    assert use[31] <= 31 and w2 >= 34
    aop = OPT["aop"]
    order = ([x for i in range(16) for x in (i, 16 + i)] if uq else list(range(32))) + list(range(48 if aop else 32, 64))
    kv2 = int(OPT["kv2"])
    kvs = int(OPT["kvstart"])
    reserved = {0: [(-2, -1), (kvs, 46)], 3: [(-2, XH2), (kvs, 46)], 1: [(-2, -1), (kvs + 2, E0)], 4: [(-2, XH2), (kvs + 2, E0)],
                2: [(kv2, 48)], 5: [(kv2, 48)], 8: [(33, 34)], 9: [(33, 34)]}
    blk, iss = schedule_w(order, rd, rel, early, reserved, lambda s, st: True,
                          lambda s: int(OPT["first"]) * (2 if uq else 1) if s < 0 else int(OPT["maxiss"]) + (1 if uq else 0),
                          {} if uq else dict(enumerate([2, 5, 9, 8, 7, 6, 0, 3, 1, 4, 2, 5, 9, 8, 7, 6])))
    by_slot, at_slot = {}, {}
    for st in order:
        by_slot.setdefault(iss[st], []).append(st)
        at_slot.setdefault(use[st], []).append(st)
    if OPT.get("verbose"):
        print("B sched", [(st, iss[st], rd[st], blk[st]) for st in order], file=sys.stderr)
    MB = 8 * BLK
    LB = max(iss[63] + int(OPT['lbd']), E0)
    OPT['lwB'] = min(b for b in range(10) if all(rel[st] <= LB for st in order if blk[st] == b))

    def w_atoms(S, n, G=None):
        at = []
        for st in by_slot.get(n, []):
            if uq and st < 32 and (st >> 4) != G:
                continue
            at += S.dma_w(st, blk[st], min(rd[st], LB + 1))
        return at

    def kv_atoms(S, n):
        beta = n - 15
        if beta < 2 or beta > 31:
            return []
        return S.dma_kv_b(beta, 0, 17 + beta) + S.dma_kv_b(beta, 1, 17 + beta)

    def slices(S, n, lo, hi, kind, at):
        sts = [st for st in at_slot.get(n, []) if lo <= st < hi]
        pre = [st for st in range(lo, hi) if rd[st] == n and not (st > lo and use[st - 1] == n)]
        if not sts and not pre:
            S.emit(at)
            return
        nparts = len(sts) + len(pre)
        chunk = (len(at) + nparts - 1) // nparts
        for st in [p for p in pre if use[p] == n]:
            S.wslice(kind, 0, None, blk[st], False, at[:chunk])
            at = at[chunk:]
        for st in sts:
            nxt = st + 1 if (st + 1 < hi and rd[st + 1] == n and st + 1 not in pre) else None
            S.wslice(kind, st & 15, blk[st], blk[nxt] if nxt is not None else None, st in (0, 16, 48 if aop else 32), at[:chunk])
            at = at[chunk:]
        for st in [p for p in pre if use[p] != n]:
            S.wslice(kind, 0, None, blk[st], False, at[:chunk])
            at = at[chunk:]

    S = G0 = Stream()
    A = S.A
    tail = lambda k: S.A("s_waitcnt vmcnt(0) lgkmcnt(0)\ns_barrier")
    pre_x(S, lambda n: S.emit(w_atoms(S, n, 0)) if uq else None, blk[0], shared=OPT['bsh'], G0=True)
    A(f"s_mul_i32 {sKU}, {sHH}, {3*BLK}")
    for n in range(16):
        at = w_atoms(S, n, 0) if uq else []
        if kvs <= n < kvs + 4:
            k = n - kvs
            at = at + S.dma_kv_b((k >> 1) - 1, k & 1, 16 + (k >> 1))
        if kv2 <= n < kv2 + 2:
            at = at + S.dma_kv_b(1, n - kv2, 18)
        if n == 8: stamp(A, 10, True)
        if n == 12: stamp(A, 11, True)
        if n == XH2:
            xl = S.read_x(1)
        slices(S, n, 0, 16, "q", at)
        if n == XH2:
            S.D.need(xl)
        S.endslot(n, drain=False)
    stamp(A, 2)
    S.qfinal()
    bs = OPT["bshift"]
    S.attn_pro(0, sKU, bs)
    S.endslot(16)
    attn_loop(S, 1, 17, tail=tail, st=True, shifted=bs)
    count_clear(A)
    S.attn_step2(1, last=True)
    S.endslot(32)
    stamp(A, 3)
    for n in range(33, NS):
        at = []
        must = None
        if n <= 48:
            at = w_atoms(S, n) + kv_atoms(S, n)
        if n == 33:
            S.onorm(at)
            at = []
            A(f"""
            s_add_u32 {sT}, {sI8k}, {MB}
            v_add_u32 v{vA+8}, {sT}, v{vL16}
            v_xor_b32 v{vA+9}, 0x4000, v{vA+8}
            """)
            for i in range(8):
                S.D.issue(f"ds_write_b128 v{vA+8}, {vr(vQ+4*i,4)} offset:{1024*i}")
        if n == 34:
            for i in range(8):
                S.D.issue(f"ds_read_b128 {vr(vOP+4*i,4)}, v{vA+9} offset:{1024*i}")
        if n == 41: stamp(A, 15, True)
        if n == 49:
            stamp(A, 4)
        if n == E0:
            ids = S.read_o(1, True, True)
            S.D.need(ids[0])
            must = ids[-1]
        slices(S, n, 48 if aop else 32, 64, "o", at)
        if must is not None:
            S.D.need(must)
        if n <= LB:
            S.endslot(n, drain=(n < 48))
    stamp(A, 5)
    S.store_partial(OPT['st'])
    stamp(A, 6)
    finish(A)
    S = G1 = Stream()
    A = S.A
    if OPT['prio']:
        A(f"s_setprio {OPT['prio']}")
    pre_x(S, lambda n: S.emit(w_atoms(S, n, 1)), blk[16] if uq else None, shared=OPT['bsh'])
    for n in range(32):
        if n == 16: stamp(A, 2)
        if n == 20: stamp(A, 8, True)
        if n == 21: stamp(A, 9, True)
        if n == 25: stamp(A, 10, True)
        if n == 28: stamp(A, 11, True)
        if n == 29: stamp(A, 12, True)
        at = w_atoms(S, n, 1) + kv_atoms(S, n)
        if n == XH2:
            S.D.need(S.read_x(1))
        slices(S, n, 16, 32, "q", at)
        if n == use[31] + 1:
            S.qfinal()
        S.endslot(n, drain=not (uq and n < 16))
    S.emit(w_atoms(S, 32) + kv_atoms(S, 32))
    if OPT['prio']:
        A('s_setprio 0')
    if use[31] == 31:
        S.qfinal()
    A(f"s_mul_i32 {sKU}, {sHH}, {3*BLK}")
    S.attn_pro(1, sKU, bs)
    S.endslot(32)
    stamp(A, 3)
    attn_loop(S, 2, 33, tail=tail, shifted=bs)
    (S.attn_step2 if bs else S.attn_step)(2, last=True)
    S.onorm()
    S.write_o(1)
    S.endslot(48)
    stamp(A, 4)
    if OPT['prio']:
        A(f"s_setprio {OPT['prio']}")
    for n in range(49, LB + 1):
        S.emit(w_atoms(S, n))
        S.endslot(n)
    stamp(A, 5)
    finish(A)
    return G0, G1


def prog_a():
    aop = OPT["aop"]
    NST = 80 if aop else 64
    use = {st: (st & 15 if st < 32 else st + 1) for st in range(NST)}
    rd = {st: use[st] - 1 for st in range(NST)}
    order = [x for i in range(16) for x in (i, 16 + i)] + list(range(32, NST))
    ks = int(OPT['akvstart'])
    g0s, g1s = int(OPT['ag0']), int(OPT['ag1'])
    AD = int(OPT['ad'])
    pre_slots = [g0s, g0s, g0s, g1s, g1s, g1s]
    seq = [(9, 8), (7, 6), (2, 5), (0, 1)] + [(9, 8), (7, 6), (2, 5), (3, 4), (0, 1)] * 3
    pref = {16 * g + i: seq[i][g] for i in range(16) for g in range(2)}
    reserved = {b: [(pre_slots[b], 30 if b < 3 else 32)] for b in range(6)}
    for b in (0, 1, 3, 4):
        reserved[b].append((-2, -1 if b < 3 else XH2))
    reserved[0].append((33, 34)); reserved[3].append((33, 34)); reserved[1].append((33, 49)); reserved[4].append((33, 49))
    early = {st: -2 if st < 32 else 29 for st in range(NST)}
    blk, iss = schedule_w(order, rd, use, early, reserved, lambda s, st: not (15 < s < 29 or s in (30, 31)),
                          lambda s: int(OPT['afirst']) if s == -2 else 4, pref)
    if OPT.get("verbose"):
        print("A sched", [(st, iss[st], blk[st]) for st in order], file=sys.stderr)
    by_slot = {}
    for st in order:
        by_slot.setdefault(iss[st], []).append(st)
    LB = iss[NST - 1] + int(OPT["lbd"])
    OPT['lwA'] = min(b for b in range(10) if all(use[st] <= LB for st in order if blk[st] == b))

    res = []
    for G in range(2):
        S = Stream()
        A = S.A

        def w_atoms(n):
            at = []
            for st in by_slot.get(n, []):
                owner = (st >> 4) if st < 32 else 1
                if owner == G:
                    at += S.dma_w(st, blk[st], min(rd[st], LB + 1))
            return at

        m1n, m1t = int(OPT["m1n"]), int(OPT["m1t"])
        if m1n:
            A(f"""
            s_lshl_b32 {sT}, s6, 3
            s_add_u32 {sT}, {sT}, s4
            s_lshl_b32 {sT}, {sT}, 19
            s_bitcmp1_b32 {sW_ID}, 0
            s_cselect_b32 s60, s76, s74
            s_cselect_b32 s61, s77, s75
            s_add_u32 s60, s60, {sT}
            s_addc_u32 s61, s61, 0
            s_and_b32 s61, s61, 0xffff
            s_mov_b32 s62, 0x80000
            s_mov_b32 s63, 0x20000
            v_lshlrev_b32 v29, 3, v{vL16}
            """)
            for t in range(m1t + G, m1t + m1n, 2):
                A(f"""
                s_add_u32 {sT}, {sKrot}, {(t & 15) * 8192}
                s_and_b32 {sT}, {sT}, 0x1ffff
                s_add_u32 {sT}, {sT}, {sKhd1 if t >= 16 else sKhd}
                buffer_load_dword v12, v29, {sPF}, {sT} offen{OPT["m1pol"]}
                """)
        pre_x(S, lambda n: S.emit(w_atoms(n)), blk[16 * G], True, G0=(G == 0))
        A(f"""
        s_lshl_b32 {sKoff}, {sHH}, 12
        s_lshl_b32 {sKI}, {sQH}, 13
        s_add_u32 {sKI}, {sKI}, {sKoff}
        s_add_u32 {sKIend}, {sKI}, {6*BLK}
        s_add_u32 {sKoff}, {sKoff}, {sKrot}
        s_add_u32 {sKoff}, {sKoff}, {15*8192}
        """)
        for n in range(17):
            if n == XH2:
                xl = S.read_x(1)
            if n < 16:
                S.wslice("q", n, blk[16 * G + n], blk[16 * G + n + 1] if n < 15 else None, n == 0, w_atoms(n))
            if n == XH2:
                S.D.need(xl)
            if G == 0:
                for j in range(AD + 1 if AD else 6):
                    if pre_slots[j] == n:
                        S.dma_kv_a((16 + j) if AD else (16 if j < 3 else 19), first=(j == 0))
            if n < 16:
                S.endslot(n, drain=False)
        stamp(A, 2)
        if G == 1:
            A(f"""
            s_lshl_b32 {sT}, s4, 19
            s_add_u32 s16, s80, {sT}
            s_addc_u32 s17, s81, 0
            s_and_b32 s17, s17, 0xffff
            s_mov_b32 s18, 0x80000
            s_mov_b32 s19, 0x20000
            s_lshl_b32 s65, {sRot}, 15
            s_add_u32 s65, s65, {sI8k}
            v_lshlrev_b32 v{vTch}, 3, v{vL16}
            s_lshl_b32 {sT}, s6, 3
            s_add_u32 {sT}, {sT}, s4
            s_lshl_b32 {sT}, {sT}, 19
            s_bitcmp1_b32 {sW_ID}, 0
            s_cselect_b32 s60, s76, s74
            s_cselect_b32 s61, s77, s75
            s_add_u32 s60, s60, {sT}
            s_addc_u32 s61, s61, 0
            s_and_b32 s61, s61, 0xffff
            s_mov_b32 s62, 0x80000
            s_mov_b32 s63, 0x20000
            s_lshl_b32 {sPFoff}, {sHH}, 17
            """)
        S.qfinal()
        S.attn_pro(0, 0, True)
        if AD:
            S.endslot(16)
        else:
            A("s_waitcnt lgkmcnt(0)")
        lim = lambda k: (15 - AD - k) // 3 + 1

        def guarded(cond, f):
            def g():
                sk = A.lab("L_sk")
                A(cond + f"\ns_cbranch_scc0 {sk}")
                f()
                A(f"{sk}:")
            return g

        def body_pre(k):
            e = {}
            if G == 0:
                two = lambda p: (lambda: (S.dma_kv_a_part(p), S.dma_kv_a_part(p + 1)))
                if k == 2:
                    c, c3 = f"s_cmp_lt_u32 {sN}, 4", f"s_cmp_lt_u32 {sN}, 3"
                    e = {-1: guarded(c, lambda: (two(0)(), two(2)())), 0: guarded(c, two(0)), 1: guarded(c, two(2)),
                         2: guarded(c3, two(0)), 3: guarded(c3, two(2))}
                if AD:
                    four = lambda: (two(0)(), two(2)())
                    e = {-1: guarded(f"s_cmp_lt_u32 {sN}, {lim(k)}", four) if lim(k) < 5 else four}
                elif OPT["aspread"]:
                    if k == 2:
                        e = {-1: guarded(c, two(0)), 1: guarded(c, two(2)), 4: guarded(c, two(0)), 7: guarded(c, two(2))}
                    if k == 0:
                        c = f"s_sub_u32 {sT}, {sN}, 1\ns_cmp_lt_u32 {sT}, 3"
                        e = {-1: guarded(c, two(0)), 1: guarded(c, two(2))}
            else:
                if OPT["wopf"] and OPT["wosplit"]:
                    it = int(OPT['wopfit'])

                    def tch(srd, hi):
                        return lambda: A(f"s_mov_b32 exec_{'lo' if hi else 'hi'}, 0\n"
                                         f"buffer_load_dword v12, v{vTch}, {srd}, s65 offen\ns_mov_b64 exec, -1")
                    if k < 2:
                        e[5] = guarded(f"s_cmp_eq_u32 {sN}, {it}", tch('s[16:19]', k))
                        e[6] = guarded(f"s_cmp_eq_u32 {sN}, {it + 1}", tch(sWO, k))
                elif OPT["wopf"] and k != 1:
                    e[5] = guarded(f"s_cmp_eq_u32 {sN}, {OPT['wopfit']}",
                                   lambda: A(f"buffer_load_dword v12, v{vTch}, {sWO if k else 's[16:19]'}, s65 offen"))
                if k == 0:
                    e[1] = guarded(f"s_cmp_eq_u32 {sN}, 4", lambda: S.emit(w_atoms(29)))
            return e

        def tail(k):
            if int(OPT["asleep"]):
                A(f"s_sleep {OPT['asleep']}")
            if k == 1:
                for r in range(12):
                    A(f"v_xor_b32 v{vAK+r}, 0xc000, v{vAK+r}")
            if AD:
                if G == 1:
                    if k == 1:
                        guarded(f"s_cmp_eq_u32 {sN}, 4", lambda: A("s_waitcnt vmcnt(0)"))()
                else:
                    if lim(k) < 5 and AD > 1:
                        guarded(f"s_cmp_ge_u32 {sN}, {lim(k)}", lambda: A("s_waitcnt vmcnt(0)"))()
                    A(f"s_waitcnt vmcnt({4 * (AD - 1)})")
                A("s_barrier")
            elif k == 1:
                if G == 1:
                    guarded(f"s_cmp_eq_u32 {sN}, 4", lambda: A("s_waitcnt vmcnt(0)"))()
                    A("s_waitcnt lgkmcnt(0)\ns_barrier")
                else:
                    A("s_waitcnt vmcnt(0) lgkmcnt(0)\ns_barrier")
            elif OPT["abar"]:
                A("s_barrier")
        attn_loop(S, 1, 17, body_pre, tail, st=True, shifted=True, carry=True)
        S.emit(w_atoms(32))
        S.attn_step2(1, last=True, carry=True)
        S.onorm()
        if G == 0:
            S.wslice("o", 0, None, blk[32], False)
        S.endslot(32, drain=(G == 1))
        stamp(A, 3)
        if G == 0:
            count_clear(A)
        must = S.write_o(G)
        if G == 0:
            for n in range(33, NST + 1):
                st = n - 1
                if n == 34:
                    must = S.read_o(0, False, True)[-1]
                if n == 49:
                    stamp(A, 4)
                    ids = S.read_o(1, True, True)
                    S.D.need(ids[0])
                    must = ids[-1]
                if n == 60 and aop:
                    A(f"""
                    s_waitcnt lgkmcnt(0)
                    s_load_dwordx2 s[70:71], s[0:1], 88
                    s_lshl_b32 {sT}, s6, 2
                    s_add_u32 {sT}, {sT}, 128
                    v_mov_b32 v{vA+8}, {sT}
                    s_lshl_b32 {sT}, s6, 3
                    s_add_u32 {sT}, {sT}, s4
                    s_lshl_b32 {sT2}, {sT}, 16
                    s_add_u32 {sT2}, {sT2}, {XP_OFF}
                    s_add_u32 s60, s82, {sT2}
                    s_addc_u32 s61, s83, 0
                    s_and_b32 s61, s61, 0xffff
                    s_mov_b32 s62, 0x10000
                    s_mov_b32 s63, 0x20000
                    s_lshl_b32 {sT}, {sT}, 15
                    s_add_u32 {sT}, {sT}, {HO_OFF}
                    s_add_u32 {sT}, {sT}, {sI8k}
                    v_add_u32 v{vA+4}, {sT}, v{vL16}
                    v_add_u32 v{vA+5}, 0x1000, v{vA+4}
                    v_xor_b32 v{vA+6}, 0x4000, v{vA+4}
                    v_xor_b32 v{vA+7}, 0x4000, v{vA+5}
                    s_mov_b32 s76, 0
                    s_waitcnt lgkmcnt(0)
                    L_a_poll:
                    global_load_dword v{vA+9}, v{vA+8}, s[70:71] sc1
                    s_add_u32 s76, s76, 1
                    s_waitcnt vmcnt(0)
                    v_readfirstlane_b32 s77, v{vA+9}
                    s_cmp_gt_u32 s76, 0x40000
                    s_cbranch_scc1 L_a_go
                    s_lshr_b32 s77, s77, s4
                    s_bitcmp1_b32 s77, 0
                    s_cbranch_scc1 L_a_go
                    s_sleep 8
                    s_branch L_a_poll
                    L_a_go:
                    """)
                    S.D.done = S.D.n
                    for i in range(8):
                        A(f"global_load_dwordx4 {vr(vQ+4*i,4)}, v{vA+4+(i>>2)}, s[82:83] offset:{(i&3)*1024} sc1")
                if n == 65:
                    stamp(A, 5)
                    S.store_partial(OPT['sta'], tmp=vOP, wait=False)
                    A("s_nop 1")
                    for i in range(8):
                        A(f"global_load_dwordx4 {vr(vOP+4*i,4)}, v{vA+6+(i>>2)}, s[82:83] offset:{(i&3)*1024} sc1")
                    A("s_waitcnt vmcnt(24)")
                if n == 73:
                    A("s_waitcnt vmcnt(0)")
                S.wslice("o", st & 15, blk[st], blk[st + 1] if st < NST - 1 else None, n in (33, 65))
                if must is not None:
                    S.D.need(must)
                    must = None
                if n <= LB:
                    S.endslot(n, drain=False)
            if aop:
                S.store_partial(OPT['sta'], srd="s[60:63]")
            else:
                stamp(A, 5)
                S.store_partial(OPT['sta'])
            stamp(A, 6)
        else:
            for n in range(33, LB + 1):
                S.emit(w_atoms(n))
                S.endslot(n)
            stamp(A, 5)
            for t in range(int(OPT["lt0"]), 32):
                A(f"s_add_u32 {sT}, {sPFoff}, {(t >> 4) * 262144 + (t & 15) * 8192}")
                A(f"buffer_load_dword v12, v{vTch}, {sPF}, {sT} offen")
            stamp(A, 6)
        finish(A)
        res.append(S)
    return res


MBX = 0x2000000


def early_clear(A):
    A(f"""
    s_cmp_eq_u32 {sW_ID}, 1
    s_cbranch_scc0 L_noclr
    s_lshl_b32 {sT}, s2, 8
    s_add_u32 {sT}, {sT}, {MBX}
    v_lshlrev_b32 v2, 2, v1
    v_add_u32 v2, {sT}, v2
    v_mov_b32 v3, 0
    s_mov_b64 exec, 0xff
    global_store_dword v2, v3, s[82:83] sc1
    s_mov_b64 exec, -1
    L_noclr:
    s_load_dwordx2 s[70:71], s[0:1], 88
    """)


def count_clear(A):
    l = A.lab("L_cc")
    A(f"""
    s_cmp_eq_u32 {sW_ID}, 1
    s_cbranch_scc0 {l}
    s_lshr_b32 {sT}, s2, 3
    s_lshl_b32 {sT}, {sT}, 2
    v_mov_b32 v2, {sT}
    v_mov_b32 v3, 1
    s_mov_b64 exec, 1
    global_atomic_add v2, v3, s[70:71]{' offset:128' if OPT.get('dbg') else ''}
    s_mov_b64 exec, -1
    {l}:
    """)


def final_reduce(A):
    A(f"""
    L_final:
    s_load_dwordx4 s[68:71], s[0:1], 80
    s_lshr_b32 s72, s2, 3
    s_lshl_b32 {sT}, s5, 4
    s_add_u32 {sT}, {sT}, s6
    s_lshl_b32 {sT}, {sT}, 19
    s_add_u32 s16, s82, {sT}
    s_addc_u32 s17, s83, 0
    s_and_b32 s17, s17, 0xffff
    s_mov_b32 s18, 0x80000
    s_mov_b32 s19, 0x20000
    s_lshl_b32 s73, s4, 3
    s_add_u32 s73, s73, {sW_ID}
    s_lshl_b32 s73, s73, 10
    v_and_b32 v2, 31, v1
    v_lshrrev_b32 v3, 5, v1
    v_lshlrev_b32 v2, 11, v2
    v_lshl_add_u32 v2, v3, 5, v2
    s_lshl_b32 s74, s6, 17
    s_lshl_b32 {sT}, s5, 10
    s_add_u32 s74, s74, {sT}
    s_bfe_u32 {sT}, s4, 0x10001
    s_lshl_b32 {sT}, {sT}, 16
    s_add_u32 s74, s74, {sT}
    s_lshr_b32 {sT}, s4, 2
    s_lshl_b32 {sT}, {sT}, 9
    s_add_u32 s74, s74, {sT}
    s_and_b32 {sT}, s4, 1
    s_lshl_b32 {sT}, {sT}, 8
    s_add_u32 s74, s74, {sT}
    s_lshr_b32 {sT}, {sW_ID}, 1
    s_lshl_b32 {sT}, {sT}, 6
    s_add_u32 s74, s74, {sT}
    s_lshl_b32 {sT}, {sQH}, 4
    s_add_u32 s74, s74, {sT}
    s_mov_b32 s75, 0xffff0000
    s_lshl_b32 s76, s72, 11
    s_lshl_b32 {sT}, s4, 2
    s_add_u32 s76, s76, {sT}
    s_add_u32 s76, s76, {MBX}
    v_lshlrev_b32 v7, 8, v1
    v_add_u32 v7, s76, v7
    s_lshl_b32 s76, s2, 8
    s_add_u32 s76, s76, {MBX}
    v_and_b32 v8, 7, v1
    v_lshlrev_b32 v8, 2, v8
    v_add_u32 v8, s76, v8
    s_lshl_b32 s72, s72, 2
    v_mov_b32 v4, s72
    v_mov_b32 v5, 1
    s_mov_b32 s76, 0
    s_waitcnt lgkmcnt(0)
    s_mov_b32 s20, s68
    s_and_b32 s21, s69, 0xffff
    s_mov_b32 s22, 0x200000
    s_mov_b32 s23, 0x20000
    s_cmp_eq_u32 {sW_ID}, 5
    s_cbranch_scc0 L_fin_t1
    L_fin_clr:
    global_load_dword v6, v4, s[70:71]{' offset:128' if OPT.get('dbg') else ''} sc1
    s_add_u32 s76, s76, 1
    s_waitcnt vmcnt(0)
    v_readfirstlane_b32 s77, v6
    s_cmp_gt_u32 s76, 0x40000
    s_cbranch_scc1 L_fin_t1
    s_cmp_ge_u32 s77, 8
    s_cbranch_scc1 L_fin_t1
    s_sleep 16
    s_branch L_fin_clr
    L_fin_t1:
    s_cmp_eq_u32 s5, 0
    s_cselect_b32 {sT}, {OPT["lwA"]}, {OPT["lwB"]}
    s_lshl_b32 {sT}, {sT}, 14
    v_mov_b32 v9, {sT}
    v_mov_b32 v6, 0
    s_cmp_eq_u32 {sW_ID}, 7
    s_cbranch_scc0 L_fin_nz
    ds_write_b32 v9, v6
    L_fin_nz:
    s_waitcnt vmcnt(0) lgkmcnt(0)
    s_barrier
    s_cmp_eq_u32 {sW_ID}, 0
    s_cbranch_scc0 L_fin_nosig
    s_mov_b64 exec, 0xff
    global_store_dword v7, v5, s[82:83] sc1
    s_mov_b64 exec, -1
    L_fin_nosig:
    s_mov_b32 s76, 0
    s_mov_b32 s78, 0
    L_fin_poll:
    s_cmp_eq_u32 {sW_ID}, 7
    s_cbranch_scc1 L_fin_pg
    s_sleep 1
    ds_read_b32 v6, v9
    s_waitcnt lgkmcnt(0)
    v_readfirstlane_b32 s77, v6
    s_branch L_fin_pj
    L_fin_pg:
    global_load_dword v6, v8, s[82:83] sc1
    s_add_u32 s76, s76, 1
    s_waitcnt vmcnt(0)
    v_cmp_eq_u32 vcc, 1, v6
    s_cmp_gt_u32 s76, 0x40000
    s_cselect_b32 s77, 0xff, 0
    s_or_b32 s77, s77, vcc_lo
    s_and_b32 s77, s77, 0xff
    v_mov_b32 v6, s77
    ds_write_b32 v9, v6
    L_fin_pj:
    s_andn2_b32 s79, s77, s78
    s_or_b32 s78, s78, s77
    """)
    for j in range(8):
        A(f"""
        s_bitcmp1_b32 s79, {j}
        s_cbranch_scc0 L_fin_s{j}
        s_add_u32 {sT}, s73, {j*0x10000}
        buffer_load_dwordx4 {vr(80+4*j,4)}, v{vL16}, s[16:19], {sT} offen sc1
        L_fin_s{j}:
        """)
    A("""
    s_cmp_eq_u32 s78, 0xff
    s_cbranch_scc0 L_fin_poll
    s_waitcnt vmcnt(0)
    """)
    for j in range(8):
        for i in range(4):
            r = 80 + 4 * j + i
            if j == 0:
                A(f"v_lshlrev_b32 v{64+2*i}, 16, v{r}")
                A(f"v_and_b32 v{65+2*i}, s75, v{r}")
            else:
                A(f"v_lshlrev_b32 v72, 16, v{r}")
                A(f"v_and_b32 v73, s75, v{r}")
                A(f"v_add_f32 v{64+2*i}, v{64+2*i}, v72")
                A(f"v_add_f32 v{65+2*i}, v{65+2*i}, v73")
    for i in range(4):
        A(f"v_cvt_pk_bf16_f32 v{76+i}, v{64+2*i}, v{65+2*i}")
    A("buffer_store_dwordx4 v[76:79], v2, s[20:23], s74 offen")
    if OPT["ts"]:
        A("s_waitcnt vmcnt(0)")
        stamp(A, 1)
    stamps_out(A)
    A("s_endpgm")


def finish(A):
    if OPT["fuse"]:
        A("s_branch L_final")
    else:
        stamps_out(A)
        A("s_endpgm")


def reduce_kernel(A):
    A(f"""
    s_cmp_ge_u32 s2, 512
    s_cbranch_scc1 L_exit2
    {"s_memrealtime s[24:25]" if OPT["ts"] else ""}
    s_load_dwordx2 s[4:5], s[0:1], 96
    s_load_dwordx2 s[6:7], s[0:1], 80
    v_lshlrev_b32 v1, 4, v0
    s_lshr_b32 s16, s2, 4
    s_lshl_b32 s17, s16, 19
    s_and_b32 s18, s2, 15
    s_lshl_b32 s18, s18, 12
    s_add_u32 s17, s17, s18
    s_waitcnt lgkmcnt(0)
    s_mov_b32 s8, s4
    s_and_b32 s9, s5, 0xffff
    s_mov_b32 s10, 0x1000000
    s_mov_b32 s11, 0x20000
    s_mov_b32 s12, s6
    s_and_b32 s13, s7, 0xffff
    s_mov_b32 s14, 0x200000
    s_mov_b32 s15, 0x20000
    """)
    for j in range(8):
        A(f"buffer_load_dwordx4 {vr(8+4*j,4)}, v1, s[8:11], s17 offen")
        if j < 7:
            A("s_add_u32 s17, s17, 0x10000")
    A(f"""
    v_and_b32 v2, 31, v0
    v_bfe_u32 v3, v0, 5, 1
    v_bfe_u32 v4, v0, 6, 1
    v_bfe_u32 v5, v0, 7, 1
    v_lshlrev_b32 v2, 11, v2
    v_lshl_add_u32 v2, v3, 5, v2
    v_lshl_add_u32 v2, v4, 4, v2
    v_lshl_add_u32 v2, v5, 6, v2
    s_and_b32 s18, s16, 15
    s_lshl_b32 s18, s18, 17
    s_lshr_b32 s19, s16, 4
    s_lshl_b32 s19, s19, 10
    s_add_u32 s18, s18, s19
    s_bfe_u32 s19, s2, 0x10002
    s_lshl_b32 s19, s19, 16
    s_add_u32 s18, s18, s19
    s_bfe_u32 s19, s2, 0x10003
    s_lshl_b32 s19, s19, 9
    s_add_u32 s18, s18, s19
    s_and_b32 s19, s2, 3
    s_lshl_b32 s19, s19, 7
    s_add_u32 s18, s18, s19
    s_mov_b32 s20, 0xffff0000
    s_waitcnt vmcnt(7)
    """)
    for i in range(4):
        A(f"v_lshlrev_b32 v{40+2*i}, 16, v{8+i}")
        A(f"v_and_b32 v{41+2*i}, s20, v{8+i}")
    for j in range(1, 8):
        A(f"s_waitcnt vmcnt({7-j})")
        for i in range(4):
            A(f"v_lshlrev_b32 v48, 16, v{8+4*j+i}")
            A(f"v_and_b32 v49, s20, v{8+4*j+i}")
            A(f"v_add_f32 v{40+2*i}, v{40+2*i}, v48")
            A(f"v_add_f32 v{41+2*i}, v{41+2*i}, v49")
    for i in range(4):
        A(f"v_cvt_pk_bf16_f32 v{52+i}, v{40+2*i}, v{41+2*i}")
    A("buffer_store_dwordx4 v[52:55], v2, s[12:15], s18 offen")
    if OPT["ts"]:
        A("""
        s_waitcnt vmcnt(0)
        s_memrealtime s[26:27]
        s_lshl_b32 s18, s2, 3
        s_add_u32 s18, s18, 0x8100000
        v_mov_b32 v2, s18
        s_waitcnt lgkmcnt(0)
        v_mov_b32 v4, s24
        v_mov_b32 v5, s26
        global_store_dwordx2 v2, v[4:5], s[4:5]
        """)
    A("L_exit2:")
    A("s_endpgm")


def kd(name, vg, sg):
    return f""".amdhsa_kernel {name}
  .amdhsa_next_free_vgpr {vg}
  .amdhsa_next_free_sgpr {sg}
  .amdhsa_accum_offset {vg}
  .amdhsa_group_segment_fixed_size 0
  .amdhsa_kernarg_size 104
  .amdhsa_user_sgpr_count 2
  .amdhsa_user_sgpr_kernarg_segment_ptr 1
  .amdhsa_system_sgpr_workgroup_id_x 1
.end_amdhsa_kernel
"""


DOC = '''; ---------------------------------------------------------------------------------------------
;   fused Q-projection -> flash attention (running max with lazy rescale, exp2 domain) -> O-projection,
; ---------------------------------------------------------------------------------------------
'''


def build(code_slice=1024):
    Asm.nlab = 0
    out = HEADER
    kn = NAME + "_kernel" if OPT["fuse"] else "attn_kernel"
    if OPT["fuse"]:
        out += f"; @launch grid=(256,1,1) block=(512,1,1) lds={LDS_BYTES}\n"
    else:
        out += f"; @launch kernel=attn_kernel grid=(256,1,1) block=(512,1,1) lds={LDS_BYTES}\n"
        out += "; @launch kernel=reduce_kernel grid=(512,1,1) block=(256,1,1) lds=0\n"
    out += '.amdgcn_target "amdgcn-amd-amdhsa--gfx950"\n' + DOC + '.text\n'
    A = Asm()
    A.L.append(f".globl {kn}\n.p2align 8\n.type {kn},@function\n{kn}:")
    setup(A)

    def misc():
        if OPT["codepf"]:
            l = A.lab("L_nopf")
            A(f"""
            s_cmp_eq_u32 {sW_ID}, 0
            s_cbranch_scc0 {l}
            s_getpc_b64 s[58:59]
            s_lshr_b32 {sT}, s2, 3
            s_mul_i32 {sT}, {sT}, {code_slice}
            v_lshlrev_b32 v3, 3, v{vL16}
            v_add_u32 v3, {sT}, v3
            v_cmp_gt_u32 vcc, {code_slice//128}, v1
            s_and_saveexec_b64 s[70:71], vcc
            global_load_dword v12, v3, s[58:59]
            s_mov_b64 exec, -1
            {l}:
            """)
        early_clear(A)
    a0, a1 = prog_a()
    b0, b1 = prog_b()
    if OPT["bsh"]:
        misc()
        A(f"s_cmp_eq_u32 s5, 0\ns_cbranch_scc1 L_A")
        T = Stream(); T.A = A
        T.dma_x(0)
        patterns(A)
        A(f"s_cmp_lt_u32 {sW_ID}, 4\ns_cbranch_scc1 L_BG0")
        seq = (("L_BG1", b1), ("L_BG0", b0), ("L_A", None), ("L_AG0", a0), ("L_AG1", a1))
    else:
        misc()
        A(f"""
        s_lshr_b32 {sT}, {sW_ID}, 2
        s_lshl_b32 {sT2}, s5, 1
        s_or_b32 {sT}, {sT}, {sT2}
        s_cmp_eq_u32 {sT}, 1
        s_cbranch_scc1 L_AG1
        s_cmp_eq_u32 {sT}, 2
        s_cbranch_scc1 L_BG0
        s_cmp_eq_u32 {sT}, 3
        s_cbranch_scc1 L_BG1
        """)
        seq = (("L_AG0", a0), ("L_AG1", a1), ("L_BG0", b0), ("L_BG1", b1))
    A("L_code0:")
    for lab, S in seq:
        if int(OPT["sal"]) and lab != seq[0][0] and lab != "L_AG0":
            A.L.append(f".p2align {OPT['sal']}")
        A(f"{lab}:")
        if S is None:
            A(f"s_cmp_ge_u32 {sW_ID}, 4\ns_cbranch_scc1 L_AG1")
            continue
        A.L += S.A.L
        for R in S.rare:
            A.L += R.L
    if OPT["fuse"]:
        final_reduce(A)
    A("L_exit:")
    A("s_endpgm")
    if not OPT["fuse"]:
        A.L.append(".globl reduce_kernel\n.p2align 8\n.type reduce_kernel,@function\nreduce_kernel:")
        reduce_kernel(A)
    out += A.text()
    out += '.section .rodata,"a"\n.p2align 6\n' + kd(kn, 256, 102)
    if not OPT["fuse"]:
        out += ".p2align 6\n" + kd("reduce_kernel", 56, 32)
    return out


if __name__ == "__main__":
    path = sys.argv[1]
    for kv in sys.argv[2:]:
        k, v = kv.split("=")
        if k in ("ts", "kv_nt", "w_nt", "verbose", "wopf", "codepf", "bshift", "ashift", "clk", "uq", "trace", "fuse", "aop", "abar", "aspread", "wosplit", "latew", "bsh", "dbg"):
            OPT[k] = v == "1"
        else:
            OPT[k] = v.replace("_", " ")
    import subprocess, tempfile, os
    txt = build()
    with tempfile.TemporaryDirectory() as d:
        open(d + "/a.s", "w").write(txt)
        subprocess.check_call(["clang", "-x", "assembler", "-target", "amdgcn-amd-amdhsa", "-mcpu=gfx950", "-c", d + "/a.s", "-o", d + "/a.o"])
        nm = subprocess.check_output(["llvm-objdump", "-t", d + "/a.o"], text=True)
    sym = {l.split()[-1]: int(l.split()[0], 16) for l in nm.splitlines() if ".text" in l and len(l.split()) >= 4}
    size = sym["L_exit"] - sym["L_code0"]
    OPT["verbose"] = False
    open(path, "w").write(build(size // 32 // 128 * 128))
```
